```python
import torch

def _softmax(x, axis=-1):
    return torch.softmax(x, dim=axis)
def _gelu(x):
    return torch.nn.functional.gelu(x, approximate="tanh")
def _silu(x):
    return torch.nn.functional.silu(x)
def _sigmoid(x):
    return torch.sigmoid(x)
def _layernorm(x, axis=-1, eps=1e-5):
    m = x.mean(dim=axis, keepdim=True)
    v = x.var(dim=axis, keepdim=True, unbiased=False)
    return (x - m) / torch.sqrt(v + eps)
def _scatter_add(tgt, idx, src, axis=0):
    return tgt.clone().index_add_(axis, idx, src)
def _segment_sum(src, seg, n):
    out = torch.zeros((n,) + src.shape[1:], dtype=src.dtype)
    return out.index_add_(0, seg, src)
def _pad(x, pw):
    flat = tuple(v for pair in reversed(pw) for v in pair)
    return torch.nn.functional.pad(x, flat)

kernel_name = 'gated_mix__linear_kernel_hedgehog__glu_gated_geglu__prompt'

def setup_inputs():

    _w = (lambda a: (lambda t: t.to(torch.bfloat16) if t.is_floating_point() else t)(torch.as_tensor(a)))
    def _A_setup():
        B, S, D, H = 1, 2048, 512, 32
        Dh = D // H
        return {
            "x": _w((lambda *s: torch.randn(*s, dtype=torch.bfloat16) * 0.05)(B, S, D)),
            "wqkv": _w((lambda *s: torch.randn(*s, dtype=torch.bfloat16) * 0.8)(D, 3 * D)),
            "w_phi": _w((lambda *s: torch.randn(*s, dtype=torch.bfloat16) * 0.8)(H, Dh, Dh) * (Dh ** -0.5)),
            "wo": _w((lambda *s: torch.randn(*s, dtype=torch.bfloat16) * 0.05)(D, D)),
        }
    _A_in = _A_setup()

    def _B_setup():
        B, S, Dm, Df = 1, 2048, 512, 1376
        return {
            "x": _w((lambda *s: torch.randn(*s, dtype=torch.bfloat16) * 0.05)(B, S, Dm)),
            "w_gate": _w((lambda *s: torch.randn(*s, dtype=torch.bfloat16) * 1.6)(Dm, Df) * (Dm ** -0.5)),
            "w_up": _w((lambda *s: torch.randn(*s, dtype=torch.bfloat16) * 1.6)(Dm, Df) * (Dm ** -0.5)),
            "w_down": _w((lambda *s: torch.randn(*s, dtype=torch.bfloat16) * 1.6)(Df, Dm) * (Df ** -0.5)),
        }
    _B_in = _B_setup()

    return {
        "A_x": _A_in["x"],
        "A_wqkv": _A_in["wqkv"],
        "A_w_phi": _A_in["w_phi"],
        "A_wo": _A_in["wo"],
        "B_x": _B_in["x"],
        "B_w_gate": _B_in["w_gate"],
        "B_w_up": _B_in["w_up"],
        "B_w_down": _B_in["w_down"],
        "gate_w": _w((lambda *s: torch.randn(*s, dtype=torch.bfloat16) * 0.05)(512) * 16.0),
    }

def reference(A_x, A_wqkv, A_w_phi, A_wo, B_x, B_w_gate, B_w_up, B_w_down, gate_w):
    def _A_ref(x, wqkv, w_phi, wo):
        B, S, D = x.shape
        H = 32; Dh = D // H
        qkv = (lambda x, *d: x.permute(*d))((x @ wqkv).reshape(B, S, 3, H, Dh), 2, 0, 3, 1, 4)
        q, k, v = qkv[0], qkv[1], qkv[2]
        pq = torch.einsum("bhsd,hdf->bhsf", q, w_phi)
        pk = torch.einsum("bhsd,hdf->bhsf", k, w_phi)
        phi_q = torch.concatenate([_softmax(pq, axis=-1), _softmax(-pq, axis=-1)], axis=-1)
        phi_k = torch.concatenate([_softmax(pk, axis=-1), _softmax(-pk, axis=-1)], axis=-1)
        kv = torch.einsum("bhsf,bhsd->bhfd", phi_k, v)
        z  = torch.einsum("bhsf->bhf", phi_k)
        num = torch.einsum("bhqf,bhfd->bhqd", phi_q, kv)
        den = torch.einsum("bhqf,bhf->bhq", phi_q, z)[..., None] + 1e-6
        o = num / den
        return (lambda x, *d: x.permute(*d))(o, 0, 2, 1, 3).reshape(B, S, D) @ wo

    def _B_ref(x, w_gate, w_up, w_down):
        g = torch.einsum("bsd,df->bsf", x, w_gate)
        u = torch.einsum("bsd,df->bsf", x, w_up)
        h = _gelu(g) * u
        return torch.einsum("bsf,fd->bsd", h, w_down)

    x = A_x
    g = _sigmoid((x * gate_w).sum(-1, keepdims=True))
    a = _A_ref(x, A_wqkv, A_w_phi, A_wo)
    b = _B_ref(x, B_w_gate, B_w_up, B_w_down)
    return g * a + (1 - g) * b
```

```python
import re, copy
REG = re.compile(r'\b([vas])(\d+)\b|\b([vas])\[(\d+):(\d+)\]|\b(vcc|exec|m0)\b')
TRANS = ("v_exp_f32", "v_log_f32", "v_rcp_f32", "v_rsq_f32", "v_sqrt_f32", "v_sin_f32", "v_cos_f32")
def regs(tok):
    out = []
    for m in REG.finditer(tok):
        if m.group(1): out.append(m.group(1) + m.group(2))
        elif m.group(3): out += [m.group(3) + str(i) for i in range(int(m.group(4)), int(m.group(5)) + 1)]
        else: out.append(m.group(6))
    return out
def split_ops(s):
    out, depth, cur = [], 0, ""
    for ch in s:
        if ch == "[": depth += 1
        if ch == "]": depth -= 1
        if ch == "," and depth == 0: out.append(cur.strip()); cur = ""
        else: cur += ch
    if cur.strip(): out.append(cur.strip())
    return out
class Ins:
    def __init__(self, text, tag=None, raw=False):
        self.text = text; self.tag = tag; self.raw = raw
        t = text.split(";")[0].strip()
        self.op = t.split()[0] if t else ""
        rest = t[len(self.op):].strip()
        self.ops = split_ops(rest)
        op = self.op
        self.cls = "other"; self.w = []; self.r = []; self.srcc = []; self.ab = []; self.data = []
        R = [regs(o) for o in self.ops]
        flat = lambda l: [x for y in l for x in y]
        if op.endswith(":") or op.startswith(".") or op == "" or op.startswith("@"): self.cls = "meta"
        elif op.startswith("v_mfma"):
            self.cls = "mfma"; self.w = R[0]; self.ab = R[1] + R[2]; self.srcc = R[3]; self.r = self.ab + self.srcc
            self.passes = 8 if "32x32" in op else 4
        elif op.startswith("v_"):
            self.cls = "valu"; self.w = list(R[0]); self.r = flat(R[1:])
            if op.startswith("v_permlane") and "swap" in op: self.w = R[0] + R[1]; self.r = R[0] + R[1]
            if op.startswith(("v_fmac", "v_dot2c", "v_writelane")) or "dpp" in op: self.r += R[0]
            if "_co_" in op: self.w = R[0] + R[1]; self.r = flat(R[2:])
        elif op.startswith("ds_"):
            self.cls = "ds"
            if op.startswith(("ds_read", "ds_bpermute", "ds_swizzle")): self.w = R[0]; self.r = flat(R[1:])
            else: self.r = flat(R)
        elif op.startswith(("buffer_", "global_")):
            self.cls = "vmem"
            lds = re.search(r'\blds\b', t) or "load_lds" in op
            if "load" in op and not lds: self.w = R[0]; self.r = flat(R[1:])
            elif "atomic" in op and re.search(r'\bsc0\b', t): self.w = R[0]; self.r = flat(R)
            else:
                self.r = flat(R)
                if lds: self.r.append("m0"); self.lds = True
                if "store" in op and ("x4" in op or "x3" in op): self.data = R[0] if op.startswith("buffer") else R[1]
        elif op.startswith(("s_load", "s_buffer_load", "s_memtime", "s_memrealtime")):
            self.cls = "smem"; self.w = R[0]; self.r = flat(R[1:])
        elif op.startswith("s_"):
            self.cls = "salu"
            if op.startswith(("s_cmp", "s_bitcmp", "s_cbranch", "s_branch", "s_waitcnt", "s_barrier", "s_nop", "s_sleep", "s_setprio", "s_endpgm")): self.r = flat(R)
            else:
                self.w = list(R[0]) if R else []; self.r = flat(R[1:])
                if "saveexec" in op: self.w.append("exec")
        self.ws = set(self.w); self.rs = set(self.r)
    def states(self):
        if self.cls == "meta": return 0
        if self.op == "s_nop": return int(self.ops[0]) + 1
        return 1
def need(p, c):
    n = 0
    isv = lambda s: {x for x in s if x[0] in "va" and x != "vcc"}
    iss = lambda s: {x for x in s if x[0] == "s" or x == "vcc"}
    if p.cls == "valu":
        raw = p.ws & c.rs
        if isv(raw):
            if c.cls == "mfma": n = max(n, 2)
            if c.op.startswith(("v_readfirstlane", "v_readlane")): n = max(n, 1)
            if c.op.startswith("v_permlane") or "dpp" in c.op: n = max(n, 2)
            if p.op.replace("_e32", "").replace("_e64", "") in TRANS: n = max(n, 1)
        if iss(raw):
            if c.cls == "valu": n = max(n, 4 if c.op.startswith(("v_readlane", "v_writelane")) else 2)
            if c.cls == "vmem": n = max(n, 5)
            if c.cls in ("salu", "smem"): n = max(n, 2)
    if p.cls == "mfma":
        big = 12 if p.passes == 8 else 8
        if c.cls == "mfma":
            if p.ws & set(c.ab): n = max(n, big)
            ov = p.ws & set(c.srcc)
            if ov and not (c.srcc == p.w and c.passes == p.passes): n = max(n, big - 2)
            if (p.ws & c.ws) and not ov and not (c.w == p.w and c.passes == p.passes): n = max(n, big)
        elif c.cls in ("valu", "vmem", "ds"):
            if p.ws & (c.rs | c.ws): n = max(n, big)
            if c.cls == "valu" and set(p.srcc) & c.ws: n = max(n, 7 if p.passes == 8 else 3)
    if p.cls == "salu" and "m0" in p.ws and "m0" in c.rs and c.cls == "vmem": n = max(n, 1)
    if p.cls == "vmem" and p.data and set(p.data) & c.ws: n = max(n, 2)
    return n
class State:
    def __init__(self):
        self.vm = []; self.lg = []; self.hist = []; self.smem = []
    def copy(self):
        s = State(); s.vm = list(self.vm); s.lg = list(self.lg); s.hist = list(self.hist); s.smem = list(self.smem); return s
def process(ins, st, stats=None):
    out = []
    def emit(i):
        if i.cls != "meta":
            d = 0; req = 0
            for p in reversed(st.hist):
                req = max(req, need(p, i) - d)
                d += p.states()
                if d >= 20: break
            if req > 0:
                nop = Ins("s_nop %d" % (req - 1)); out.append(nop.text); st.hist.append(nop)
                if stats is not None: stats["nop"] = stats.get("nop", 0) + req
            st.hist.append(i); st.hist = st.hist[-24:]
        out.append(i.text)
    def wait(vm=None, lg=None):
        parts = []
        if vm is not None:
            vm = min(vm, 62)
            if len(st.vm) > vm: parts.append("vmcnt(%d)" % vm); st.vm = st.vm[len(st.vm) - vm:] if vm else []
        if lg is not None:
            if st.smem: lg = 0
            lg = min(lg, 14)
            if len(st.lg) > lg or st.smem: parts.append("lgkmcnt(%d)" % lg); st.lg = st.lg[len(st.lg) - lg:] if lg else []; st.smem = []
        if parts: emit(Ins("s_waitcnt " + " ".join(parts)))
    def younger(q, pred):
        for k in range(len(q) - 1, -1, -1):
            if pred(q[k]): return len(q) - 1 - k
        return None
    for i in ins:
        if i.raw:
            out.append(i.text); continue
        if i.op == "@wait":
            vm = lg = None
            for o in i.text.split()[1:]:
                k, tag = o.split(":")
                if k == "vm":
                    y = 0 if tag == "all" else younger(st.vm, lambda x: x.tag == tag)
                    if y is not None: vm = y if vm is None else min(vm, y)
                else:
                    y = 0 if tag == "all" else younger(st.lg, lambda x: x.tag == tag)
                    if y is not None: lg = y if lg is None else min(lg, y)
            wait(vm, lg); continue
        if i.op == "s_waitcnt": raise Exception("use @wait")
        touch = i.rs | i.ws
        vm = younger(st.vm, lambda x: x.ws & touch)
        lg = younger(st.lg, lambda x: x.ws & touch)
        if any(x.ws & touch for x in st.smem): lg = 0
        wait(vm, lg)
        emit(i)
        if i.cls == "vmem": st.vm.append(i)
        elif i.cls == "ds": st.lg.append(i)
        elif i.cls == "smem": st.smem.append(i)
    return out
```

```python
import sys, math, struct
from asmpass import Ins, State, process
KNAME = "gated_mix__linear_kernel_hedgehog__glu_gated_geglu__prompt_kernel"
def f2u(x): return struct.unpack("<I", struct.pack("<f", x))[0]
L2E = math.log2(math.e)
K1 = -2.0 * math.sqrt(2.0 / math.pi) * L2E
K2 = K1 * 0.044715
XS = [0, 16384, 32768]; WS = [49152, 86272, 123392]; MISC = 160512
WS_G = 0x780000; WS_KV = 0x790000; WS_ST = 0x800000; WS_SIZE = 0x840000
OOB = 0x40000000
RING = [XS[2], WS[2], WS[2] + 16384, XS[0], WS[0], WS[0] + 16384]
RSET = [0, 1, 2, 0, 0, 1]; RBASE = [0, 65536, WS[2] + 16384]
sX, sW, sQ, sD, sO, sH, sG, sOut, sM, sM2 = 28, 32, 36, 40, 44, 48, 52, 56, 60, 64
(sWave, sT, sU, sFfn, sTT, sCT, sXo, sWa, sWb, sStr, sMx, sMw, sMq, sW2o, sM2r, sTmp, sTmp2, sExp, sHo, sCnt) = range(68, 88)
sL2E = 88
sK2 = 90
sPC = 92
sStamp = 4
def sr(b, n=4): return "s[%d:%d]" % (b, b + n - 1)
def vr(b, n=4): return "v[%d:%d]" % (b, b + n - 1)
def ar(b, n=4): return "a[%d:%d]" % (b, b + n - 1)
vTid, vLane = 0, 1
vT = 2
vFlag, vPoll, vOne, vPr = 10, 11, 12, 13
vL16 = 14; vDummy = 15
vXo = 16
vWo = 20
vXa = 29
vWa = 37
v2o = 46
vSign = 50; vK1 = 52
vFr = 56
vAcc = 112
class P:
    def __init__(self): self.l = []
    def __call__(self, s, tag=None, raw=False):
        for x in s.split("\n"):
            if x.strip(): self.l.append(Ins(x, tag, raw))
    def ext(self, o): self.l += o.l if isinstance(o, P) else o
def merge(main, side, start=0, per=1, every=1):
    out = []; k = 0
    for i, x in enumerate(main):
        out.append(x)
        if i >= start and (i - start) % every == every - 1:
            for _ in range(per):
                if k < len(side): out += side[k]; k += 1
    return out, side[k:]

class Gen:
    def __init__(self, **o):
        self.o = dict(stamps=False, p2map="4x8", pf=7, touch=False, codepf=True)
        self.o.update(o); self.nst = 0; self.nlab = 0; self.stnames = []
    def stamp(self, p, name):
        if self.o["stamps"]:
            p("s_memrealtime s[%d:%d]" % (sStamp + 2 * self.nst, sStamp + 2 * self.nst + 1), raw=True)
            self.nst += 1; self.stnames.append(name); assert self.nst <= 12
    def srd(self, p, d, ptr, size):
        p("s_mov_b32 s%d, s%d\ns_mov_b32 s%d, s%d\ns_mov_b32 s%d, 0x%x\ns_mov_b32 s%d, 0x20000" % (d, ptr, d + 1, ptr + 1, d + 2, size, d + 3))
    def prologue(self):
        p = P()
        if self.o["stamps"]: p("s_memrealtime s[94:95]", raw=True)
        p("s_load_dwordx16 s[4:19], s[0:1], 0\ns_load_dwordx8 s[20:27], s[0:1], 64")
        p("s_cmp_ge_u32 s2, 256\ns_cbranch_scc1 Lend")
        p("v_and_b32 v1, 63, v0\nv_lshrrev_b32 v2, 6, v0\nv_readfirstlane_b32 s%d, v2" % sWave)
        p("s_and_b32 s%d, s2, 7\ns_lshr_b32 s%d, s2, 3" % (sTmp, sTmp2))
        p("s_lshr_b32 s%d, s%d, 2\ns_lshl_b32 s%d, s%d, 3\ns_lshr_b32 s3, s%d, 2\ns_add_u32 s%d, s%d, s3" % (sT, sTmp, sT, sT, sTmp2, sT, sT))
        p("s_and_b32 s3, s%d, 3\ns_mul_i32 s%d, s3, 22\ns_lshl_b32 s%d, s3, 1\ns_bfe_u32 s3, s%d, 0x10001\ns_add_u32 s%d, s%d, s3" % (sTmp, sFfn, sU, sTmp2, sU, sU))
        if self.o["p2map"] == "4x8":
            p("s_lshl_b32 s%d, s%d, 2\ns_lshr_b32 s3, s%d, 3\ns_add_u32 s%d, s%d, s3\ns_and_b32 s%d, s%d, 7" % (sTT, sTmp, sTmp2, sTT, sTT, sCT, sTmp2))
        else:
            p("s_lshr_b32 s%d, s%d, 1\ns_lshl_b32 s%d, s%d, 3\ns_lshr_b32 s3, s%d, 2\ns_add_u32 s%d, s%d, s3" % (sTT, sTmp, sTT, sTT, sTmp2, sTT, sTT))
            p("s_and_b32 s%d, s%d, 1\ns_lshl_b32 s%d, s%d, 2\ns_and_b32 s3, s%d, 3\ns_add_u32 s%d, s%d, s3" % (sCT, sTmp, sCT, sCT, sTmp2, sCT, sCT))
        p("s_bitcmp1_b32 s%d, 0\ns_cbranch_scc1 LpathB" % sTmp2)
        return p
    def setup(self, B):
        p = P(); o = self.o
        nm = "B" if B else "A"
        if o["codepf"]:
            p("s_getpc_b64 s[%d:%d]" % (sPC, sPC + 1))
            p("Lpc%s:" % nm)
            p("v_lshlrev_b32 v2, 7, v0\nv_min_u32 v2, Lfin%s-Lpc%s, v2\nv_and_b32 v2, -4, v2" % (nm, nm))
            p("global_load_dword v%d, v2, s[%d:%d]" % (vDummy, sPC, sPC + 1))
        if B: p("s_and_b32 s3, s%d, 1\ns_mul_i32 s3, s3, 7\ns_add_u32 s%d, s%d, s3\ns_add_u32 s%d, s%d, 8" % (sU, sFfn, sFfn, sFfn, sFfn))
        else: p("s_and_b32 s3, s%d, 1\ns_lshl_b32 s3, s3, 2\ns_add_u32 s%d, s%d, s3" % (sU, sFfn, sFfn))
        p("s_lshl_b32 s%d, s%d, 17\ns_lshl_b32 s3, s%d, 15\ns_add_u32 s%d, s%d, s3" % (sXo, sT, sWave, sXo, sXo))
        p("s_lshl_b32 s%d, s%d, 12" % (sMx, sWave))
        p("v_lshrrev_b32 v2, 3, v1\nv_and_b32 v3, 7, v1\nv_lshrrev_b32 v4, 4, v1\nv_and_b32 v5, 1, v4")
        p("v_xor_b32 v6, v3, v4\nv_lshlrev_b32 v6, 4, v6\nv_lshl_add_u32 v%d, v2, 10, v6" % vXo)
        p("v_xor_b32 v6, 64, v%d\nv_add_u32 v%d, 7168, v6\nv_add_u32 v%d, 14336, v%d\nv_add_u32 v%d, 21504, v6" % (vXo, vXo + 1, vXo + 2, vXo, vXo + 3))
        p("v_lshlrev_b32 v6, 2, v5\nv_xor_b32 v6, v3, v6\nv_lshlrev_b32 v7, 4, v6")
        if not B:
            p("s_movk_i32 s3, 2752\ns_cmp_lt_u32 s%d, 2\ns_cselect_b32 s%d, 3072, s3" % (sWave, sStr))
            p("s_lshl_b32 s3, s%d, 7\ns_lshl_b32 s%d, s%d, 10\ns_add_u32 s3, s3, s%d\ns_add_u32 s3, s3, 1024\ns_lshl_b32 s%d, s%d, 5" % (sU, sTmp, sWave, sTmp, sTmp, sFfn))
            p("s_cmp_lt_u32 s%d, 2\ns_cselect_b32 s%d, s3, s%d" % (sWave, sWa, sTmp))
            p("s_lshl_b32 s3, s%d, 5\ns_add_u32 s%d, s%d, s3" % (sStr, sWb, sWa))
            p("s_and_b32 s3, s%d, 1\ns_lshl_b32 s3, s3, 2" % sWave)
            p("v_lshlrev_b32 v6, 1, v5\nv_xor_b32 v6, v3, v6\nv_xor_b32 v6, s3, v6\nv_lshlrev_b32 v6, 4, v6")
            p("v_mad_u32_u24 v%d, v2, s%d, v6" % (vWo, sStr))
            p("s_lshl_b32 s3, s%d, 3\ns_sub_u32 s3, s3, 1024" % sStr)
            for j in range(1, 4): p("v_add_u32 v%d, s3, v%d" % (vWo + j, vWo + j - 1))
            p("s_lshl_b32 s%d, s%d, 6\ns_lshl_b32 s%d, s%d, 13" % (sStr, sStr, sMw, sWave))
        else:
            p("s_mul_i32 s%d, s%d, %d\ns_lshl_b32 s3, s%d, 7\ns_add_u32 s%d, s%d, s3" % (sWb, sWave, 16 * 3072, sU, sWb, sWb))
            p("s_and_b32 s%d, s%d, 1\ns_mul_i32 s%d, s%d, %d\ns_lshl_b32 s3, s%d, 5\ns_add_u32 s%d, s%d, s3" % (sTmp, sWave, sWa, sTmp, 32 * 2752, sFfn, sWa, sWa))
            p("s_mul_i32 s%d, s%d, 7168\ns_lshr_b32 s3, s%d, 1\ns_mul_i32 s3, s3, 14464\ns_add_u32 s%d, s%d, s3\ns_add_u32 s%d, s%d, 8192" % (sMw, sTmp, sWave, sMw, sMw, sMw, sMw))
            p("s_lshl_b32 s%d, s%d, 11" % (sMq, sWave))
            p("v_mul_u32_u24 v6, 3072, v2\nv_add_u32 v%d, v6, v7\nv_add_u32 v%d, %d, v%d" % (vWo, vWo + 1, 8 * 3072 - 1024, vWo))
            for j in range(7):
                r = vWo + 2 + j
                p("v_add_u32 v6, %d, v1\nv_mul_u32_u24 v8, 4682, v6\nv_lshrrev_b32 v8, 16, v8" % (64 * j))
                p("v_mul_u32_u24 v8, %d, v8\nv_lshl_add_u32 v%d, v6, 4, v8" % (2752 - 224, r))
                if j & 3: p("v_subrev_u32 v%d, %d, v%d" % (r, 1024 * (j & 3), r))
        self.srd(p, sX, 4, 2048 * 1024)
        if not B:
            p("s_cmp_eq_u32 s%d, 2\ns_cselect_b64 s[%d:%d], s[14:15], s[16:17]" % (sWave, sW, sW + 1))
            p("s_cmp_lt_u32 s%d, 2\ns_cselect_b64 s[%d:%d], s[6:7], s[%d:%d]\ns_cselect_b32 s%d, 0x%x, 0" % (sWave, sW, sW + 1, sW, sW + 1, sW + 2, 512 * 3072 - 512 * 2752))
            p("s_add_u32 s%d, s%d, 0x%x\ns_mov_b32 s%d, 0x20000" % (sW + 2, sW + 2, 512 * 2752, sW + 3))
        else:
            p("s_cmp_lt_u32 s%d, 2\ns_cselect_b64 s[%d:%d], s[14:15], s[16:17]" % (sWave, sW, sW + 1))
            p("s_mov_b32 s%d, 0x%x\ns_mov_b32 s%d, 0x20000" % (sW + 2, 512 * 2752, sW + 3))
            self.srd(p, sQ, 6, 512 * 3072)
        q = P()
        q("v_lshl_add_u32 v%d, v2, 10, v7\nv_add_u32 v%d, 7168, v%d\nv_add_u32 v%d, %d, v%d\nv_add_u32 v%d, %d, v%d" % (v2o, v2o + 1, v2o, v2o + 2, 65536 - 2048, v2o, v2o + 3, 65536 - 2048, v2o + 1))
        self.srd(q, sD, 18, 1376 * 1024); self.srd(q, sO, 10, 512 * 1024); self.srd(q, sH, 26, WS_SIZE)
        self.srd(q, sG, 24, 256); self.srd(q, sOut, 22, 2048 * 1024); self.srd(q, sM, 8, 16384); self.srd(q, sM2, 20, 1024)
        q("v_lshlrev_b32 v%d, 4, v1" % vL16)
        q("v_mov_b32 v%d, 1\nv_mov_b32 v6, 0x%x\nv_cmp_eq_u32 vcc, 0, v0\nv_cndmask_b32 v%d, v6, 0, vcc" % (vOne, OOB, vFlag))
        q("v_cmp_gt_u32 vcc, 64, v0\nv_cndmask_b32 v%d, v6, 0, vcc" % vPoll)
        q("s_mov_b32 s%d, 0x%x\ns_mov_b32 s%d, 0x%x\ns_mov_b32 s%d, 0x%x\ns_mov_b32 s%d, 0x%x\nv_mov_b32 v%d, 0x%x" % (sL2E, f2u(L2E), sL2E + 1, f2u(L2E), sK2, f2u(K2), sK2 + 1, f2u(K2), vK1, f2u(K1)))
        q("v_bfe_u32 v6, v1, 2, 1\nv_mul_u32_u24 v6, 0x8000, v6\nv_lshl_or_b32 v%d, v6, 16, v6" % vSign)
        q("s_lshl_b32 s%d, s%d, 14\ns_lshl_b32 s3, s%d, 7\ns_add_u32 s%d, s%d, s3" % (sW2o, sWave, sCT, sW2o, sW2o))
        q("v_and_b32 v2, 31, v1\nv_lshrrev_b32 v3, 5, v1\nv_bfe_u32 v6, v2, 1, 3\nv_xor_b32 v6, v3, v6\nv_lshlrev_b32 v6, 4, v6\nv_lshl_add_u32 v6, v2, 7, v6")
        if B: q("s_lshl_b32 s3, s%d, 12" % sWave)
        else: q("s_lshr_b32 s3, s%d, 1\ns_lshl_b32 s3, s3, 13" % sWave)
        q("v_add_u32 v%d, s3, v6" % vXa)
        for s in range(1, 4): q("v_xor_b32 v%d, %d, v%d" % (vXa + s, s << 5, vXa))
        if B:
            for s in range(4): q("v_xor_b32 v%d, 0x1000, v%d" % (vXa + 4 + s, vXa + s))
        q("v_bfe_u32 v4, v1, 2, 2\nv_lshrrev_b32 v6, 1, v4\nv_and_b32 v7, 3, v1\nv_lshlrev_b32 v7, 3, v7\nv_lshl_add_u32 v8, v3, 3, v4")
        q("s_and_b32 s%d, s%d, 1\ns_lshl_b32 s3, s%d, 1" % (sTmp, sWave, sTmp))
        if not B:
            q("v_lshl_or_b32 v9, v5, 1, v6\nv_xor_b32 v9, s3, v9\nv_lshl_add_u32 v9, v9, 5, v7\nv_lshl_add_u32 v9, v8, 7, v9\nv_lshl_add_u32 v9, v5, 13, v9")
            for sl in range(3): q("v_add_u32 v%d, %d, v9\nv_xor_b32 v%d, 32, v%d" % (vWa + 3 * sl, WS[sl], vWa + 3 * sl + 1, vWa + 3 * sl))
        else:
            q("v_lshl_or_b32 v9, v6, 1, v5\nv_xor_b32 v9, s3, v9\nv_lshl_add_u32 v9, v9, 5, v7\nv_lshl_add_u32 v9, v8, 7, v9")
            for sl in range(3): q("v_add_u32 v%d, %d, v9" % (vWa + 3 * sl, WS[sl]))
            q("v_mul_u32_u24 v9, 224, v8\nv_add_u32 v9, v9, v7\nv_mul_u32_u24 v8, 14464, v5\nv_add_u32 v9, v9, v8\ns_mul_i32 s3, s%d, 96" % sTmp)
            for sl in range(3): q("v_add_u32 v%d, %d, v9\nv_add_u32 v%d, s3, v%d\nv_add_u32 v%d, 192, v%d" % (vWa + 3 * sl + 2, WS[sl] + 8192, vWa + 3 * sl + 1, vWa + 3 * sl + 2, vWa + 3 * sl + 2, vWa + 3 * sl + 2))
        return p, q
    def slab_dma(self, B, sg):
        sl = sg % 3; tag = "slab%d" % sg; ch = []
        def dma(pre, v, srd, so, imm, post=""):
            p = P()
            if pre: p(pre)
            p("buffer_load_dwordx4 v%d, %s, s%d offen offset:%d lds" % (v, sr(srd), so, imm), tag=tag)
            if post: p(post)
            ch.append(p.l)
        for j in range(4):
            dma("s_add_u32 m0, s%d, %d" % (sMx, XS[sl]) if j == 0 else "", vXo + j, sX, sXo, 1024 * j, "s_add_u32 s%d, s%d, 128" % (sXo, sXo) if j == 3 else "")
        if not B:
            for j in range(8):
                so = sWa if j < 4 else sWb
                dma("s_add_u32 m0, s%d, %d" % (sMw, WS[sl] + 1024 * j) if j % 4 == 0 else "", vWo + j % 4, sW, so, 1024 * (j % 4), "s_add_u32 s%d, s%d, s%d" % (so, so, sStr) if j % 4 == 3 else "")
        else:
            for j in range(2):
                dma("s_add_u32 m0, s%d, %d" % (sMq, WS[sl]) if j == 0 else "", vWo + j, sQ, sWb, 1024 * j, "s_add_u32 s%d, s%d, %d" % (sWb, sWb, 64 * 3072) if j == 1 else "")
            for j in range(7):
                dma("s_add_u32 m0, s%d, %d" % (sMw, WS[sl] + 1024 * j) if j % 4 == 0 else "", vWo + 2 + j, sW, sWa, 1024 * (j % 4), "s_add_u32 s%d, s%d, %d" % (sWa, sWa, 64 * 2752) if j == 6 else "")
        return ch
    def w2_dma(self, i):
        ch = []
        for j in range(4):
            p = P()
            if j == 0:
                if i >= 6: p("@wait lg:w2r%d" % (i - 6))
                p("s_add_u32 m0, s%d, %d" % (sMx, RING[i % 6]))
            p("buffer_load_dwordx4 v%d, %s, s%d offen offset:%d lds" % (v2o + j, sr(sD if i < 11 else sO), sW2o, 1024 * j), tag="w2d%d" % i)
            if j == 3:
                if i == 10: p("s_sub_u32 s%d, s%d, %d" % (sW2o, sW2o, 10 * 131072))
                else: p("s_add_u32 s%d, s%d, %d" % (sW2o, sW2o, 131072))
            ch.append(p.l)
        return ch
    def w2_reads(self, i, va):
        ch = []
        rs = RSET[i % 6]; off = RING[i % 6] - RBASE[rs]
        for st in range(2):
            for cb in range(2):
                p = P()
                if st == 0 and cb == 0: p("@wait vm:w2d%d" % i)
                for half in range(2):
                    d = 8 * (2 * i + st) + 4 * cb + 2 * half
                    p("ds_read_b64_tr_b16 %s, v%d offset:%d" % (ar(d, 2), va + 2 * rs + cb, off + st * 2048 + half * 1024), tag="w2r%d" % i)
                ch.append(p.l)
        return ch
    def w2_addr(self, va):
        p = P()
        p("v_bfe_u32 v2, v1, 2, 2\nv_lshrrev_b32 v3, 5, v1\nv_lshl_add_u32 v3, v3, 2, v2\nv_and_b32 v2, 2, v2\nv_bfe_u32 v4, v1, 4, 1\nv_or_b32 v2, v2, v4")
        p("v_and_b32 v4, 3, v1\nv_lshlrev_b32 v4, 3, v4\nv_lshl_add_u32 v4, v2, 5, v4\nv_lshl_add_u32 v4, v3, 7, v4\nv_add_u32 v%d, s%d, v4\nv_xor_b32 v%d, 64, v%d" % (va, sMx, va + 1, va))
        for k in (1, 2): p("v_add_u32 v%d, %d, v%d\nv_add_u32 v%d, %d, v%d" % (va + 2 * k, RBASE[k], va, va + 2 * k + 1, RBASE[k], va + 1))
        return p
    def flag(self, p, sreg, base):
        p("s_lshl_b32 s3, s%d, 2" % sreg)
        p("buffer_atomic_add v%d, v%d, %s, s3 offen offset:%d" % (vOne, vFlag, sr(sG), base * 4))
    def poll_issue(self, p, sreg, base, shift=0):
        if shift: p("s_lshr_b32 s%d, s%d, %d\ns_lshl_b32 s%d, s%d, 2" % (sCnt, sreg, shift, sCnt, sCnt))
        else: p("s_lshl_b32 s%d, s%d, 2" % (sCnt, sreg))
        p("buffer_load_dword v%d, v%d, %s, s%d offen offset:%d sc1" % (vPr, vPoll, sr(sG), sCnt, base * 4))
    def poll_check(self, p, base, n):
        k = self.nlab; self.nlab += 1
        p("s_cmp_eq_u32 s%d, 0\ns_cselect_b32 s%d, %d, 0" % (sWave, sExp, n))
        p("v_readfirstlane_b32 s3, v%d\ns_cmp_ge_u32 s3, s%d\ns_cbranch_scc1 Lok%d" % (vPr, sExp, k))
        p("s_mov_b32 s%d, 0\nLsp%d:\ns_sleep 2\nbuffer_load_dword v%d, v%d, %s, s%d offen offset:%d sc1\ns_waitcnt vmcnt(0)" % (sTmp2, k, vPr, vPoll, sr(sG), sCnt, base * 4), raw=True)
        p("v_readfirstlane_b32 s3, v%d\ns_add_u32 s%d, s%d, 1\ns_nop 1\ns_cmp_ge_u32 s3, s%d\ns_cbranch_scc1 Lok%d\ns_cmp_lt_u32 s%d, 0x8000\ns_cbranch_scc1 Lsp%d\nLok%d:" % (vPr, sTmp2, sTmp2, sExp, k, sTmp2, k, k), raw=True)
    def gate_job(self, B):
        ld = P(); c = P()
        ld("s_lshl_b32 s3, s%d, 4\ns_lshl_b32 s%d, s%d, 1\ns_add_u32 s3, s3, s%d\ns_add_u32 s3, s3, %d" % (sT, sTmp, sU, sTmp, 1 if B else 0))
        ld("s_lshl_b32 s3, s3, 2\ns_add_u32 s3, s3, s%d\ns_lshl_b32 s%d, s3, 3\ns_lshl_b32 s3, s3, 11" % (sWave, sHo))
        ld("buffer_load_dwordx4 a[240:243], v%d, %s, s3 offen\nbuffer_load_dwordx4 a[244:247], v%d, %s, s3 offen offset:1024" % (vL16, sr(sX), vL16, sr(sX)))
        ld("buffer_load_dwordx4 a[248:251], v%d, %s, 0 offen" % (vL16, sr(sM2)))
        for i in range(4):
            c("v_accvgpr_read_b32 v4, a%d\nv_accvgpr_read_b32 v5, a%d\nv_accvgpr_read_b32 v6, a%d" % (240 + i, 244 + i, 248 + i))
            c("v_lshlrev_b32 v7, 16, v4\nv_lshlrev_b32 v8, 16, v5\nv_lshlrev_b32 v9, 16, v6")
            if i == 0: c("v_mul_f32 v2, v7, v9\nv_mul_f32 v3, v8, v9")
            else: c("v_fmac_f32 v2, v7, v9\nv_fmac_f32 v3, v8, v9")
            c("v_and_b32 v4, 0xffff0000, v4\nv_and_b32 v5, 0xffff0000, v5\nv_and_b32 v6, 0xffff0000, v6")
            c("v_fmac_f32 v2, v4, v6\nv_fmac_f32 v3, v5, v6")
        c("v_permlane32_swap_b32 v2, v3\nv_add_f32 v2, v2, v3")
        for r in (8, 4, 2, 1): c("v_add_f32_dpp v2, v2, v2 row_ror:%d row_mask:0xf bank_mask:0xf" % r)
        c("v_mov_b32 v3, v2\nv_permlane16_swap_b32 v2, v3\nv_add_f32 v2, v2, v3")
        c("v_mul_f32 v2, 0x%x, v2\nv_exp_f32 v2, v2\nv_add_f32 v2, 1.0, v2\nv_rcp_f32 v2, v2" % f2u(-L2E))
        c("v_and_b32 v3, 31, v1\nv_lshlrev_b32 v3, 25, v3\nv_lshrrev_b32 v4, 3, v1\nv_or_b32 v3, v3, v4")
        c("s_add_u32 s3, s%d, 0x%x" % (sHo, WS_G))
        c("buffer_store_dword v2, v3, %s, s3 offen sc1" % sr(sH), tag="hst")
        return ld, c
    def wphi_load(self):
        p = P()
        p("s_and_b32 s3, s%d, 1\ns_lshl_b32 s3, s3, 10\ns_add_u32 m0, s3, %d\ns_lshl_b32 s%d, s%d, 11\ns_add_u32 s3, s3, s%d" % (sWave, MISC, sTmp, sU, sTmp))
        p("buffer_load_dwordx4 v%d, %s, s3 offen lds" % (vL16, sr(sM)), tag="wphi")
        return p
    def wphi_read(self, vd):
        p = P()
        p("v_bfe_u32 v2, v1, 2, 2\nv_lshrrev_b32 v3, 5, v1\nv_lshl_add_u32 v3, v3, 2, v2\nv_bfe_u32 v2, v1, 1, 1\nv_and_b32 v4, 16, v1\nv_lshl_add_u32 v4, v2, 3, v4\nv_lshl_add_u32 v4, v3, 5, v4")
        p("s_and_b32 s3, s%d, 1\ns_lshl_b32 s3, s3, 10\ns_add_u32 s3, s3, %d\nv_add_u32 v4, s3, v4" % (sWave, MISC))
        p("@wait vm:wphi")
        for b in range(2):
            for half in range(2): p("ds_read_b64_tr_b16 %s, v4 offset:%d" % (vr(vd + 4 * b + 2 * half, 2), b * 512 + half * 256))
        for i in range(8): p("v_xor_b32 v%d, v%d, v%d" % (vd + i, vd + i, vSign))
        return p
    def softmax(self, Pr, T, out):
        p = P()
        for k in range(5): p("v_max3_f32 v%d, v%d, v%d, v%d" % (T + k, Pr + 3 * k, Pr + 3 * k + 1, Pr + 3 * k + 2))
        p("v_max3_f32 v%d, v%d, v%d, v%d\nv_max3_f32 v%d, v%d, v%d, v%d\nv_max_f32 v%d, v%d, v%d" % (T, T, T + 1, Pr + 15, T + 2, T + 2, T + 3, T + 4, T, T, T + 2))
        p("v_mul_f32 v%d, 0x%x, v%d" % (T, f2u(-L2E), T))
        for k in range(8): p("v_pk_fma_f32 %s, %s, %s, %s op_sel_hi:[1,0,0]" % (vr(Pr + 2 * k, 2), vr(Pr + 2 * k, 2), sr(sL2E, 2), vr(T, 2)))
        for k in range(16): p("v_exp_f32 v%d, v%d" % (Pr + k, Pr + k))
        for k in range(4): p("v_pk_add_f32 %s, %s, %s" % (vr(T + 2 * k, 2), vr(Pr + 4 * k, 2), vr(Pr + 4 * k + 2, 2)))
        p("v_pk_add_f32 %s, %s, %s\nv_pk_add_f32 %s, %s, %s\nv_pk_add_f32 %s, %s, %s" % (vr(T, 2), vr(T, 2), vr(T + 2, 2), vr(T + 4, 2), vr(T + 4, 2), vr(T + 6, 2), vr(T, 2), vr(T, 2), vr(T + 4, 2)))
        p("v_add_f32 v%d, v%d, v%d\nv_rcp_f32 v%d, v%d" % (T, T, T + 1, T, T))
        for k in range(8): p("v_pk_mul_f32 %s, %s, %s op_sel_hi:[1,0]" % (vr(Pr + 2 * k, 2), vr(Pr + 2 * k, 2), vr(T, 2)))
        for k in range(8): p("v_cvt_pk_bf16_f32 v%d, v%d, v%d" % (out + k, Pr + 2 * k, Pr + 2 * k + 1))
        return p
    def gelu(self, a, T, soff, imm):
        p = P()
        for k in range(4): p("v_pk_mul_f32 %s, %s, %s" % (vr(T + 2 * k, 2), vr(a + 2 * k, 2), vr(a + 2 * k, 2)))
        for k in range(4): p("v_pk_fma_f32 %s, %s, %s, %s op_sel_hi:[1,0,0]" % (vr(T + 2 * k, 2), vr(T + 2 * k, 2), sr(sK2, 2), vr(vK1, 2)))
        for k in range(4): p("v_pk_mul_f32 %s, %s, %s" % (vr(T + 2 * k, 2), vr(T + 2 * k, 2), vr(a + 2 * k, 2)))
        for k in range(8): p("v_exp_f32 v%d, v%d" % (T + k, T + k))
        for k in range(4): p("v_pk_mul_f32 %s, %s, %s" % (vr(a + 2 * k, 2), vr(a + 2 * k, 2), vr(a + 8 + 2 * k, 2)))
        for k in range(4): p("v_pk_add_f32 %s, %s, 1.0 op_sel_hi:[1,0]" % (vr(T + 2 * k, 2), vr(T + 2 * k, 2)))
        for k in range(8): p("v_rcp_f32 v%d, v%d" % (T + k, T + k))
        for k in range(4): p("v_pk_mul_f32 %s, %s, %s" % (vr(a + 2 * k, 2), vr(a + 2 * k, 2), vr(T + 2 * k, 2)))
        for k in range(4): p("v_cvt_pk_bf16_f32 v%d, v%d, v%d" % (a + 8 + k, a + 2 * k, a + 2 * k + 1))
        p("buffer_store_dwordx4 %s, v%d, %s, s%d offen offset:%d sc1" % (vr(a + 8), vL16, sr(sH), soff, imm), tag="hst")
        return p
    def hpos(self, p, dst, ksreg, step0):
        p("s_and_b32 s3, s%d, 3\ns_mul_i32 s3, s3, 30\ns_lshr_b32 s%d, s%d, 2\ns_add_u32 s3, s3, s%d" % (ksreg, dst, ksreg, dst))
        if step0: p("s_add_u32 s3, s3, %d" % step0)
        p("s_lshl_b32 s3, s3, 11\ns_add_u32 s%d, s3, s%d" % (dst, sHo))
    def path(self, B):
        o = self.o; p = P(); nm = "B" if B else "A"
        self.nst = 0; self.stnames = []
        if B: p("LpathB:")
        s1, s2 = self.setup(B)
        p.ext(s1)
        nb = 5 if B else 4; nd = 13 if B else 12
        fx = lambda ps, tb: vFr + 28 * ps + 4 * tb
        fw = lambda ps, b: vFr + 28 * ps + 8 + 4 * b
        acc = lambda b, tb: vAcc + 16 * (2 * b + tb)
        def reads(sg, s):
            sl = sg % 3; ps = s & 1; r = []
            def rx(tb):
                if B: r.append([Ins("ds_read_b128 %s, v%d offset:%d" % (vr(fx(ps, tb)), vXa + 4 * tb + s, XS[sl]))])
                else: r.append([Ins("ds_read_b128 %s, v%d offset:%d" % (vr(fx(ps, tb)), vXa + s, XS[sl] + 4096 * tb))])
            def rw(b):
                for half in range(2):
                    if not B: va, off = vWa + 3 * sl + (b & 1), s * 2048 + half * 512 + (b >> 1) * 16384
                    elif b == 0: va, off = vWa + 3 * sl, s * 2048 + half * 512
                    elif b < 4: va, off = vWa + 3 * sl + 1, s * 3584 + half * 896 + (b - 1) * 32
                    else: va, off = vWa + 3 * sl + 2, s * 3584 + half * 896
                    r.append([Ins("ds_read_b64_tr_b16 %s, v%d offset:%d" % (vr(fw(ps, b) + 2 * half, 2), va, off))])
            rx(0); rw(0); rx(1)
            for b in range(1, nb): rw(b)
            return r
        dq = self.slab_dma(B, 0) + self.slab_dma(B, 1) + self.slab_dma(B, 2)
        npre = nd + o.get("pre1", 6)
        for c in dq[:nd]: p.ext(c)
        self.stamp(p, "issued0")
        p.ext(s2)
        if not B:
            p("s_cmp_eq_u32 s%d, 0\ns_cselect_b32 s%d, 0, 0x%x" % (sT, sTmp, OOB))
            p("s_lshl_b32 s3, s%d, 2\ns_add_u32 s3, s3, s%d\ns_lshl_b32 s3, s3, 12\ns_add_u32 s%d, s3, 0x%x\ns_add_u32 s3, s%d, s%d" % (sU, sWave, sM2r, WS_KV, sM2r, sTmp))
            for k in range(4): p("v_mov_b32 v%d, 0" % (vAcc + 128 + k))
            for k in range(3): p("buffer_store_dwordx4 %s, v%d, %s, s3 offen offset:%d sc1" % (vr(vAcc + 128), vL16, sr(sH), 1024 * k), tag="zst")
        for c in dq[nd:npre]: p.ext(c)
        dq = dq[npre:]
        p("@wait vm:slab0\ns_barrier")
        self.stamp(p, "slab0")
        for c in reads(0, 0): p.ext(c)
        gl, gc = self.gate_job(B)
        v2a = vWo
        side = {}
        def addside(sg, s, pp, n=1):
            l = pp.l; side.setdefault((sg, s), [])
            side[(sg, s)] += [l[i:i + n] for i in range(0, len(l), n)]
        addside(1, 0, gl, 20)
        if not B:
            z = P(); z("s_cmp_eq_u32 s%d, 0\ns_cselect_b32 s%d, 0, 0x%x\ns_lshl_b32 s3, s%d, 2\ns_add_u32 s3, s3, s%d" % (sT, sTmp, OOB, sU, sTmp))
            z("buffer_atomic_add v%d, v%d, %s, s3 offen" % (vOne, vFlag, sr(sG)))
            addside(1, 2, z, 20)
            z = P(); self.poll_issue(z, sU, 0); addside(6, 0, z, 20)
        n = len(gc.l); q = (n + 7) // 8
        for k in range(8):
            z = P(); z.l = gc.l[k * q:(k + 1) * q]; addside(3 + k // 4, k % 4, z, 2)
        addside(6, 1, self.w2_addr(v2a), 2)
        for sg in range(8):
            for s in range(4):
                ps = s & 1
                if s == 3:
                    p("@wait lg:all vm:slab%d%s\ns_barrier" % (sg + 1, " vm:zst" if sg == 0 else ""))
                    if sg + 3 < 8: dq += self.slab_dma(B, sg + 3) + ([self.wphi_load().l] if sg == 1 else [])
                    elif sg == 5: dq += self.w2_dma(0) + self.w2_dma(1) + self.w2_dma(2)
                    elif sg == 6: dq += self.w2_dma(3) + self.w2_dma(4) + self.w2_dma(5)
                else: p("@wait lg:all")
                rd = reads(sg, s + 1) if s < 3 else (reads(sg + 1, 0) if sg < 7 else [])
                left = (3 - s) if s < 3 else 4
                nq = -(-len(dq) // left)
                ex = list(side.get((sg, s), []))
                mm = [(b, tb) for b in range(4) for tb in range(2)] + ([(4, 0)] if B else [])
                for gi, (b, tb) in enumerate(mm):
                    a = acc(b, tb)
                    p("v_mfma_f32_32x32x16_bf16 %s, %s, %s, %s" % (vr(a, 16), vr(fw(ps, b)), vr(fx(ps, tb)), "0" if (sg == 0 and s == 0) else vr(a, 16)))
                    for _ in range(2):
                        if rd: p.ext(rd.pop(0))
                    rem = len(mm) - gi
                    if nq >= rem and dq:
                        p.ext(dq.pop(0)); nq -= 1
                    k = -(-len(ex) // rem)
                    for _ in range(k): p.ext(ex.pop(0))
                while nq > 0 and dq: p.ext(dq.pop(0)); nq -= 1
                assert not rd and not ex
        assert not dq
        self.stamp(p, "gemm")
        w2 = []
        for i in range(15):
            w2 += self.w2_reads(i, v2a)
            if i + 6 < 15: w2 += self.w2_dma(i + 6)
        T = 2; vWp = vFr; vKf = vFr + 8; vPh = vFr + 24
        e = P()
        e("s_lshl_b32 s3, s%d, 1\ns_lshr_b32 s%d, s%d, 1\ns_add_u32 s3, s3, s%d\ns_mul_i32 s%d, s3, 245760" % (sT, sTmp, sWave, sTmp, sHo))
        e("s_and_b32 s%d, s%d, 1" % (sStr, sWave))
        ev = o.get("ev", 6)
        if not B:
            e.ext(self.wphi_read(vWp))
            vV = vXa
            e("v_and_b32 v2, 31, v1\nv_lshrrev_b32 v3, 5, v1\nv_bfe_u32 v4, v1, 1, 2\nv_lshlrev_b32 v5, 1, v3\nv_xor_b32 v4, v4, v5\nv_lshlrev_b32 v4, 4, v4\nv_lshl_add_u32 v4, v2, 6, v4")
            e("s_lshr_b32 s%d, s%d, 1\ns_lshl_b32 s3, s%d, 2\ns_add_u32 s%d, s%d, s3" % (sTmp, sWave, sStr, sTmp, sTmp))
            e("s_lshl_b32 s3, s%d, 12\ns_add_u32 s3, s3, %d\nv_add_u32 v29, s3, v4\nv_xor_b32 v36, 16, v29" % (sTmp, WS[1]))
            e("v_bfe_u32 v4, v1, 2, 1\nv_xor_b32 v4, v4, v3\nv_lshlrev_b32 v4, 4, v4\nv_lshl_add_u32 v4, v2, 5, v4")
            e("s_lshl_b32 s3, s%d, 11\ns_add_u32 s3, s3, %d\nv_add_u32 v30, s3, v4" % (sTmp, XS[1]))
            e("v_lshlrev_b32 v35, 2, v2\nv_lshl_add_u32 v35, v3, 9, v35")
            items = [(b, tb) for b in range(2) for tb in range(2)]
            for k, (b, tb) in enumerate(items):
                a = acc(b, tb)
                for i in range(4): e("v_cvt_pk_bf16_f32 v%d, v%d, v%d" % (vKf + 4 * k + i, a + 2 * i, a + 2 * i + 1))
                for i in range(4): e("v_cvt_pk_bf16_f32 v%d, v%d, v%d" % (vPh + 4 * k + i, a + 8 + 2 * i, a + 9 + 2 * i))
                e("ds_write_b128 v30, %s offset:%d" % (vr(vPh + 4 * k), b * 4096 + tb * 1024))
                e("v_mfma_f32_32x32x16_bf16 %s, %s, %s, 0" % (vr(a, 16), vr(vWp + 4 * b), vr(vKf + 4 * k)))
            e("v_bfe_u32 v4, v1, 2, 2\nv_lshl_add_u32 v5, v3, 2, v4")
            e("v_bfe_u32 v6, v1, 1, 1\nv_bfe_u32 v7, v1, 4, 1\nv_lshl_or_b32 v8, v7, 1, v6\nv_lshrrev_b32 v9, 1, v5\nv_xor_b32 v8, v8, v9\nv_lshlrev_b32 v8, 4, v8")
            e("v_and_b32 v9, 1, v1\nv_lshl_add_u32 v8, v9, 3, v8\nv_lshl_add_u32 v8, v5, 6, v8\ns_lshl_b32 s3, s%d, 13\ns_add_u32 s3, s3, %d\nv_add_u32 v31, s3, v8" % (sWave, WS[1]))
            e("v_xor_b32 v9, v9, v3\nv_lshlrev_b32 v9, 4, v9\nv_lshl_add_u32 v9, v6, 3, v9\nv_lshl_add_u32 v9, v5, 5, v9\ns_add_u32 s3, s%d, %d\nv_add_u32 v32, s3, v9" % (sMx, XS[1]))
            e("v_add_u32 v33, -1, v7\nv_mul_u32_u24 v34, 0x3f80, v7\nv_lshl_or_b32 v34, v34, 16, v34")
            for k, (b, tb) in enumerate(items):
                ph = vPh + 16 + 8 * (k & 1)
                e.ext(self.softmax(acc(b, tb), T, ph))
                e("ds_write_b128 v29, %s offset:%d\nds_write_b128 v36, %s offset:%d" % (vr(ph), b * 8192 + tb * 2048, vr(ph + 4), b * 8192 + tb * 2048))
            l, w2 = merge(e.l, w2, 0, 1, ev); p.ext(l); e = P()
            self.poll_check(p, 0, 1)
            p("@wait lg:all\ns_barrier")
            self.stamp(p, "ksm")
            kv = vAcc + 128
            fa = lambda s: vAcc + 8 * s
            for s in range(8):
                for half in range(2): p("ds_read_b64_tr_b16 %s, v32 offset:%d" % (vr(fa(s) + 2 * half, 2), s * 512 + half * 256))
                for half in range(2): p("ds_read_b64_tr_b16 %s, v31 offset:%d" % (vr(fa(s) + 4 + 2 * half, 2), s * 1024 + half * 512))
                if s >= 2:
                    for i in range(4): p("v_and_or_b32 v%d, v%d, v33, v34" % (fa(s - 2) + i, fa(s - 2) + i))
                if s >= 3: p("v_mfma_f32_32x32x16_bf16 %s, %s, %s, %s" % (vr(kv, 16), vr(fa(s - 3)), vr(fa(s - 3) + 4), "0" if s == 3 else vr(kv, 16)))
            for s in (8, 9, 10):
                if s < 10:
                    for i in range(4): p("v_and_or_b32 v%d, v%d, v33, v34" % (fa(s - 2) + i, fa(s - 2) + i))
                p("v_mfma_f32_32x32x16_bf16 %s, %s, %s, %s" % (vr(kv, 16), vr(fa(s - 3)), vr(fa(s - 3) + 4), vr(kv, 16)))
            p("s_lshl_b32 s%d, s%d, 1\ns_add_u32 s%d, s%d, s%d" % (sTmp, sStr, sTmp, sTmp, sFfn)); self.hpos(p, sWa, sTmp, 0)
            p("s_add_u32 s%d, s%d, 1" % (sTmp, sTmp)); self.hpos(p, sWb, sTmp, 0)
            for i in range(8): p("buffer_atomic_add_f32 v%d, v35, %s, s%d offen offset:%d" % (kv + i, sr(sH), sM2r, (8 * (i >> 2) + (i & 3)) * 128), tag="kvat")
            p("s_mov_b32 exec_hi, 0\nbuffer_atomic_add_f32 v%d, v35, %s, s%d offen offset:2048" % (kv + 8, sr(sH), sM2r), tag="kvat")
            p("s_mov_b32 exec_hi, -1")
            for k, (b, tb) in enumerate(items):
                e.ext(self.gelu(acc(2 + b, tb), T, sWa if b == 0 else sWb, 1024 * tb))
                if k == o.get("kvflag_at", 2):
                    e("@wait vm:kvat\ns_barrier"); self.flag(e, sU, 8)
            l, w2 = merge(e.l, w2, 0, 1, ev); p.ext(l); e = P()
            self.stamp(p, "gelu")
            k = min(len(w2), o.get("w2_drain", 8))
            for c in w2[:k]: p.ext(c)
            w2 = w2[k:]
            p("@wait vm:hst\ns_barrier"); self.flag(p, sT, 16)
            self.stamp(p, "hflag")
            for c in w2: p.ext(c)
        else:
            e("s_lshl_b32 s%d, s%d, 10" % (sMq, sStr))
            e("s_mul_i32 s%d, s%d, 3\ns_add_u32 s%d, s%d, s%d" % (sTmp, sStr, sTmp, sTmp, sFfn))
            for b in range(1, 5):
                if b == 4: e("s_add_u32 s%d, s%d, 6" % (sTmp, sFfn))
                self.hpos(e, sWa, sTmp, 0)
                e("s_add_u32 s%d, s%d, s%d\ns_xor_b32 s%d, s%d, 1024\ns_add_u32 s%d, s%d, 1" % (sWa, sWa, sMq, sWb, sWa, sTmp, sTmp))
                e.ext(self.gelu(acc(b, 0), T, sWa, 0))
                if b < 4: e.ext(self.gelu(acc(b, 1), T, sWb, 0))
            self.stamp(e, "gelu")
            e.ext(self.wphi_read(vWp))
            items = [(b, tb) for b in range(2) for tb in range(2)]
            pa = lambda k: vAcc + 32 + 16 * k
            for k, (b, tb) in enumerate(items):
                a = acc(0, tb) + 8 * b
                for i in range(4): e("v_cvt_pk_bf16_f32 v%d, v%d, v%d" % (vKf + 4 * k + i, a + 2 * i, a + 2 * i + 1))
                e("v_mfma_f32_32x32x16_bf16 %s, %s, %s, 0" % (vr(pa(k), 16), vr(vWp + 4 * b), vr(vKf + 4 * k)))
            e("v_lshrrev_b32 v2, 3, v1\nv_and_b32 v3, 7, v1\nv_lshrrev_b32 v4, 4, v1\nv_xor_b32 v3, v3, v4\nv_lshlrev_b32 v3, 4, v3\nv_lshl_add_u32 v29, v2, 7, v3\nv_xor_b32 v30, 64, v29")
            e("v_mov_b32 v2, 0x%x\nv_cmp_gt_u32 vcc, 8, v1\nv_cndmask_b32 v35, v2, v29, vcc" % OOB)
            e("v_and_b32 v2, 31, v1\nv_min_u32 v2, 16, v2\nv_lshrrev_b32 v3, 5, v1\nv_lshlrev_b32 v3, 2, v3\nv_bfe_u32 v4, v2, 1, 3\nv_xor_b32 v3, v3, v4\nv_lshlrev_b32 v3, 4, v3\nv_lshl_add_u32 v3, v2, 7, v3")
            e("s_lshl_b32 s3, s%d, 13\ns_add_u32 s3, s3, %d\nv_add_u32 v31, s3, v3\nv_xor_b32 v32, 16, v31\nv_xor_b32 v33, 32, v31\nv_xor_b32 v34, 48, v31" % (sStr, WS[1]))
            for k, (b, tb) in enumerate(items):
                e.ext(self.softmax(pa(k), T, vPh + 8 * k))
                if k == o.get("hflag_at", 0):
                    e("@wait vm:hst\ns_barrier"); self.flag(e, sT, 16); self.stamp(e, "hflag")
            l, w2 = merge(e.l, w2, 0, 1, ev); p.ext(l); e = P()
            for c in w2: p.ext(c)
            self.stamp(p, "qsm")
            self.poll_issue(p, sU, 8); self.poll_check(p, 8, 16)
            p("s_barrier")
            self.stamp(p, "kvseen")
            p("s_lshl_b32 s3, s%d, 2\ns_add_u32 s3, s3, s%d\ns_lshl_b32 s3, s3, 12\ns_add_u32 s3, s3, 0x%x\ns_add_u32 m0, s%d, %d" % (sU, sWave, WS_KV, sMx, WS[1]))
            for j, v in enumerate((29, 30, 35)): p("buffer_load_dwordx4 v%d, %s, s3 offen offset:%d sc1 lds" % (v, sr(sH), 1024 * j), tag="kvz")
            p("s_lshl_b32 s%d, s%d, 2\ns_lshl_b32 s3, s%d, 1\ns_add_u32 s%d, s%d, s3" % (sTmp, sU, sStr, sTmp, sTmp))
            self.hpos(p, sWa, sTmp, 22); p("s_add_u32 s%d, s%d, s%d\ns_add_u32 s%d, s%d, 1" % (sWa, sWa, sMq, sTmp, sTmp))
            self.hpos(p, sWb, sTmp, 22); p("s_add_u32 s%d, s%d, s%d" % (sWb, sWb, sMq))
            p("@wait vm:kvz\ns_barrier")
            kz = vAcc
            for b in range(2):
                for q4 in range(4): p("ds_read_b128 %s, v%d offset:%d" % (vr(kz + 16 * b + 4 * q4), 31 + q4, 4096 * b))
            for b in range(2):
                for i in range(8): p("v_cvt_pk_bf16_f32 v%d, v%d, v%d" % (vKf + 8 * b + i, kz + 16 * b + 2 * i, kz + 16 * b + 2 * i + 1))
                for tb in range(2):
                    k = 2 * b + tb
                    p("v_mfma_f32_32x32x16_bf16 %s, %s, %s, 0" % (vr(pa(k), 16), vr(vKf + 8 * b), vr(vPh + 8 * k)))
                    p("v_mfma_f32_32x32x16_bf16 %s, %s, %s, %s" % (vr(pa(k), 16), vr(vKf + 8 * b + 4), vr(vPh + 8 * k + 4), vr(pa(k), 16)))
            for k, (b, tb) in enumerate(items):
                a = pa(k); so = sWa if b == 0 else sWb
                p("v_add_f32 v%d, 0x%x, v%d\nv_rcp_f32 v%d, v%d" % (a + 8, f2u(1e-6), a + 8, a + 8, a + 8))
                for i in range(4): p("v_pk_mul_f32 %s, %s, %s op_sel_hi:[1,0]" % (vr(a + 2 * i, 2), vr(a + 2 * i, 2), vr(a + 8, 2)))
                for i in range(4): p("v_cvt_pk_bf16_f32 v%d, v%d, v%d" % (a + 12 + i, a + 2 * i, a + 2 * i + 1))
                p("buffer_store_dwordx4 %s, v%d, %s, s%d offen sc1" % (vr(a + 12), vL16, sr(sH), so), tag="ost")
                if tb == 0: p("s_xor_b32 s%d, s%d, 1024" % (so, so))
            self.poll_issue(p, sTT, 16, 1)
            p("@wait vm:ost\ns_barrier"); self.flag(p, sT, 32)
            self.stamp(p, "oflag")
        if not B: self.poll_issue(p, sTT, 16, 1)
        p("s_lshl_b32 s3, s%d, 2\ns_add_u32 s3, s3, s%d\ns_mul_i32 s%d, s3, 61440" % (sTT, sWave, sHo))
        p("s_cmp_ge_u32 s%d, 2\ns_cselect_b32 s3, 0x%x, 0\nv_add_u32 v2, s3, v%d" % (sWave, OOB, vL16))
        p("v_and_b32 v3, 31, v1\nv_lshlrev_b32 v3, 2, v3\ns_lshl_b32 s%d, s%d, 8\ns_add_u32 s%d, s%d, 0x%x" % (sTmp, sTT, sTmp, sTmp, WS_G))
        self.poll_check(p, 16, 16)
        p("@wait lg:all\ns_barrier")
        self.stamp(p, "hseen")
        PF = o["pf"]; NR = 14
        hf = lambda st, tb: 16 + 8 * (st % NR) + 4 * tb
        a2 = lambda part, cb, tb: 128 + 64 * part + 32 * cb + 16 * tb
        def hload(st):
            q = P()
            for tb in range(2):
                q("buffer_load_dwordx4 %s, v%d, %s, s%d offen offset:%d sc1" % (vr(hf(st, tb)), 2 if st == 21 else vL16, sr(sH), sHo, (st & 1) * 2048 + tb * 1024))
            if st & 1: q("s_add_u32 s%d, s%d, 4096" % (sHo, sHo))
            return q
        for st in range(PF): p.ext(hload(st))
        p("buffer_load_dword v4, v3, %s, s%d offen sc1\nbuffer_load_dword v6, v3, %s, s%d offen offset:128 sc1" % (sr(sH), sTmp, sr(sH), sTmp))
        sc = P()
        sc("v_sub_f32 v8, 1.0, v4\nv_sub_f32 v10, 1.0, v6")
        for cb in range(2):
            for tb in range(2):
                for i in range(8): sc("v_pk_mul_f32 %s, %s, %s op_sel_hi:[1,0]" % (vr(a2(0, cb, tb) + 2 * i, 2), vr(a2(0, cb, tb) + 2 * i, 2), vr(8 + 2 * tb, 2)))
        sc("v_and_b32 v2, 31, v1\nv_lshrrev_b32 v3, 5, v1\nv_and_b32 v5, 7, v1\nv_xor_b32 v3, v3, v5\nv_lshlrev_b32 v3, 4, v3\nv_lshl_add_u32 v3, v2, 8, v3")
        sc("s_lshl_b32 s3, s%d, 14\nv_add_u32 v12, s3, v3\nv_xor_b32 v13, 32, v12\nv_xor_b32 v15, 64, v12\nv_xor_b32 v9, 0x60, v12" % sWave)
        sc("v_lshrrev_b32 v2, 3, v0\nv_and_b32 v3, 7, v2\nv_lshlrev_b32 v7, 1, v5\nv_xor_b32 v3, v3, v7\nv_lshlrev_b32 v3, 4, v3\nv_lshl_add_u32 v3, v2, 8, v3\nv_xor_b32 v7, 16, v3")
        sc("v_lshlrev_b32 v5, 4, v5\nv_lshl_add_u32 v5, v2, 10, v5")
        sc("s_lshl_b32 s%d, s%d, 16\ns_lshl_b32 s3, s%d, 7\ns_add_u32 s%d, s%d, s3\ns_add_u32 s%d, s%d, 32768" % (sWa, sTT, sCT, sWa, sWa, sWb, sWa))
        scl = sc.l
        for st in range(30):
            nx = st + PF
            if nx == 22 - 2: self.poll_issue(p, sTT, 32, 1)
            if nx == 22:
                self.poll_check(p, 32, 8); p("s_barrier"); self.stamp(p, "oseen")
            ld = hload(nx).l if nx < 30 else []
            part = 1 if st >= 22 else 0
            for cb in range(2):
                for tb in range(2):
                    a = a2(part, cb, tb)
                    p("v_mfma_f32_32x32x16_bf16 %s, %s, %s, %s" % (vr(a, 16), ar(8 * st + 4 * cb), vr(hf(st, tb)), "0" if st in (0, 22) else vr(a, 16)))
                    if ld: p.ext([ld.pop(0)])
                    if st >= 23:
                        p.ext(scl[:3]); scl = scl[3:]
            assert not ld
        p.ext(scl)
        self.stamp(p, "p2mfma")
        wa = [12, 13, 15, 9]
        for cb in range(2):
            for tb in range(2):
                a = a2(0, cb, tb); b_ = a2(1, cb, tb)
                for j in range(4):
                    for i in (2 * j, 2 * j + 1): p("v_pk_fma_f32 %s, %s, %s, %s op_sel_hi:[1,0,1]" % (vr(a + 2 * i, 2), vr(b_ + 2 * i, 2), vr(4 + 2 * tb, 2), vr(a + 2 * i, 2)))
                    p("ds_write_b128 v%d, %s offset:%d" % (wa[j], vr(a + 4 * j), tb * 8192 + cb * 128))
        p("@wait lg:all\ns_barrier")
        for hh in range(2):
            for w in range(4):
                for i in range(2): p("ds_read_b128 %s, v%d offset:%d" % (vr(16 + 32 * hh + 8 * w + 4 * i), 7 if i else 3, w * 16384 + hh * 8192))
        for hh in range(2):
            b0 = 16 + 32 * hh
            for i in range(4): p("v_pk_add_f32 %s, %s, %s" % (vr(b0 + 2 * i, 2), vr(b0 + 2 * i, 2), vr(b0 + 8 + 2 * i, 2)))
            for i in range(4): p("v_pk_add_f32 %s, %s, %s" % (vr(b0 + 16 + 2 * i, 2), vr(b0 + 16 + 2 * i, 2), vr(b0 + 24 + 2 * i, 2)))
            for i in range(4): p("v_pk_add_f32 %s, %s, %s" % (vr(b0 + 2 * i, 2), vr(b0 + 2 * i, 2), vr(b0 + 16 + 2 * i, 2)))
            for i in range(4): p("v_cvt_pk_bf16_f32 v%d, v%d, v%d" % (b0 + 8 + i, b0 + 2 * i, b0 + 2 * i + 1))
            p("buffer_store_dwordx4 %s, v5, %s, s%d offen" % (vr(b0 + 8), sr(sOut), sWb if hh else sWa))
        if o["stamps"]:
            p("@wait vm:all"); self.stamp(p, "end")
            p("s_waitcnt lgkmcnt(0)", raw=True)
            p("s_lshl_b32 s3, s2, 2\ns_add_u32 s3, s3, s%d\ns_lshl_b32 s3, s3, 6\ns_add_u32 s3, s3, 0x%x" % (sWave, WS_ST))
            p("v_mov_b32 v16, s94")
            for k in range(self.nst): p("v_mov_b32 v%d, s%d" % (17 + k, sStamp + 2 * k))
            p("v_lshlrev_b32 v2, 24, v1")
            for k in range(4): p("buffer_store_dwordx4 %s, v2, %s, s3 offen offset:%d" % (vr(16 + 4 * k), sr(sH), 16 * k))
        p("Lfin%s:" % nm)
        p("s_endpgm")
        return p
    def build(self):
        st = State(); stats = {}
        out = process(self.prologue().l, st, stats)
        stB = st.copy()
        out += process(self.path(False).l, st, stats); self.namesA = list(self.stnames)
        out += process(self.path(True).l, stB, stats); self.namesB = list(self.stnames)
        out.append("Lend:\ns_endpgm")
        self.stats = stats
        hdr = "; @launch grid=(256,1,1) block=(256,1,1) lds=163840\n"
        hdr += '.amdgcn_target "amdgcn-amd-amdhsa--gfx950"\n.text\n.globl %s\n.p2align 8\n.type %s,@function\n%s:\n' % (KNAME, KNAME, KNAME)
        tail = """
.section .rodata,"a"
.p2align 6
.amdhsa_kernel %s
  .amdhsa_next_free_vgpr 512
  .amdhsa_next_free_sgpr 102
  .amdhsa_accum_offset 256
  .amdhsa_group_segment_fixed_size 0
  .amdhsa_kernarg_size 96
  .amdhsa_user_sgpr_count 2
  .amdhsa_user_sgpr_kernarg_segment_ptr 1
  .amdhsa_system_sgpr_workgroup_id_x 1
  .amdhsa_float_denorm_mode_32 3
.end_amdhsa_kernel
""" % KNAME
        return hdr + "\n".join(out) + tail
if __name__ == "__main__":
    opts = {}
    for a in sys.argv[2:]:
        k, v = a.split("="); opts[k] = int(v) if v.lstrip("-").isdigit() else v
    g = Gen(**opts)
    open(sys.argv[1], "w").write(g.build())
    print("nops", g.stats)
```

```python
import sys, math, struct
from asmpass import Ins, State, process
KNAME = "gated_mix__linear_kernel_hedgehog__glu_gated_geglu__prompt_kernel"
def f2u(x): return struct.unpack("<I", struct.pack("<f", x))[0]
L2E = math.log2(math.e)
K1 = -2.0 * math.sqrt(2.0 / math.pi) * L2E
K2 = K1 * 0.044715
XS = [0, 16384, 32768]; WS = [49152, 86272, 123392]; MISC = 160512
WS_FL = 0x7C0000; FKV, FHD, FOD = 0, 128, 384
WS_G = 0x780000; WS_KV = 0x790000; WS_ST = 0x800000; WS_SIZE = 0x840000
OOB = 0x40000000
RING = [XS[2], WS[2], WS[2] + 16384, XS[0], WS[0], WS[0] + 16384]
RSET = [0, 1, 2, 0, 0, 1]; RBASE = [0, 65536, WS[2] + 16384]
sX, sW, sQ, sD, sO, sH, sG, sOut, sM, sM2 = 28, 32, 36, 40, 44, 48, 52, 56, 60, 64
(sWave, sT, sU, sFfn, sTT, sCT, sXo, sWa, sWb, sStr, sMx, sMw, sMq, sW2o, sM2r, sTmp, sTmp2, sExp, sHo, sCnt) = range(68, 88)
sL2E = 88
sK2 = 90
sPC = 92
sStamp = 4
def sr(b, n=4): return "s[%d:%d]" % (b, b + n - 1)
def vr(b, n=4): return "v[%d:%d]" % (b, b + n - 1)
def ar(b, n=4): return "a[%d:%d]" % (b, b + n - 1)
vTid, vLane = 0, 1
vT = 2
vFlag, vPoll, vOne, vPr = 10, 11, 12, 13
vL16 = 14; vDummy = 15
vXo = 16
vWo = 20
vXa = 29
vWa = 37
v2o = 46
vPoll8 = 51; vSign = 50; vK1 = 52
vFr = 56
vAcc = 112
class P:
    def __init__(self): self.l = []
    def __call__(self, s, tag=None, raw=False):
        for x in s.split("\n"):
            if x.strip(): self.l.append(Ins(x, tag, raw))
    def ext(self, o): self.l += o.l if isinstance(o, P) else o
def merge(main, side, start=0, per=1, every=1):
    out = []; k = 0
    for i, x in enumerate(main):
        out.append(x)
        if i >= start and (i - start) % every == every - 1:
            for _ in range(per):
                if k < len(side): out += side[k]; k += 1
    return out, side[k:]

class Gen:
    def __init__(self, **o):
        self.o = dict(stamps=False, p2map="4x8", pf=7, touch=False, codepf=True)
        self.o.update(o); self.nst = 0; self.nlab = 0; self.stnames = []
    def stamp(self, p, name):
        if self.o["stamps"]:
            p("s_memrealtime s[%d:%d]" % (sStamp + 2 * self.nst, sStamp + 2 * self.nst + 1), raw=True)
            self.nst += 1; self.stnames.append(name); assert self.nst <= 12
    def srd(self, p, d, ptr, size):
        p("s_mov_b32 s%d, s%d\ns_mov_b32 s%d, s%d\ns_mov_b32 s%d, 0x%x\ns_mov_b32 s%d, 0x20000" % (d, ptr, d + 1, ptr + 1, d + 2, size, d + 3))
    def prologue(self):
        p = P()
        if self.o["stamps"]: p("s_memrealtime s[94:95]", raw=True)
        p("s_load_dwordx16 s[4:19], s[0:1], 0\ns_load_dwordx8 s[20:27], s[0:1], 64")
        p("s_cmp_ge_u32 s2, 256\ns_cbranch_scc1 Lend")
        p("v_and_b32 v1, 63, v0\nv_lshrrev_b32 v2, 6, v0\nv_readfirstlane_b32 s%d, v2" % sWave)
        p("s_and_b32 s%d, s2, 7\ns_lshr_b32 s%d, s2, 3" % (sTmp, sTmp2))
        p("s_lshr_b32 s%d, s%d, 2\ns_lshl_b32 s%d, s%d, 3\ns_lshr_b32 s3, s%d, 2\ns_add_u32 s%d, s%d, s3" % (sT, sTmp, sT, sT, sTmp2, sT, sT))
        p("s_and_b32 s3, s%d, 3\ns_mul_i32 s%d, s3, 22\ns_lshl_b32 s%d, s3, 1\ns_bfe_u32 s3, s%d, 0x10001\ns_add_u32 s%d, s%d, s3" % (sTmp, sFfn, sU, sTmp2, sU, sU))
        if self.o["p2map"] == "4x8":
            p("s_lshl_b32 s%d, s%d, 2\ns_lshr_b32 s3, s%d, 3\ns_add_u32 s%d, s%d, s3\ns_and_b32 s%d, s%d, 7" % (sTT, sTmp, sTmp2, sTT, sTT, sCT, sTmp2))
        else:
            p("s_lshr_b32 s%d, s%d, 1\ns_lshl_b32 s%d, s%d, 3\ns_lshr_b32 s3, s%d, 2\ns_add_u32 s%d, s%d, s3" % (sTT, sTmp, sTT, sTT, sTmp2, sTT, sTT))
            p("s_and_b32 s%d, s%d, 1\ns_lshl_b32 s%d, s%d, 2\ns_and_b32 s3, s%d, 3\ns_add_u32 s%d, s%d, s3" % (sCT, sTmp, sCT, sCT, sTmp2, sCT, sCT))
        p("s_bitcmp1_b32 s%d, 0\ns_cbranch_scc1 LpathB" % sTmp2)
        return p
    def setup(self, B):
        p = P(); o = self.o
        nm = "B" if B else "A"
        if o["codepf"]:
            p("s_getpc_b64 s[%d:%d]" % (sPC, sPC + 1))
            p("Lpc%s:" % nm)
            p("v_lshlrev_b32 v2, 7, v0\nv_min_u32 v2, Lfin%s-Lpc%s, v2\nv_and_b32 v2, -4, v2" % (nm, nm))
            p("global_load_dword v%d, v2, s[%d:%d]" % (vDummy, sPC, sPC + 1))
        if B: p("s_and_b32 s3, s%d, 1\ns_mul_i32 s3, s3, 7\ns_add_u32 s%d, s%d, s3\ns_add_u32 s%d, s%d, 8" % (sU, sFfn, sFfn, sFfn, sFfn))
        else: p("s_and_b32 s3, s%d, 1\ns_lshl_b32 s3, s3, 2\ns_add_u32 s%d, s%d, s3" % (sU, sFfn, sFfn))
        p("s_lshl_b32 s%d, s%d, 17\ns_lshl_b32 s3, s%d, 15\ns_add_u32 s%d, s%d, s3" % (sXo, sT, sWave, sXo, sXo))
        p("s_lshl_b32 s%d, s%d, 12" % (sMx, sWave))
        p("v_lshrrev_b32 v2, 3, v1\nv_and_b32 v3, 7, v1\nv_lshrrev_b32 v4, 4, v1\nv_and_b32 v5, 1, v4")
        p("v_xor_b32 v6, v3, v4\nv_lshlrev_b32 v6, 4, v6\nv_lshl_add_u32 v%d, v2, 10, v6" % vXo)
        p("v_xor_b32 v6, 64, v%d\nv_add_u32 v%d, 7168, v6\nv_add_u32 v%d, 14336, v%d\nv_add_u32 v%d, 21504, v6" % (vXo, vXo + 1, vXo + 2, vXo, vXo + 3))
        p("v_lshlrev_b32 v6, 2, v5\nv_xor_b32 v6, v3, v6\nv_lshlrev_b32 v7, 4, v6")
        if not B:
            p("s_movk_i32 s3, 2752\ns_cmp_lt_u32 s%d, 2\ns_cselect_b32 s%d, 3072, s3" % (sWave, sStr))
            p("s_lshl_b32 s3, s%d, 7\ns_lshl_b32 s%d, s%d, 10\ns_add_u32 s3, s3, s%d\ns_add_u32 s3, s3, 1024\ns_lshl_b32 s%d, s%d, 5" % (sU, sTmp, sWave, sTmp, sTmp, sFfn))
            p("s_cmp_lt_u32 s%d, 2\ns_cselect_b32 s%d, s3, s%d" % (sWave, sWa, sTmp))
            p("s_lshl_b32 s3, s%d, 5\ns_add_u32 s%d, s%d, s3" % (sStr, sWb, sWa))
            p("s_and_b32 s3, s%d, 1\ns_lshl_b32 s3, s3, 2" % sWave)
            p("v_lshlrev_b32 v6, 1, v5\nv_xor_b32 v6, v3, v6\nv_xor_b32 v6, s3, v6\nv_lshlrev_b32 v6, 4, v6")
            p("v_mad_u32_u24 v%d, v2, s%d, v6" % (vWo, sStr))
            p("s_lshl_b32 s3, s%d, 3\ns_sub_u32 s3, s3, 1024" % sStr)
            for j in range(1, 4): p("v_add_u32 v%d, s3, v%d" % (vWo + j, vWo + j - 1))
            p("s_lshl_b32 s%d, s%d, 6\ns_lshl_b32 s%d, s%d, 13" % (sStr, sStr, sMw, sWave))
        else:
            p("s_mul_i32 s%d, s%d, %d\ns_lshl_b32 s3, s%d, 7\ns_add_u32 s%d, s%d, s3" % (sWb, sWave, 16 * 3072, sU, sWb, sWb))
            p("s_and_b32 s%d, s%d, 1\ns_mul_i32 s%d, s%d, %d\ns_lshl_b32 s3, s%d, 5\ns_add_u32 s%d, s%d, s3" % (sTmp, sWave, sWa, sTmp, 32 * 2752, sFfn, sWa, sWa))
            p("s_mul_i32 s%d, s%d, 7168\ns_lshr_b32 s3, s%d, 1\ns_mul_i32 s3, s3, 14464\ns_add_u32 s%d, s%d, s3\ns_add_u32 s%d, s%d, 8192" % (sMw, sTmp, sWave, sMw, sMw, sMw, sMw))
            p("s_lshl_b32 s%d, s%d, 11" % (sMq, sWave))
            p("v_mul_u32_u24 v6, 3072, v2\nv_add_u32 v%d, v6, v7\nv_add_u32 v%d, %d, v%d" % (vWo, vWo + 1, 8 * 3072 - 1024, vWo))
            for j in range(7):
                r = vWo + 2 + j
                p("v_add_u32 v6, %d, v1\nv_mul_u32_u24 v8, 4682, v6\nv_lshrrev_b32 v8, 16, v8" % (64 * j))
                p("v_mul_u32_u24 v8, %d, v8\nv_lshl_add_u32 v%d, v6, 4, v8" % (2752 - 224, r))
                if j & 3: p("v_subrev_u32 v%d, %d, v%d" % (r, 1024 * (j & 3), r))
        self.srd(p, sX, 4, 2048 * 1024)
        if not B:
            p("s_cmp_eq_u32 s%d, 2\ns_cselect_b64 s[%d:%d], s[14:15], s[16:17]" % (sWave, sW, sW + 1))
            p("s_cmp_lt_u32 s%d, 2\ns_cselect_b64 s[%d:%d], s[6:7], s[%d:%d]\ns_cselect_b32 s%d, 0x%x, 0" % (sWave, sW, sW + 1, sW, sW + 1, sW + 2, 512 * 3072 - 512 * 2752))
            p("s_add_u32 s%d, s%d, 0x%x\ns_mov_b32 s%d, 0x20000" % (sW + 2, sW + 2, 512 * 2752, sW + 3))
        else:
            p("s_cmp_lt_u32 s%d, 2\ns_cselect_b64 s[%d:%d], s[14:15], s[16:17]" % (sWave, sW, sW + 1))
            p("s_mov_b32 s%d, 0x%x\ns_mov_b32 s%d, 0x20000" % (sW + 2, 512 * 2752, sW + 3))
            self.srd(p, sQ, 6, 512 * 3072)
        q = P()
        q("v_lshl_add_u32 v%d, v2, 10, v7\nv_add_u32 v%d, 7168, v%d\nv_add_u32 v%d, %d, v%d\nv_add_u32 v%d, %d, v%d" % (v2o, v2o + 1, v2o, v2o + 2, 65536 - 2048, v2o, v2o + 3, 65536 - 2048, v2o + 1))
        self.srd(q, sD, 18, 1376 * 1024); self.srd(q, sO, 10, 512 * 1024); self.srd(q, sH, 26, WS_SIZE)
        self.srd(q, sG, 24, 256); self.srd(q, sOut, 22, 2048 * 1024); self.srd(q, sM, 8, 16384); self.srd(q, sM2, 20, 1024)
        q("v_lshlrev_b32 v%d, 4, v1" % vL16)
        q("v_mov_b32 v%d, 1\nv_mov_b32 v6, 0x%x\nv_cmp_eq_u32 vcc, 0, v0\nv_cndmask_b32 v%d, v6, 0, vcc" % (vOne, OOB, vFlag))
        q("v_lshlrev_b32 v7, 7, v0\nv_cmp_gt_u32 vcc, 16, v0\nv_cndmask_b32 v%d, v6, v7, vcc\nv_cmp_gt_u32 vcc, 8, v0\nv_cndmask_b32 v%d, v6, v7, vcc" % (vPoll, vPoll8))
        q("s_mov_b32 s%d, 0x%x\ns_mov_b32 s%d, 0x%x\ns_mov_b32 s%d, 0x%x\ns_mov_b32 s%d, 0x%x\nv_mov_b32 v%d, 0x%x" % (sL2E, f2u(L2E), sL2E + 1, f2u(L2E), sK2, f2u(K2), sK2 + 1, f2u(K2), vK1, f2u(K1)))
        q("v_bfe_u32 v6, v1, 2, 1\nv_mul_u32_u24 v6, 0x8000, v6\nv_lshl_or_b32 v%d, v6, 16, v6" % vSign)
        q("s_lshl_b32 s%d, s%d, 14\ns_lshl_b32 s3, s%d, 7\ns_add_u32 s%d, s%d, s3" % (sW2o, sWave, sCT, sW2o, sW2o))
        q("v_and_b32 v2, 31, v1\nv_lshrrev_b32 v3, 5, v1\nv_bfe_u32 v6, v2, 1, 3\nv_xor_b32 v6, v3, v6\nv_lshlrev_b32 v6, 4, v6\nv_lshl_add_u32 v6, v2, 7, v6")
        if B: q("s_lshl_b32 s3, s%d, 12" % sWave)
        else: q("s_lshr_b32 s3, s%d, 1\ns_lshl_b32 s3, s3, 13" % sWave)
        q("v_add_u32 v%d, s3, v6" % vXa)
        for s in range(1, 4): q("v_xor_b32 v%d, %d, v%d" % (vXa + s, s << 5, vXa))
        if B:
            for s in range(4): q("v_xor_b32 v%d, 0x1000, v%d" % (vXa + 4 + s, vXa + s))
        q("v_bfe_u32 v4, v1, 2, 2\nv_lshrrev_b32 v6, 1, v4\nv_and_b32 v7, 3, v1\nv_lshlrev_b32 v7, 3, v7\nv_lshl_add_u32 v8, v3, 3, v4")
        q("s_and_b32 s%d, s%d, 1\ns_lshl_b32 s3, s%d, 1" % (sTmp, sWave, sTmp))
        if not B:
            q("v_lshl_or_b32 v9, v5, 1, v6\nv_xor_b32 v9, s3, v9\nv_lshl_add_u32 v9, v9, 5, v7\nv_lshl_add_u32 v9, v8, 7, v9\nv_lshl_add_u32 v9, v5, 13, v9")
            for sl in range(3): q("v_add_u32 v%d, %d, v9\nv_xor_b32 v%d, 32, v%d" % (vWa + 3 * sl, WS[sl], vWa + 3 * sl + 1, vWa + 3 * sl))
        else:
            q("v_lshl_or_b32 v9, v6, 1, v5\nv_xor_b32 v9, s3, v9\nv_lshl_add_u32 v9, v9, 5, v7\nv_lshl_add_u32 v9, v8, 7, v9")
            for sl in range(3): q("v_add_u32 v%d, %d, v9" % (vWa + 3 * sl, WS[sl]))
            q("v_mul_u32_u24 v9, 224, v8\nv_add_u32 v9, v9, v7\nv_mul_u32_u24 v8, 14464, v5\nv_add_u32 v9, v9, v8\ns_mul_i32 s3, s%d, 96" % sTmp)
            for sl in range(3): q("v_add_u32 v%d, %d, v9\nv_add_u32 v%d, s3, v%d\nv_add_u32 v%d, 192, v%d" % (vWa + 3 * sl + 2, WS[sl] + 8192, vWa + 3 * sl + 1, vWa + 3 * sl + 2, vWa + 3 * sl + 2, vWa + 3 * sl + 2))
        return p, q
    def slab_dma(self, B, sg):
        sl = sg % 3; tag = "slab%d" % sg; ch = []
        def dma(pre, v, srd, so, imm, post=""):
            p = P()
            if pre: p(pre)
            p("buffer_load_dwordx4 v%d, %s, s%d offen offset:%d lds" % (v, sr(srd), so, imm), tag=tag)
            if post: p(post)
            ch.append(p.l)
        for j in range(4):
            dma("s_add_u32 m0, s%d, %d" % (sMx, XS[sl]) if j == 0 else "", vXo + j, sX, sXo, 1024 * j, "s_add_u32 s%d, s%d, 128" % (sXo, sXo) if j == 3 else "")
        if not B:
            for j in range(8):
                so = sWa if j < 4 else sWb
                dma("s_add_u32 m0, s%d, %d" % (sMw, WS[sl] + 1024 * j) if j % 4 == 0 else "", vWo + j % 4, sW, so, 1024 * (j % 4), "s_add_u32 s%d, s%d, s%d" % (so, so, sStr) if j % 4 == 3 else "")
        else:
            for j in range(2):
                dma("s_add_u32 m0, s%d, %d" % (sMq, WS[sl]) if j == 0 else "", vWo + j, sQ, sWb, 1024 * j, "s_add_u32 s%d, s%d, %d" % (sWb, sWb, 64 * 3072) if j == 1 else "")
            for j in range(7):
                dma("s_add_u32 m0, s%d, %d" % (sMw, WS[sl] + 1024 * j) if j % 4 == 0 else "", vWo + 2 + j, sW, sWa, 1024 * (j % 4), "s_add_u32 s%d, s%d, %d" % (sWa, sWa, 64 * 2752) if j == 6 else "")
        return ch
    def w2_dma(self, i):
        ch = []
        for j in range(4):
            p = P()
            if j == 0:
                if i >= 6: p("@wait lg:w2r%d" % (i - 6))
                p("s_add_u32 m0, s%d, %d" % (sMx, RING[i % 6]))
            p("buffer_load_dwordx4 v%d, %s, s%d offen offset:%d lds" % (v2o + j, sr(sD if i < 11 else sO), sW2o, 1024 * j), tag="w2d%d" % i)
            if j == 3:
                if i == 10: p("s_sub_u32 s%d, s%d, %d" % (sW2o, sW2o, 10 * 131072))
                else: p("s_add_u32 s%d, s%d, %d" % (sW2o, sW2o, 131072))
            ch.append(p.l)
        return ch
    def w2_reads(self, i, va):
        ch = []
        rs = RSET[i % 6]; off = RING[i % 6] - RBASE[rs]
        for st in range(2):
            for cb in range(2):
                p = P()
                if st == 0 and cb == 0: p("@wait vm:w2d%d" % i)
                for half in range(2):
                    d = 8 * (2 * i + st) + 4 * cb + 2 * half
                    p("ds_read_b64_tr_b16 %s, v%d offset:%d" % (ar(d, 2), va + 2 * rs + cb, off + st * 2048 + half * 1024), tag="w2r%d" % i)
                ch.append(p.l)
        return ch
    def w2_addr(self, va):
        p = P()
        p("v_bfe_u32 v2, v1, 2, 2\nv_lshrrev_b32 v3, 5, v1\nv_lshl_add_u32 v3, v3, 2, v2\nv_and_b32 v2, 2, v2\nv_bfe_u32 v4, v1, 4, 1\nv_or_b32 v2, v2, v4")
        p("v_and_b32 v4, 3, v1\nv_lshlrev_b32 v4, 3, v4\nv_lshl_add_u32 v4, v2, 5, v4\nv_lshl_add_u32 v4, v3, 7, v4\nv_add_u32 v%d, s%d, v4\nv_xor_b32 v%d, 64, v%d" % (va, sMx, va + 1, va))
        for k in (1, 2): p("v_add_u32 v%d, %d, v%d\nv_add_u32 v%d, %d, v%d" % (va + 2 * k, RBASE[k], va, va + 2 * k + 1, RBASE[k], va + 1))
        return p
    def flag(self, p, kind, B):
        if kind == "kv": p("s_lshl_b32 s3, s%d, 4\ns_add_u32 s3, s3, s%d" % (sU, sT)); base = FKV
        elif kind == "h": p("s_lshl_b32 s3, s%d, 3\ns_add_u32 s3, s3, s%d\ns_lshl_b32 s3, s3, 1" % (sT, sU)); base = FHD + (1 if B else 0)
        else: p("s_lshl_b32 s3, s%d, 3\ns_add_u32 s3, s3, s%d" % (sT, sU)); base = FOD
        p("s_lshl_b32 s3, s3, 7\ns_add_u32 s3, s3, 0x%x" % (WS_FL + base * 128))
        p("buffer_store_dword v%d, v%d, %s, s3 offen sc1" % (vOne, vFlag, sr(sH)))
    def poll_ins(self, kind, v8):
        if kind == "init": return "buffer_load_dword v%d, v%d, %s, 0 offen sc1" % (vPr, vDummy, sr(sG))
        return "buffer_load_dword v%d, v%d, %s, s%d offen sc1" % (vPr, v8 if kind == "o" else vPoll, sr(sH), sCnt)
    def poll_issue(self, p, kind, v8=vPoll8):
        if kind == "init": p("v_lshrrev_b32 v%d, 5, v%d" % (vDummy, vPoll8))
        elif kind == "kv": p("s_lshl_b32 s%d, s%d, 11\ns_add_u32 s%d, s%d, 0x%x" % (sCnt, sU, sCnt, sCnt, WS_FL + FKV * 128))
        elif kind == "h": p("s_lshr_b32 s%d, s%d, 1\ns_lshl_b32 s%d, s%d, 11\ns_add_u32 s%d, s%d, 0x%x" % (sCnt, sTT, sCnt, sCnt, sCnt, sCnt, WS_FL + FHD * 128))
        else: p("s_lshr_b32 s%d, s%d, 1\ns_lshl_b32 s%d, s%d, 10\ns_add_u32 s%d, s%d, 0x%x" % (sCnt, sTT, sCnt, sCnt, sCnt, sCnt, WS_FL + FOD * 128))
        p(self.poll_ins(kind, v8))
    def poll_check(self, p, kind, v8=vPoll8):
        k = self.nlab; self.nlab += 1
        p("s_cmp_eq_u32 s%d, 0\ns_cselect_b32 s%d, 0x%x, 0" % (sWave, sExp, 0xff if kind in ("init", "o") else 0xffff))
        p("v_cmp_eq_u32 vcc, 1, v%d\ns_nop 1\ns_and_b32 s3, vcc_lo, s%d\ns_cmp_eq_u32 s3, s%d\ns_cbranch_scc1 Lok%d" % (vPr, sExp, sExp, k))
        p("s_mov_b32 s%d, 0\nLsp%d:\ns_sleep %d\n%s\ns_waitcnt vmcnt(0)" % (sTmp2, k, self.o.get("sleep", 2), self.poll_ins(kind, v8)), raw=True)
        p("v_cmp_eq_u32 vcc, 1, v%d\ns_add_u32 s%d, s%d, 1\ns_nop 0\ns_and_b32 s3, vcc_lo, s%d\ns_cmp_eq_u32 s3, s%d\ns_cbranch_scc1 Lok%d\ns_cmp_lt_u32 s%d, 0x8000\ns_cbranch_scc1 Lsp%d\nLok%d:" % (vPr, sTmp2, sTmp2, sExp, sExp, k, sTmp2, k, k), raw=True)
    def gate_job(self, B):
        ld = P(); c = P()
        ld("s_lshl_b32 s3, s%d, 4\ns_lshl_b32 s%d, s%d, 1\ns_add_u32 s3, s3, s%d\ns_add_u32 s3, s3, %d" % (sT, sTmp, sU, sTmp, 1 if B else 0))
        ld("s_lshl_b32 s3, s3, 2\ns_add_u32 s3, s3, s%d\ns_lshl_b32 s%d, s3, 3\ns_lshl_b32 s3, s3, 11" % (sWave, sHo))
        ld("buffer_load_dwordx4 a[240:243], v%d, %s, s3 offen\nbuffer_load_dwordx4 a[244:247], v%d, %s, s3 offen offset:1024" % (vL16, sr(sX), vL16, sr(sX)))
        ld("buffer_load_dwordx4 a[248:251], v%d, %s, 0 offen" % (vL16, sr(sM2)))
        for i in range(4):
            c("v_accvgpr_read_b32 v4, a%d\nv_accvgpr_read_b32 v5, a%d\nv_accvgpr_read_b32 v6, a%d" % (240 + i, 244 + i, 248 + i))
            c("v_lshlrev_b32 v7, 16, v4\nv_lshlrev_b32 v8, 16, v5\nv_lshlrev_b32 v9, 16, v6")
            if i == 0: c("v_mul_f32 v2, v7, v9\nv_mul_f32 v3, v8, v9")
            else: c("v_fmac_f32 v2, v7, v9\nv_fmac_f32 v3, v8, v9")
            c("v_and_b32 v4, 0xffff0000, v4\nv_and_b32 v5, 0xffff0000, v5\nv_and_b32 v6, 0xffff0000, v6")
            c("v_fmac_f32 v2, v4, v6\nv_fmac_f32 v3, v5, v6")
        c("v_permlane32_swap_b32 v2, v3\nv_add_f32 v2, v2, v3")
        for r in (8, 4, 2, 1): c("v_add_f32_dpp v2, v2, v2 row_ror:%d row_mask:0xf bank_mask:0xf" % r)
        c("v_mov_b32 v3, v2\nv_permlane16_swap_b32 v2, v3\nv_add_f32 v2, v2, v3")
        c("v_mul_f32 v2, 0x%x, v2\nv_exp_f32 v2, v2\nv_add_f32 v2, 1.0, v2\nv_rcp_f32 v2, v2" % f2u(-L2E))
        c("v_and_b32 v3, 31, v1\nv_lshlrev_b32 v3, 25, v3\nv_lshrrev_b32 v4, 3, v1\nv_or_b32 v3, v3, v4")
        c("s_add_u32 s3, s%d, 0x%x" % (sHo, WS_G))
        c("buffer_store_dword v2, v3, %s, s3 offen sc1" % sr(sH), tag="hst")
        return ld, c
    def wphi_load(self):
        p = P()
        p("s_and_b32 s3, s%d, 1\ns_lshl_b32 s3, s3, 10\ns_add_u32 m0, s3, %d\ns_lshl_b32 s%d, s%d, 11\ns_add_u32 s3, s3, s%d" % (sWave, MISC, sTmp, sU, sTmp))
        p("buffer_load_dwordx4 v%d, %s, s3 offen lds" % (vL16, sr(sM)), tag="wphi")
        return p
    def wphi_read(self, vd):
        p = P()
        p("v_bfe_u32 v2, v1, 2, 2\nv_lshrrev_b32 v3, 5, v1\nv_lshl_add_u32 v3, v3, 2, v2\nv_bfe_u32 v2, v1, 1, 1\nv_and_b32 v4, 16, v1\nv_lshl_add_u32 v4, v2, 3, v4\nv_lshl_add_u32 v4, v3, 5, v4")
        p("s_and_b32 s3, s%d, 1\ns_lshl_b32 s3, s3, 10\ns_add_u32 s3, s3, %d\nv_add_u32 v4, s3, v4" % (sWave, MISC))
        p("@wait vm:wphi")
        for b in range(2):
            for half in range(2): p("ds_read_b64_tr_b16 %s, v4 offset:%d" % (vr(vd + 4 * b + 2 * half, 2), b * 512 + half * 256))
        for i in range(8): p("v_xor_b32 v%d, v%d, v%d" % (vd + i, vd + i, vSign))
        return p
    def softmax(self, Pr, T, out):
        p = P()
        for k in range(5): p("v_max3_f32 v%d, v%d, v%d, v%d" % (T + k, Pr + 3 * k, Pr + 3 * k + 1, Pr + 3 * k + 2))
        p("v_max3_f32 v%d, v%d, v%d, v%d\nv_max3_f32 v%d, v%d, v%d, v%d\nv_max_f32 v%d, v%d, v%d" % (T, T, T + 1, Pr + 15, T + 2, T + 2, T + 3, T + 4, T, T, T + 2))
        p("v_mul_f32 v%d, 0x%x, v%d" % (T, f2u(-L2E), T))
        for k in range(8): p("v_pk_fma_f32 %s, %s, %s, %s op_sel_hi:[1,0,0]" % (vr(Pr + 2 * k, 2), vr(Pr + 2 * k, 2), sr(sL2E, 2), vr(T, 2)))
        for k in range(16): p("v_exp_f32 v%d, v%d" % (Pr + k, Pr + k))
        for k in range(4): p("v_pk_add_f32 %s, %s, %s" % (vr(T + 2 * k, 2), vr(Pr + 4 * k, 2), vr(Pr + 4 * k + 2, 2)))
        p("v_pk_add_f32 %s, %s, %s\nv_pk_add_f32 %s, %s, %s\nv_pk_add_f32 %s, %s, %s" % (vr(T, 2), vr(T, 2), vr(T + 2, 2), vr(T + 4, 2), vr(T + 4, 2), vr(T + 6, 2), vr(T, 2), vr(T, 2), vr(T + 4, 2)))
        p("v_add_f32 v%d, v%d, v%d\nv_rcp_f32 v%d, v%d" % (T, T, T + 1, T, T))
        for k in range(8): p("v_pk_mul_f32 %s, %s, %s op_sel_hi:[1,0]" % (vr(Pr + 2 * k, 2), vr(Pr + 2 * k, 2), vr(T, 2)))
        for k in range(8): p("v_cvt_pk_bf16_f32 v%d, v%d, v%d" % (out + k, Pr + 2 * k, Pr + 2 * k + 1))
        return p
    def gelu(self, a, T, soff, imm):
        p = P()
        for k in range(4): p("v_pk_mul_f32 %s, %s, %s" % (vr(T + 2 * k, 2), vr(a + 2 * k, 2), vr(a + 2 * k, 2)))
        for k in range(4): p("v_pk_fma_f32 %s, %s, %s, %s op_sel_hi:[1,0,0]" % (vr(T + 2 * k, 2), vr(T + 2 * k, 2), sr(sK2, 2), vr(vK1, 2)))
        for k in range(4): p("v_pk_mul_f32 %s, %s, %s" % (vr(T + 2 * k, 2), vr(T + 2 * k, 2), vr(a + 2 * k, 2)))
        for k in range(8): p("v_exp_f32 v%d, v%d" % (T + k, T + k))
        for k in range(4): p("v_pk_mul_f32 %s, %s, %s" % (vr(a + 2 * k, 2), vr(a + 2 * k, 2), vr(a + 8 + 2 * k, 2)))
        for k in range(4): p("v_pk_add_f32 %s, %s, 1.0 op_sel_hi:[1,0]" % (vr(T + 2 * k, 2), vr(T + 2 * k, 2)))
        for k in range(8): p("v_rcp_f32 v%d, v%d" % (T + k, T + k))
        for k in range(4): p("v_pk_mul_f32 %s, %s, %s" % (vr(a + 2 * k, 2), vr(a + 2 * k, 2), vr(T + 2 * k, 2)))
        for k in range(4): p("v_cvt_pk_bf16_f32 v%d, v%d, v%d" % (a + 8 + k, a + 2 * k, a + 2 * k + 1))
        p("buffer_store_dwordx4 %s, v%d, %s, s%d offen offset:%d sc1" % (vr(a + 8), vL16, sr(sH), soff, imm), tag="hst")
        return p
    def hpos(self, p, dst, ksreg, step0):
        p("s_and_b32 s3, s%d, 3\ns_mul_i32 s3, s3, 30\ns_lshr_b32 s%d, s%d, 2\ns_add_u32 s3, s3, s%d" % (ksreg, dst, ksreg, dst))
        if step0: p("s_add_u32 s3, s3, %d" % step0)
        p("s_lshl_b32 s3, s3, 11\ns_add_u32 s%d, s3, s%d" % (dst, sHo))
    def path(self, B):
        o = self.o; p = P(); nm = "B" if B else "A"
        self.nst = 0; self.stnames = []
        if B: p("LpathB:")
        s1, s2 = self.setup(B)
        p.ext(s1)
        nb = 5 if B else 4; nd = 13 if B else 12
        fx = lambda ps, tb: vFr + 28 * ps + 4 * tb
        fw = lambda ps, b: vFr + 28 * ps + 8 + 4 * b
        acc = lambda b, tb: vAcc + 16 * (2 * b + tb)
        def reads(sg, s):
            sl = sg % 3; ps = s & 1; r = []
            def rx(tb):
                if B: r.append([Ins("ds_read_b128 %s, v%d offset:%d" % (vr(fx(ps, tb)), vXa + 4 * tb + s, XS[sl]))])
                else: r.append([Ins("ds_read_b128 %s, v%d offset:%d" % (vr(fx(ps, tb)), vXa + s, XS[sl] + 4096 * tb))])
            def rw(b):
                for half in range(2):
                    if not B: va, off = vWa + 3 * sl + (b & 1), s * 2048 + half * 512 + (b >> 1) * 16384
                    elif b == 0: va, off = vWa + 3 * sl, s * 2048 + half * 512
                    elif b < 4: va, off = vWa + 3 * sl + 1, s * 3584 + half * 896 + (b - 1) * 32
                    else: va, off = vWa + 3 * sl + 2, s * 3584 + half * 896
                    r.append([Ins("ds_read_b64_tr_b16 %s, v%d offset:%d" % (vr(fw(ps, b) + 2 * half, 2), va, off))])
            rx(0); rw(0); rx(1)
            for b in range(1, nb): rw(b)
            return r
        dq = self.slab_dma(B, 0) + self.slab_dma(B, 1) + self.slab_dma(B, 2)
        npre = nd + o.get("pre1", 6)
        for c in dq[:nd]: p.ext(c)
        self.stamp(p, "issued0")
        p.ext(s2)
        if not B:
            p("s_cmp_eq_u32 s%d, 0\ns_cselect_b32 s%d, 0, 0x%x" % (sT, sTmp, OOB))
            p("s_lshl_b32 s3, s%d, 2\ns_add_u32 s3, s3, s%d\ns_lshl_b32 s3, s3, 12\ns_add_u32 s%d, s3, 0x%x\ns_add_u32 s3, s%d, s%d" % (sU, sWave, sM2r, WS_KV, sM2r, sTmp))
            for k in range(4): p("v_mov_b32 v%d, 0" % (vAcc + 128 + k))
            for k in range(3): p("buffer_store_dwordx4 %s, v%d, %s, s3 offen offset:%d sc1" % (vr(vAcc + 128), vL16, sr(sH), 1024 * k), tag="zst")
            p("s_lshl_b32 s3, s%d, 13\ns_add_u32 s3, s3, s%d\ns_add_u32 s3, s3, 0x%x\ns_lshl_b32 s%d, s%d, 26\ns_add_u32 s3, s3, s%d\nv_lshlrev_b32 v2, 7, v1" % (sU, sTmp, WS_FL, sTmp, sWave, sTmp))
            p("buffer_store_dword v%d, v2, %s, s3 offen sc1" % (vAcc + 128, sr(sH)), tag="zst")
        for c in dq[nd:npre]: p.ext(c)
        dq = dq[npre:]
        p("@wait vm:slab0\ns_barrier")
        self.stamp(p, "slab0")
        for c in reads(0, 0): p.ext(c)
        gl, gc = self.gate_job(B)
        v2a = vWo
        side = {}
        def addside(sg, s, pp, n=1):
            l = pp.l; side.setdefault((sg, s), [])
            side[(sg, s)] += [l[i:i + n] for i in range(0, len(l), n)]
        addside(1, 0, gl, 20)
        if not B:
            z = P(); z("s_cmp_eq_u32 s%d, 0\ns_cselect_b32 s%d, 0, 0x%x\ns_lshl_b32 s3, s%d, 2\ns_add_u32 s3, s3, s%d" % (sT, sTmp, OOB, sU, sTmp))
            z("buffer_store_dword v%d, v%d, %s, s3 offen sc1" % (vOne, vFlag, sr(sG)))
            addside(1, 2, z, 20)
        z = P(); self.poll_issue(z, "init"); addside(6, 0, z, 20)
        n = len(gc.l); q = (n + 7) // 8
        for k in range(8):
            z = P(); z.l = gc.l[k * q:(k + 1) * q]; addside(3 + k // 4, k % 4, z, 2)
        addside(6, 1, self.w2_addr(v2a), 2)
        for sg in range(8):
            for s in range(4):
                ps = s & 1
                if s == 3:
                    if sg == 7: self.poll_check(p, "init")
                    p("@wait lg:all vm:slab%d%s\ns_barrier" % (sg + 1, " vm:zst" if sg == 0 else ""))
                    if sg + 3 < 8: dq += self.slab_dma(B, sg + 3) + ([self.wphi_load().l] if sg == 1 else [])
                    elif sg == 5: dq += self.w2_dma(0) + self.w2_dma(1) + self.w2_dma(2)
                    elif sg == 6: dq += self.w2_dma(3) + self.w2_dma(4) + self.w2_dma(5)
                else: p("@wait lg:all")
                rd = reads(sg, s + 1) if s < 3 else (reads(sg + 1, 0) if sg < 7 else [])
                left = (3 - s) if s < 3 else 4
                nq = -(-len(dq) // left)
                ex = list(side.get((sg, s), []))
                mm = [(b, tb) for b in range(4) for tb in range(2)] + ([(4, 0)] if B else [])
                for gi, (b, tb) in enumerate(mm):
                    a = acc(b, tb)
                    p("v_mfma_f32_32x32x16_bf16 %s, %s, %s, %s" % (vr(a, 16), vr(fw(ps, b)), vr(fx(ps, tb)), "0" if (sg == 0 and s == 0) else vr(a, 16)))
                    for _ in range(2):
                        if rd: p.ext(rd.pop(0))
                    rem = len(mm) - gi
                    if nq >= rem and dq:
                        p.ext(dq.pop(0)); nq -= 1
                    k = -(-len(ex) // rem)
                    for _ in range(k): p.ext(ex.pop(0))
                while nq > 0 and dq: p.ext(dq.pop(0)); nq -= 1
                assert not rd and not ex
        assert not dq
        self.stamp(p, "gemm")
        w2 = []
        for i in range(15):
            w2 += self.w2_reads(i, v2a)
            if i + 6 < 15: w2 += self.w2_dma(i + 6)
        T = 2; vWp = vFr; vKf = vFr + 8; vPh = vFr + 24
        e = P()
        e("s_lshl_b32 s3, s%d, 1\ns_lshr_b32 s%d, s%d, 1\ns_add_u32 s3, s3, s%d\ns_mul_i32 s%d, s3, 245760" % (sT, sTmp, sWave, sTmp, sHo))
        e("s_and_b32 s%d, s%d, 1" % (sStr, sWave))
        ev = o.get("ev", 6)
        if not B:
            e.ext(self.wphi_read(vWp))
            vV = vXa
            e("v_and_b32 v2, 31, v1\nv_lshrrev_b32 v3, 5, v1\nv_bfe_u32 v4, v1, 1, 2\nv_lshlrev_b32 v5, 1, v3\nv_xor_b32 v4, v4, v5\nv_lshlrev_b32 v4, 4, v4\nv_lshl_add_u32 v4, v2, 6, v4")
            e("s_lshr_b32 s%d, s%d, 1\ns_lshl_b32 s3, s%d, 2\ns_add_u32 s%d, s%d, s3" % (sTmp, sWave, sStr, sTmp, sTmp))
            e("s_lshl_b32 s3, s%d, 12\ns_add_u32 s3, s3, %d\nv_add_u32 v29, s3, v4\nv_xor_b32 v36, 16, v29" % (sTmp, WS[1]))
            e("v_bfe_u32 v4, v1, 2, 1\nv_xor_b32 v4, v4, v3\nv_lshlrev_b32 v4, 4, v4\nv_lshl_add_u32 v4, v2, 5, v4")
            e("s_lshl_b32 s3, s%d, 11\ns_add_u32 s3, s3, %d\nv_add_u32 v30, s3, v4" % (sTmp, XS[1]))
            e("v_lshlrev_b32 v35, 2, v2\nv_lshl_add_u32 v35, v3, 9, v35")
            items = [(b, tb) for b in range(2) for tb in range(2)]
            for k, (b, tb) in enumerate(items):
                a = acc(b, tb)
                for i in range(4): e("v_cvt_pk_bf16_f32 v%d, v%d, v%d" % (vKf + 4 * k + i, a + 2 * i, a + 2 * i + 1))
                for i in range(4): e("v_cvt_pk_bf16_f32 v%d, v%d, v%d" % (vPh + 4 * k + i, a + 8 + 2 * i, a + 9 + 2 * i))
                e("ds_write_b128 v30, %s offset:%d" % (vr(vPh + 4 * k), b * 4096 + tb * 1024))
                e("v_mfma_f32_32x32x16_bf16 %s, %s, %s, 0" % (vr(a, 16), vr(vWp + 4 * b), vr(vKf + 4 * k)))
            e("v_bfe_u32 v4, v1, 2, 2\nv_lshl_add_u32 v5, v3, 2, v4")
            e("v_bfe_u32 v6, v1, 1, 1\nv_bfe_u32 v7, v1, 4, 1\nv_lshl_or_b32 v8, v7, 1, v6\nv_lshrrev_b32 v9, 1, v5\nv_xor_b32 v8, v8, v9\nv_lshlrev_b32 v8, 4, v8")
            e("v_and_b32 v9, 1, v1\nv_lshl_add_u32 v8, v9, 3, v8\nv_lshl_add_u32 v8, v5, 6, v8\ns_lshl_b32 s3, s%d, 13\ns_add_u32 s3, s3, %d\nv_add_u32 v31, s3, v8" % (sWave, WS[1]))
            e("v_xor_b32 v9, v9, v3\nv_lshlrev_b32 v9, 4, v9\nv_lshl_add_u32 v9, v6, 3, v9\nv_lshl_add_u32 v9, v5, 5, v9\ns_add_u32 s3, s%d, %d\nv_add_u32 v32, s3, v9" % (sMx, XS[1]))
            e("v_add_u32 v33, -1, v7\nv_mul_u32_u24 v34, 0x3f80, v7\nv_lshl_or_b32 v34, v34, 16, v34")
            for k, (b, tb) in enumerate(items):
                ph = vPh + 16 + 8 * (k & 1)
                e.ext(self.softmax(acc(b, tb), T, ph))
                e("ds_write_b128 v29, %s offset:%d\nds_write_b128 v36, %s offset:%d" % (vr(ph), b * 8192 + tb * 2048, vr(ph + 4), b * 8192 + tb * 2048))
            l, w2 = merge(e.l, w2, 0, 1, ev); p.ext(l); e = P()
            p("@wait lg:all\ns_barrier")
            self.stamp(p, "ksm")
            kv = vAcc + 128
            fa = lambda s: vAcc + 8 * s
            for s in range(8):
                for half in range(2): p("ds_read_b64_tr_b16 %s, v32 offset:%d" % (vr(fa(s) + 2 * half, 2), s * 512 + half * 256))
                for half in range(2): p("ds_read_b64_tr_b16 %s, v31 offset:%d" % (vr(fa(s) + 4 + 2 * half, 2), s * 1024 + half * 512))
                if s >= 2:
                    for i in range(4): p("v_and_or_b32 v%d, v%d, v33, v34" % (fa(s - 2) + i, fa(s - 2) + i))
                if s >= 3: p("v_mfma_f32_32x32x16_bf16 %s, %s, %s, %s" % (vr(kv, 16), vr(fa(s - 3)), vr(fa(s - 3) + 4), "0" if s == 3 else vr(kv, 16)))
            for s in (8, 9, 10):
                if s < 10:
                    for i in range(4): p("v_and_or_b32 v%d, v%d, v33, v34" % (fa(s - 2) + i, fa(s - 2) + i))
                p("v_mfma_f32_32x32x16_bf16 %s, %s, %s, %s" % (vr(kv, 16), vr(fa(s - 3)), vr(fa(s - 3) + 4), vr(kv, 16)))
            p("s_lshl_b32 s%d, s%d, 1\ns_add_u32 s%d, s%d, s%d" % (sTmp, sStr, sTmp, sTmp, sFfn)); self.hpos(p, sWa, sTmp, 0)
            p("s_add_u32 s%d, s%d, 1" % (sTmp, sTmp)); self.hpos(p, sWb, sTmp, 0)
            for i in range(8): p("buffer_atomic_add_f32 v%d, v35, %s, s%d offen offset:%d" % (kv + i, sr(sH), sM2r, (8 * (i >> 2) + (i & 3)) * 128), tag="kvat")
            p("s_mov_b32 exec_hi, 0\nbuffer_atomic_add_f32 v%d, v35, %s, s%d offen offset:2048" % (kv + 8, sr(sH), sM2r), tag="kvat")
            p("s_mov_b32 exec_hi, -1")
            for k, (b, tb) in enumerate(items):
                e.ext(self.gelu(acc(2 + b, tb), T, sWa if b == 0 else sWb, 1024 * tb))
                if k == o.get("kvflag_at", 2):
                    e("@wait vm:kvat\ns_barrier"); self.flag(e, "kv", B); self.stamp(e, "kvflag")
            l, w2 = merge(e.l, w2, 0, 1, ev); p.ext(l); e = P()
            self.stamp(p, "gelu")
            k = min(len(w2), o.get("w2_drain", 8))
            for c in w2[:k]: p.ext(c)
            w2 = w2[k:]
            p("@wait vm:hst\ns_barrier"); self.flag(p, "h", B)
            self.stamp(p, "hflag")
            for c in w2: p.ext(c)
        else:
            e("s_lshl_b32 s%d, s%d, 10" % (sMq, sStr))
            e("s_mul_i32 s%d, s%d, 3\ns_add_u32 s%d, s%d, s%d" % (sTmp, sStr, sTmp, sTmp, sFfn))
            for b in range(1, 5):
                if b == 4: e("s_add_u32 s%d, s%d, 6" % (sTmp, sFfn))
                self.hpos(e, sWa, sTmp, 0)
                e("s_add_u32 s%d, s%d, s%d\ns_xor_b32 s%d, s%d, 1024\ns_add_u32 s%d, s%d, 1" % (sWa, sWa, sMq, sWb, sWa, sTmp, sTmp))
                e.ext(self.gelu(acc(b, 0), T, sWa, 0))
                if b < 4: e.ext(self.gelu(acc(b, 1), T, sWb, 0))
            self.stamp(e, "gelu")
            e.ext(self.wphi_read(vWp))
            items = [(b, tb) for b in range(2) for tb in range(2)]
            pa = lambda k: vAcc + 32 + 16 * k
            for k, (b, tb) in enumerate(items):
                a = acc(0, tb) + 8 * b
                for i in range(4): e("v_cvt_pk_bf16_f32 v%d, v%d, v%d" % (vKf + 4 * k + i, a + 2 * i, a + 2 * i + 1))
                e("v_mfma_f32_32x32x16_bf16 %s, %s, %s, 0" % (vr(pa(k), 16), vr(vWp + 4 * b), vr(vKf + 4 * k)))
            e("v_lshrrev_b32 v2, 3, v1\nv_and_b32 v3, 7, v1\nv_lshrrev_b32 v4, 4, v1\nv_xor_b32 v3, v3, v4\nv_lshlrev_b32 v3, 4, v3\nv_lshl_add_u32 v29, v2, 7, v3\nv_xor_b32 v30, 64, v29")
            e("v_mov_b32 v2, 0x%x\nv_cmp_gt_u32 vcc, 8, v1\nv_cndmask_b32 v35, v2, v29, vcc" % OOB)
            e("v_and_b32 v2, 31, v1\nv_min_u32 v2, 16, v2\nv_lshrrev_b32 v3, 5, v1\nv_lshlrev_b32 v3, 2, v3\nv_bfe_u32 v4, v2, 1, 3\nv_xor_b32 v3, v3, v4\nv_lshlrev_b32 v3, 4, v3\nv_lshl_add_u32 v3, v2, 7, v3")
            e("s_lshl_b32 s3, s%d, 13\ns_add_u32 s3, s3, %d\nv_add_u32 v31, s3, v3\nv_xor_b32 v32, 16, v31\nv_xor_b32 v33, 32, v31\nv_xor_b32 v34, 48, v31" % (sStr, WS[1]))
            for k, (b, tb) in enumerate(items):
                e.ext(self.softmax(pa(k), T, vPh + 8 * k))
                if k == o.get("hflag_at", 0):
                    e("@wait vm:hst\ns_barrier"); self.flag(e, "h", B); self.stamp(e, "hflag")
            l, w2 = merge(e.l, w2, 0, 1, ev); p.ext(l); e = P()
            for c in w2: p.ext(c)
            self.stamp(p, "qsm")
            self.poll_issue(p, "kv"); self.poll_check(p, "kv")
            p("s_barrier")
            self.stamp(p, "kvseen")
            p("s_lshl_b32 s3, s%d, 2\ns_add_u32 s3, s3, s%d\ns_lshl_b32 s3, s3, 12\ns_add_u32 s3, s3, 0x%x\ns_add_u32 m0, s%d, %d" % (sU, sWave, WS_KV, sMx, WS[1]))
            for j, v in enumerate((29, 30, 35)): p("buffer_load_dwordx4 v%d, %s, s3 offen offset:%d sc1 lds" % (v, sr(sH), 1024 * j), tag="kvz")
            p("s_lshl_b32 s%d, s%d, 2\ns_lshl_b32 s3, s%d, 1\ns_add_u32 s%d, s%d, s3" % (sTmp, sU, sStr, sTmp, sTmp))
            self.hpos(p, sWa, sTmp, 22); p("s_add_u32 s%d, s%d, s%d\ns_add_u32 s%d, s%d, 1" % (sWa, sWa, sMq, sTmp, sTmp))
            self.hpos(p, sWb, sTmp, 22); p("s_add_u32 s%d, s%d, s%d" % (sWb, sWb, sMq))
            p("@wait vm:kvz\ns_barrier")
            kz = vAcc
            for b in range(2):
                for q4 in range(4): p("ds_read_b128 %s, v%d offset:%d" % (vr(kz + 16 * b + 4 * q4), 31 + q4, 4096 * b))
            for b in range(2):
                for i in range(8): p("v_cvt_pk_bf16_f32 v%d, v%d, v%d" % (vKf + 8 * b + i, kz + 16 * b + 2 * i, kz + 16 * b + 2 * i + 1))
                for tb in range(2):
                    k = 2 * b + tb
                    p("v_mfma_f32_32x32x16_bf16 %s, %s, %s, 0" % (vr(pa(k), 16), vr(vKf + 8 * b), vr(vPh + 8 * k)))
                    p("v_mfma_f32_32x32x16_bf16 %s, %s, %s, %s" % (vr(pa(k), 16), vr(vKf + 8 * b + 4), vr(vPh + 8 * k + 4), vr(pa(k), 16)))
            for k, (b, tb) in enumerate(items):
                a = pa(k); so = sWa if b == 0 else sWb
                p("v_add_f32 v%d, 0x%x, v%d\nv_rcp_f32 v%d, v%d" % (a + 8, f2u(1e-6), a + 8, a + 8, a + 8))
                for i in range(4): p("v_pk_mul_f32 %s, %s, %s op_sel_hi:[1,0]" % (vr(a + 2 * i, 2), vr(a + 2 * i, 2), vr(a + 8, 2)))
                for i in range(4): p("v_cvt_pk_bf16_f32 v%d, v%d, v%d" % (a + 12 + i, a + 2 * i, a + 2 * i + 1))
                p("buffer_store_dwordx4 %s, v%d, %s, s%d offen sc1" % (vr(a + 12), vL16, sr(sH), so), tag="ost")
                if tb == 0: p("s_xor_b32 s%d, s%d, 1024" % (so, so))
            self.poll_issue(p, "h")
            p("@wait vm:ost\ns_barrier"); self.flag(p, "o", B)
            self.stamp(p, "oflag")
        if not B: self.poll_issue(p, "h")
        p("s_lshl_b32 s3, s%d, 2\ns_add_u32 s3, s3, s%d\ns_mul_i32 s%d, s3, 61440" % (sTT, sWave, sHo))
        p("s_cmp_ge_u32 s%d, 2\ns_cselect_b32 s3, 0x%x, 0\nv_add_u32 v2, s3, v%d" % (sWave, OOB, vL16))
        p("v_and_b32 v3, 31, v1\nv_lshlrev_b32 v3, 2, v3\ns_lshl_b32 s%d, s%d, 8\ns_add_u32 s%d, s%d, 0x%x" % (sTmp, sTT, sTmp, sTmp, WS_G))
        p("v_mov_b32 v15, v%d" % vPoll8); self.poll_check(p, "h")
        p("@wait lg:all\ns_barrier")
        self.stamp(p, "hseen")
        PF = o["pf"]; NR = 14
        hf = lambda st, tb: 16 + 8 * (st % NR) + 4 * tb
        a2 = lambda part, cb, tb: 128 + 64 * part + 32 * cb + 16 * tb
        def hload(st):
            q = P()
            for tb in range(2):
                q("buffer_load_dwordx4 %s, v%d, %s, s%d offen offset:%d sc1" % (vr(hf(st, tb)), 2 if st == 21 else vL16, sr(sH), sHo, (st & 1) * 2048 + tb * 1024))
            if st & 1: q("s_add_u32 s%d, s%d, 4096" % (sHo, sHo))
            return q
        for st in range(PF): p.ext(hload(st))
        p("buffer_load_dword v4, v3, %s, s%d offen sc1\nbuffer_load_dword v6, v3, %s, s%d offen offset:128 sc1" % (sr(sH), sTmp, sr(sH), sTmp))
        sc = P()
        sc("v_sub_f32 v8, 1.0, v4\nv_sub_f32 v10, 1.0, v6")
        for cb in range(2):
            for tb in range(2):
                for i in range(8): sc("v_pk_mul_f32 %s, %s, %s op_sel_hi:[1,0]" % (vr(a2(0, cb, tb) + 2 * i, 2), vr(a2(0, cb, tb) + 2 * i, 2), vr(8 + 2 * tb, 2)))
        sc("v_and_b32 v2, 31, v1\nv_lshrrev_b32 v3, 5, v1\nv_and_b32 v5, 7, v1\nv_xor_b32 v3, v3, v5\nv_lshlrev_b32 v3, 4, v3\nv_lshl_add_u32 v3, v2, 8, v3")
        sc("s_lshl_b32 s3, s%d, 14\nv_add_u32 v12, s3, v3\nv_xor_b32 v13, 32, v12\nv_xor_b32 v15, 64, v12\nv_xor_b32 v9, 0x60, v12" % sWave)
        sc("v_lshrrev_b32 v2, 3, v0\nv_and_b32 v3, 7, v2\nv_lshlrev_b32 v7, 1, v5\nv_xor_b32 v3, v3, v7\nv_lshlrev_b32 v3, 4, v3\nv_lshl_add_u32 v3, v2, 8, v3\nv_xor_b32 v7, 16, v3")
        sc("v_lshlrev_b32 v5, 4, v5\nv_lshl_add_u32 v5, v2, 10, v5")
        sc("s_lshl_b32 s%d, s%d, 16\ns_lshl_b32 s3, s%d, 7\ns_add_u32 s%d, s%d, s3\ns_add_u32 s%d, s%d, 32768" % (sWa, sTT, sCT, sWa, sWa, sWb, sWa))
        scl = sc.l
        for st in range(30):
            nx = st + PF
            if nx == 22 - 2: self.poll_issue(p, "o", 15)
            if nx == 22:
                self.poll_check(p, "o", 15); p("s_barrier"); self.stamp(p, "oseen")
            ld = hload(nx).l if nx < 30 else []
            part = 1 if st >= 22 else 0
            for cb in range(2):
                for tb in range(2):
                    a = a2(part, cb, tb)
                    p("v_mfma_f32_32x32x16_bf16 %s, %s, %s, %s" % (vr(a, 16), ar(8 * st + 4 * cb), vr(hf(st, tb)), "0" if st in (0, 22) else vr(a, 16)))
                    if ld: p.ext([ld.pop(0)])
                    if st >= 23:
                        p.ext(scl[:3]); scl = scl[3:]
            assert not ld
        p.ext(scl)
        self.stamp(p, "p2mfma")
        wa = [12, 13, 15, 9]
        for cb in range(2):
            for tb in range(2):
                a = a2(0, cb, tb); b_ = a2(1, cb, tb)
                for j in range(4):
                    for i in (2 * j, 2 * j + 1): p("v_pk_fma_f32 %s, %s, %s, %s op_sel_hi:[1,0,1]" % (vr(a + 2 * i, 2), vr(b_ + 2 * i, 2), vr(4 + 2 * tb, 2), vr(a + 2 * i, 2)))
                    p("ds_write_b128 v%d, %s offset:%d" % (wa[j], vr(a + 4 * j), tb * 8192 + cb * 128))
        p("@wait lg:all\ns_barrier")
        for hh in range(2):
            for w in range(4):
                for i in range(2): p("ds_read_b128 %s, v%d offset:%d" % (vr(16 + 32 * hh + 8 * w + 4 * i), 7 if i else 3, w * 16384 + hh * 8192))
        for hh in range(2):
            b0 = 16 + 32 * hh
            for i in range(4): p("v_pk_add_f32 %s, %s, %s" % (vr(b0 + 2 * i, 2), vr(b0 + 2 * i, 2), vr(b0 + 8 + 2 * i, 2)))
            for i in range(4): p("v_pk_add_f32 %s, %s, %s" % (vr(b0 + 16 + 2 * i, 2), vr(b0 + 16 + 2 * i, 2), vr(b0 + 24 + 2 * i, 2)))
            for i in range(4): p("v_pk_add_f32 %s, %s, %s" % (vr(b0 + 2 * i, 2), vr(b0 + 2 * i, 2), vr(b0 + 16 + 2 * i, 2)))
            for i in range(4): p("v_cvt_pk_bf16_f32 v%d, v%d, v%d" % (b0 + 8 + i, b0 + 2 * i, b0 + 2 * i + 1))
            p("buffer_store_dwordx4 %s, v5, %s, s%d offen" % (vr(b0 + 8), sr(sOut), sWb if hh else sWa))
        if o["stamps"]:
            p("@wait vm:all"); self.stamp(p, "end")
            p("s_waitcnt lgkmcnt(0)", raw=True)
            p("s_lshl_b32 s3, s2, 2\ns_add_u32 s3, s3, s%d\ns_lshl_b32 s3, s3, 6\ns_add_u32 s3, s3, 0x%x" % (sWave, WS_ST))
            p("v_mov_b32 v16, s94")
            for k in range(self.nst): p("v_mov_b32 v%d, s%d" % (17 + k, sStamp + 2 * k))
            p("v_lshlrev_b32 v2, 24, v1")
            for k in range(4): p("buffer_store_dwordx4 %s, v2, %s, s3 offen offset:%d" % (vr(16 + 4 * k), sr(sH), 16 * k))
        p("Lfin%s:" % nm)
        p("s_endpgm")
        return p
    def build(self):
        st = State(); stats = {}
        out = process(self.prologue().l, st, stats)
        stB = st.copy()
        out += process(self.path(False).l, st, stats); self.namesA = list(self.stnames)
        out += process(self.path(True).l, stB, stats); self.namesB = list(self.stnames)
        out.append("Lend:\ns_endpgm")
        self.stats = stats
        hdr = "; @launch grid=(256,1,1) block=(256,1,1) lds=163840\n"
        hdr += '.amdgcn_target "amdgcn-amd-amdhsa--gfx950"\n.text\n.globl %s\n.p2align 8\n.type %s,@function\n%s:\n' % (KNAME, KNAME, KNAME)
        tail = """
.section .rodata,"a"
.p2align 6
.amdhsa_kernel %s
  .amdhsa_next_free_vgpr 512
  .amdhsa_next_free_sgpr 102
  .amdhsa_accum_offset 256
  .amdhsa_group_segment_fixed_size 0
  .amdhsa_kernarg_size 96
  .amdhsa_user_sgpr_count 2
  .amdhsa_user_sgpr_kernarg_segment_ptr 1
  .amdhsa_system_sgpr_workgroup_id_x 1
  .amdhsa_float_denorm_mode_32 3
.end_amdhsa_kernel
""" % KNAME
        return hdr + "\n".join(out) + tail
if __name__ == "__main__":
    opts = {}
    for a in sys.argv[2:]:
        k, v = a.split("="); opts[k] = int(v) if v.lstrip("-").isdigit() else v
    g = Gen(**opts)
    open(sys.argv[1], "w").write(g.build())
    print("nops", g.stats)
```

```python
import sys, math, struct
from asmpass import Ins, State, process
KNAME = "gated_mix__linear_kernel_hedgehog__glu_gated_geglu__prompt_kernel"
def f2u(x): return struct.unpack("<I", struct.pack("<f", x))[0]
L2E = math.log2(math.e)
K1 = -2.0 * math.sqrt(2.0 / math.pi) * L2E
K2 = K1 * 0.044715
XS = [0, 16384, 32768]; WS = [49152, 86272, 123392]; MISC = 160512
WS_FL = 0x7C0000; FKV, FHD, FOD = 0, 128, 384
WS_G = 0x780000; WS_KV = 0x790000; WS_ST = 0x800000; WS_SIZE = 0x840000
OOB = 0x40000000
RING = [XS[2], WS[2], WS[2] + 16384, XS[0], WS[0], WS[0] + 16384]
RSET = [0, 1, 2, 0, 0, 1]; RBASE = [0, 65536, WS[2] + 16384]
sX, sW, sQ, sD, sO, sH, sG, sOut, sM, sM2 = 28, 32, 36, 40, 44, 48, 52, 56, 60, 64
(sWave, sT, sU, sFfn, sTT, sCT, sXo, sWa, sWb, sStr, sMx, sMw, sMq, sW2o, sM2r, sTmp, sTmp2, sExp, sHo, sCnt) = range(68, 88)
sL2E = 88
sK2 = 90
sPC = 92
sStamp = 4
def sr(b, n=4): return "s[%d:%d]" % (b, b + n - 1)
def vr(b, n=4): return "v[%d:%d]" % (b, b + n - 1)
def ar(b, n=4): return "a[%d:%d]" % (b, b + n - 1)
vTid, vLane = 0, 1
vT = 2
vFlag, vPoll, vOne, vPr = 10, 11, 12, 13
vL16 = 14; vDummy = 15
vXo = 16
vWo = 20
vXa = 29
vWa = 37
v2o = 46
vPoll8 = 51; vSign = 50; vK1 = 52
vFr = 56
vAcc = 112
class P:
    def __init__(self): self.l = []
    def __call__(self, s, tag=None, raw=False):
        for x in s.split("\n"):
            if x.strip(): self.l.append(Ins(x, tag, raw))
    def ext(self, o): self.l += o.l if isinstance(o, P) else o
def merge(main, side, start=0, per=1, every=1):
    out = []; k = 0
    for i, x in enumerate(main):
        out.append(x)
        if i >= start and (i - start) % every == every - 1:
            for _ in range(per):
                if k < len(side): out += side[k]; k += 1
    return out, side[k:]

class Gen:
    def __init__(self, **o):
        self.o = dict(stamps=False, p2map="4x8", pf=7, touch=False, codepf=True)
        self.o.update(o); self.nst = 0; self.nlab = 0; self.stnames = []
    def stamp(self, p, name):
        if self.o.get("calat") == name: p("s_memrealtime s[94:95]", raw=True)
        if self.o["stamps"]:
            p("s_memrealtime s[%d:%d]" % (sStamp + 2 * self.nst, sStamp + 2 * self.nst + 1), raw=True)
            self.nst += 1; self.stnames.append(name); assert self.nst <= 12
    def srd(self, p, d, ptr, size):
        p("s_mov_b32 s%d, s%d\ns_mov_b32 s%d, s%d\ns_mov_b32 s%d, 0x%x\ns_mov_b32 s%d, 0x20000" % (d, ptr, d + 1, ptr + 1, d + 2, size, d + 3))
    def prologue(self):
        p = P()
        if self.o["stamps"] or self.o.get("calib"): p("s_memrealtime s[94:95]", raw=True)
        p("s_load_dwordx16 s[4:19], s[0:1], 0\ns_load_dwordx8 s[20:27], s[0:1], 64")
        p("s_cmp_ge_u32 s2, 256\ns_cbranch_scc1 Lend")
        p("v_and_b32 v1, 63, v0\nv_lshrrev_b32 v2, 6, v0\nv_readfirstlane_b32 s%d, v2" % sWave)
        p("s_and_b32 s%d, s2, 7\ns_lshr_b32 s%d, s2, 3" % (sTmp, sTmp2))
        p("s_lshr_b32 s%d, s%d, 2\ns_lshl_b32 s%d, s%d, 3\ns_lshr_b32 s3, s%d, 2\ns_add_u32 s%d, s%d, s3" % (sT, sTmp, sT, sT, sTmp2, sT, sT))
        p("s_and_b32 s3, s%d, 3\ns_mul_i32 s%d, s3, 22\ns_lshl_b32 s%d, s3, 1\ns_bfe_u32 s3, s%d, 0x10001\ns_add_u32 s%d, s%d, s3" % (sTmp, sFfn, sU, sTmp2, sU, sU))
        if self.o["p2map"] == "4x8":
            p("s_lshl_b32 s%d, s%d, 2\ns_lshr_b32 s3, s%d, 3\ns_add_u32 s%d, s%d, s3\ns_and_b32 s%d, s%d, 7" % (sTT, sTmp, sTmp2, sTT, sTT, sCT, sTmp2))
        else:
            p("s_lshr_b32 s%d, s%d, 1\ns_lshl_b32 s%d, s%d, 3\ns_lshr_b32 s3, s%d, 2\ns_add_u32 s%d, s%d, s3" % (sTT, sTmp, sTT, sTT, sTmp2, sTT, sTT))
            p("s_and_b32 s%d, s%d, 1\ns_lshl_b32 s%d, s%d, 2\ns_and_b32 s3, s%d, 3\ns_add_u32 s%d, s%d, s3" % (sCT, sTmp, sCT, sCT, sTmp2, sCT, sCT))
        p("s_bitcmp1_b32 s%d, 0\ns_cbranch_scc1 LpathB" % sTmp2)
        return p
    def setup(self, B):
        p = P(); o = self.o
        nm = "B" if B else "A"
        if o["codepf"]:
            p("s_getpc_b64 s[%d:%d]" % (sPC, sPC + 1))
            p("Lpc%s:" % nm)
            p("v_lshlrev_b32 v2, 7, v0\nv_min_u32 v2, Lfin%s-Lpc%s, v2\nv_and_b32 v2, -4, v2" % (nm, nm))
            p("global_load_dword v%d, v2, s[%d:%d]" % (vDummy, sPC, sPC + 1))
        if B: p("s_and_b32 s3, s%d, 1\ns_mul_i32 s3, s3, 7\ns_add_u32 s%d, s%d, s3\ns_add_u32 s%d, s%d, 8" % (sU, sFfn, sFfn, sFfn, sFfn))
        else: p("s_and_b32 s3, s%d, 1\ns_lshl_b32 s3, s3, 2\ns_add_u32 s%d, s%d, s3" % (sU, sFfn, sFfn))
        p("s_lshl_b32 s%d, s%d, 17\ns_lshl_b32 s3, s%d, 15\ns_add_u32 s%d, s%d, s3" % (sXo, sT, sWave, sXo, sXo))
        p("s_lshl_b32 s%d, s%d, 12" % (sMx, sWave))
        p("v_lshrrev_b32 v2, 3, v1\nv_and_b32 v3, 7, v1\nv_lshrrev_b32 v4, 4, v1\nv_and_b32 v5, 1, v4")
        p("v_xor_b32 v6, v3, v4\nv_lshlrev_b32 v6, 4, v6\nv_lshl_add_u32 v%d, v2, 10, v6" % vXo)
        p("v_xor_b32 v6, 64, v%d\nv_add_u32 v%d, 7168, v6\nv_add_u32 v%d, 14336, v%d\nv_add_u32 v%d, 21504, v6" % (vXo, vXo + 1, vXo + 2, vXo, vXo + 3))
        p("v_lshlrev_b32 v6, 2, v5\nv_xor_b32 v6, v3, v6\nv_lshlrev_b32 v7, 4, v6")
        if not B:
            p("s_movk_i32 s3, 2752\ns_cmp_lt_u32 s%d, 2\ns_cselect_b32 s%d, 3072, s3" % (sWave, sStr))
            p("s_lshl_b32 s3, s%d, 7\ns_lshl_b32 s%d, s%d, 10\ns_add_u32 s3, s3, s%d\ns_add_u32 s3, s3, 1024\ns_lshl_b32 s%d, s%d, 5" % (sU, sTmp, sWave, sTmp, sTmp, sFfn))
            p("s_cmp_lt_u32 s%d, 2\ns_cselect_b32 s%d, s3, s%d" % (sWave, sWa, sTmp))
            p("s_lshl_b32 s3, s%d, 5\ns_add_u32 s%d, s%d, s3" % (sStr, sWb, sWa))
            p("s_and_b32 s3, s%d, 1\ns_lshl_b32 s3, s3, 2" % sWave)
            p("v_lshlrev_b32 v6, 1, v5\nv_xor_b32 v6, v3, v6\nv_xor_b32 v6, s3, v6\nv_lshlrev_b32 v6, 4, v6")
            p("v_mad_u32_u24 v%d, v2, s%d, v6" % (vWo, sStr))
            p("s_lshl_b32 s3, s%d, 3\ns_sub_u32 s3, s3, 1024" % sStr)
            for j in range(1, 4): p("v_add_u32 v%d, s3, v%d" % (vWo + j, vWo + j - 1))
            p("s_lshl_b32 s%d, s%d, 6\ns_lshl_b32 s%d, s%d, 13" % (sStr, sStr, sMw, sWave))
        else:
            p("s_mul_i32 s%d, s%d, %d\ns_lshl_b32 s3, s%d, 7\ns_add_u32 s%d, s%d, s3" % (sWb, sWave, 16 * 3072, sU, sWb, sWb))
            p("s_and_b32 s%d, s%d, 1\ns_mul_i32 s%d, s%d, %d\ns_lshl_b32 s3, s%d, 5\ns_add_u32 s%d, s%d, s3" % (sTmp, sWave, sWa, sTmp, 32 * 2752, sFfn, sWa, sWa))
            p("s_mul_i32 s%d, s%d, 7168\ns_lshr_b32 s3, s%d, 1\ns_mul_i32 s3, s3, 14464\ns_add_u32 s%d, s%d, s3\ns_add_u32 s%d, s%d, 8192" % (sMw, sTmp, sWave, sMw, sMw, sMw, sMw))
            p("s_lshl_b32 s%d, s%d, 11" % (sMq, sWave))
            p("v_mul_u32_u24 v6, 3072, v2\nv_add_u32 v%d, v6, v7\nv_add_u32 v%d, %d, v%d" % (vWo, vWo + 1, 8 * 3072 - 1024, vWo))
            for j in range(7):
                r = vWo + 2 + j
                p("v_add_u32 v6, %d, v1\nv_mul_u32_u24 v8, 4682, v6\nv_lshrrev_b32 v8, 16, v8" % (64 * j))
                p("v_mul_u32_u24 v8, %d, v8\nv_lshl_add_u32 v%d, v6, 4, v8" % (2752 - 224, r))
                if j & 3: p("v_subrev_u32 v%d, %d, v%d" % (r, 1024 * (j & 3), r))
        self.srd(p, sX, 4, 2048 * 1024)
        if not B:
            p("s_cmp_eq_u32 s%d, 2\ns_cselect_b64 s[%d:%d], s[14:15], s[16:17]" % (sWave, sW, sW + 1))
            p("s_cmp_lt_u32 s%d, 2\ns_cselect_b64 s[%d:%d], s[6:7], s[%d:%d]\ns_cselect_b32 s%d, 0x%x, 0" % (sWave, sW, sW + 1, sW, sW + 1, sW + 2, 512 * 3072 - 512 * 2752))
            p("s_add_u32 s%d, s%d, 0x%x\ns_mov_b32 s%d, 0x20000" % (sW + 2, sW + 2, 512 * 2752, sW + 3))
        else:
            p("s_cmp_lt_u32 s%d, 2\ns_cselect_b64 s[%d:%d], s[14:15], s[16:17]" % (sWave, sW, sW + 1))
            p("s_mov_b32 s%d, 0x%x\ns_mov_b32 s%d, 0x20000" % (sW + 2, 512 * 2752, sW + 3))
            self.srd(p, sQ, 6, 512 * 3072)
        q = P()
        q("v_lshl_add_u32 v%d, v2, 10, v7\nv_add_u32 v%d, 7168, v%d\nv_add_u32 v%d, %d, v%d\nv_add_u32 v%d, %d, v%d" % (v2o, v2o + 1, v2o, v2o + 2, 65536 - 2048, v2o, v2o + 3, 65536 - 2048, v2o + 1))
        self.srd(q, sD, 18, 1376 * 1024); self.srd(q, sO, 10, 512 * 1024); self.srd(q, sH, 26, WS_SIZE)
        self.srd(q, sG, 24, 256); self.srd(q, sOut, 22, 2048 * 1024); self.srd(q, sM, 8, 16384); self.srd(q, sM2, 20, 1024)
        q("v_lshlrev_b32 v%d, 4, v1" % vL16)
        q("v_mov_b32 v%d, 1\nv_mov_b32 v6, 0x%x\nv_cmp_eq_u32 vcc, 0, v0\nv_cndmask_b32 v%d, v6, 0, vcc" % (vOne, OOB, vFlag))
        q("v_lshlrev_b32 v7, 7, v0\nv_cmp_gt_u32 vcc, 16, v0\nv_cndmask_b32 v%d, v6, v7, vcc\nv_cmp_gt_u32 vcc, 8, v0\nv_cndmask_b32 v%d, v6, v7, vcc" % (vPoll, vPoll8))
        q("s_mov_b32 s%d, 0x%x\ns_mov_b32 s%d, 0x%x\ns_mov_b32 s%d, 0x%x\ns_mov_b32 s%d, 0x%x\nv_mov_b32 v%d, 0x%x" % (sL2E, f2u(L2E), sL2E + 1, f2u(L2E), sK2, f2u(K2), sK2 + 1, f2u(K2), vK1, f2u(K1)))
        q("v_bfe_u32 v6, v1, 2, 1\nv_mul_u32_u24 v6, 0x8000, v6\nv_lshl_or_b32 v%d, v6, 16, v6" % vSign)
        q("s_lshl_b32 s%d, s%d, 14\ns_lshl_b32 s3, s%d, 7\ns_add_u32 s%d, s%d, s3" % (sW2o, sWave, sCT, sW2o, sW2o))
        q("v_and_b32 v2, 31, v1\nv_lshrrev_b32 v3, 5, v1\nv_bfe_u32 v6, v2, 1, 3\nv_xor_b32 v6, v3, v6\nv_lshlrev_b32 v6, 4, v6\nv_lshl_add_u32 v6, v2, 7, v6")
        if B: q("s_lshl_b32 s3, s%d, 12" % sWave)
        else: q("s_lshr_b32 s3, s%d, 1\ns_lshl_b32 s3, s3, 13" % sWave)
        q("v_add_u32 v%d, s3, v6" % vXa)
        for s in range(1, 4): q("v_xor_b32 v%d, %d, v%d" % (vXa + s, s << 5, vXa))
        if B:
            for s in range(4): q("v_xor_b32 v%d, 0x1000, v%d" % (vXa + 4 + s, vXa + s))
        q("v_bfe_u32 v4, v1, 2, 2\nv_lshrrev_b32 v6, 1, v4\nv_and_b32 v7, 3, v1\nv_lshlrev_b32 v7, 3, v7\nv_lshl_add_u32 v8, v3, 3, v4")
        q("s_and_b32 s%d, s%d, 1\ns_lshl_b32 s3, s%d, 1" % (sTmp, sWave, sTmp))
        if not B:
            q("v_lshl_or_b32 v9, v5, 1, v6\nv_xor_b32 v9, s3, v9\nv_lshl_add_u32 v9, v9, 5, v7\nv_lshl_add_u32 v9, v8, 7, v9\nv_lshl_add_u32 v9, v5, 13, v9")
            for sl in range(3): q("v_add_u32 v%d, %d, v9\nv_xor_b32 v%d, 32, v%d" % (vWa + 3 * sl, WS[sl], vWa + 3 * sl + 1, vWa + 3 * sl))
        else:
            q("v_lshl_or_b32 v9, v6, 1, v5\nv_xor_b32 v9, s3, v9\nv_lshl_add_u32 v9, v9, 5, v7\nv_lshl_add_u32 v9, v8, 7, v9")
            for sl in range(3): q("v_add_u32 v%d, %d, v9" % (vWa + 3 * sl, WS[sl]))
            q("v_mul_u32_u24 v9, 224, v8\nv_add_u32 v9, v9, v7\nv_mul_u32_u24 v8, 14464, v5\nv_add_u32 v9, v9, v8\ns_mul_i32 s3, s%d, 96" % sTmp)
            for sl in range(3): q("v_add_u32 v%d, %d, v9\nv_add_u32 v%d, s3, v%d\nv_add_u32 v%d, 192, v%d" % (vWa + 3 * sl + 2, WS[sl] + 8192, vWa + 3 * sl + 1, vWa + 3 * sl + 2, vWa + 3 * sl + 2, vWa + 3 * sl + 2))
        return p, q
    def slab_dma(self, B, sg):
        sl = sg % 3; tag = "slab%d" % sg; ch = []
        def dma(pre, v, srd, so, imm, post=""):
            p = P()
            if pre: p(pre)
            p("buffer_load_dwordx4 v%d, %s, s%d offen offset:%d lds" % (v, sr(srd), so, imm), tag=tag)
            if post: p(post)
            ch.append(p.l)
        for j in range(4):
            dma("s_add_u32 m0, s%d, %d" % (sMx, XS[sl]) if j == 0 else "", vXo + j, sX, sXo, 1024 * j, "s_add_u32 s%d, s%d, 128" % (sXo, sXo) if j == 3 else "")
        if not B:
            for j in range(8):
                so = sWa if j < 4 else sWb
                dma("s_add_u32 m0, s%d, %d" % (sMw, WS[sl] + 1024 * j) if j % 4 == 0 else "", vWo + j % 4, sW, so, 1024 * (j % 4), "s_add_u32 s%d, s%d, s%d" % (so, so, sStr) if j % 4 == 3 else "")
        else:
            for j in range(2):
                dma("s_add_u32 m0, s%d, %d" % (sMq, WS[sl]) if j == 0 else "", vWo + j, sQ, sWb, 1024 * j, "s_add_u32 s%d, s%d, %d" % (sWb, sWb, 64 * 3072) if j == 1 else "")
            for j in range(7):
                dma("s_add_u32 m0, s%d, %d" % (sMw, WS[sl] + 1024 * j) if j % 4 == 0 else "", vWo + 2 + j, sW, sWa, 1024 * (j % 4), "s_add_u32 s%d, s%d, %d" % (sWa, sWa, 64 * 2752) if j == 6 else "")
        return ch
    def w2_dma(self, i):
        ch = []
        for j in range(4):
            p = P()
            if j == 0:
                if i >= 6: p("@wait lg:w2r%d" % (i - 6))
                p("s_add_u32 m0, s%d, %d" % (sMx, RING[i % 6]))
            p("buffer_load_dwordx4 v%d, %s, s%d offen offset:%d lds" % (v2o + j, sr(sD if i < 11 else sO), sW2o, 1024 * j), tag="w2d%d" % i)
            if j == 3:
                if i == 10: p("s_sub_u32 s%d, s%d, %d" % (sW2o, sW2o, 10 * 131072))
                else: p("s_add_u32 s%d, s%d, %d" % (sW2o, sW2o, 131072))
            ch.append(p.l)
        return ch
    def w2_reads(self, i, va):
        ch = []
        rs = RSET[i % 6]; off = RING[i % 6] - RBASE[rs]
        for st in range(2):
            for cb in range(2):
                p = P()
                if st == 0 and cb == 0: p("@wait vm:w2d%d" % i)
                for half in range(2):
                    d = 8 * (2 * i + st) + 4 * cb + 2 * half
                    p("ds_read_b64_tr_b16 %s, v%d offset:%d" % (ar(d, 2), va + 2 * rs + cb, off + st * 2048 + half * 1024), tag="w2r%d" % i)
                ch.append(p.l)
        return ch
    def w2_addr(self, va):
        p = P()
        p("v_bfe_u32 v2, v1, 2, 2\nv_lshrrev_b32 v3, 5, v1\nv_lshl_add_u32 v3, v3, 2, v2\nv_and_b32 v2, 2, v2\nv_bfe_u32 v4, v1, 4, 1\nv_or_b32 v2, v2, v4")
        p("v_and_b32 v4, 3, v1\nv_lshlrev_b32 v4, 3, v4\nv_lshl_add_u32 v4, v2, 5, v4\nv_lshl_add_u32 v4, v3, 7, v4\nv_add_u32 v%d, s%d, v4\nv_xor_b32 v%d, 64, v%d" % (va, sMx, va + 1, va))
        for k in (1, 2): p("v_add_u32 v%d, %d, v%d\nv_add_u32 v%d, %d, v%d" % (va + 2 * k, RBASE[k], va, va + 2 * k + 1, RBASE[k], va + 1))
        return p
    def flag(self, p, kind, B):
        if kind == "kv": p("s_lshl_b32 s3, s%d, 4\ns_add_u32 s3, s3, s%d" % (sU, sT)); base = FKV
        elif kind == "h": p("s_lshl_b32 s3, s%d, 3\ns_add_u32 s3, s3, s%d\ns_lshl_b32 s3, s3, 1" % (sT, sU)); base = FHD + (1 if B else 0)
        else: p("s_lshl_b32 s3, s%d, 3\ns_add_u32 s3, s3, s%d" % (sT, sU)); base = FOD
        p("s_lshl_b32 s3, s3, 7\ns_add_u32 s3, s3, 0x%x" % (WS_FL + base * 128))
        p("buffer_store_dword v%d, v%d, %s, s3 offen sc1" % (vOne, vFlag, sr(sH)))
    def poll_ins(self, kind, v8):
        if kind == "init": return "buffer_load_dword v%d, v%d, %s, 0 offen sc1" % (vPr, vDummy, sr(sG))
        return "buffer_load_dword v%d, v%d, %s, s%d offen sc1" % (vPr, v8 if kind == "o" else vPoll, sr(sH), sCnt)
    def poll_issue(self, p, kind, v8=vPoll8):
        if kind == "init": p("v_lshrrev_b32 v%d, 5, v%d" % (vDummy, vPoll8))
        elif kind == "kv": p("s_lshl_b32 s%d, s%d, 11\ns_add_u32 s%d, s%d, 0x%x" % (sCnt, sU, sCnt, sCnt, WS_FL + FKV * 128))
        elif kind == "h": p("s_lshr_b32 s%d, s%d, 1\ns_lshl_b32 s%d, s%d, 11\ns_add_u32 s%d, s%d, 0x%x" % (sCnt, sTT, sCnt, sCnt, sCnt, sCnt, WS_FL + FHD * 128))
        else: p("s_lshr_b32 s%d, s%d, 1\ns_lshl_b32 s%d, s%d, 10\ns_add_u32 s%d, s%d, 0x%x" % (sCnt, sTT, sCnt, sCnt, sCnt, sCnt, WS_FL + FOD * 128))
        p(self.poll_ins(kind, v8))
    def poll_check(self, p, kind, v8=vPoll8):
        k = self.nlab; self.nlab += 1
        p("s_cmp_eq_u32 s%d, 0\ns_cselect_b32 s%d, 0x%x, 0" % (sWave, sExp, 0xff if kind in ("init", "o") else 0xffff))
        p("v_cmp_eq_u32 vcc, 1, v%d\ns_nop 1\ns_and_b32 s3, vcc_lo, s%d\ns_cmp_eq_u32 s3, s%d\ns_cbranch_scc1 Lok%d" % (vPr, sExp, sExp, k))
        p("s_mov_b32 s%d, 0\nLsp%d:\ns_sleep %d\n%s\ns_waitcnt vmcnt(0)" % (sTmp2, k, self.o.get("sleep", 2), self.poll_ins(kind, v8)), raw=True)
        p("v_cmp_eq_u32 vcc, 1, v%d\ns_add_u32 s%d, s%d, 1\ns_nop 0\ns_and_b32 s3, vcc_lo, s%d\ns_cmp_eq_u32 s3, s%d\ns_cbranch_scc1 Lok%d\ns_cmp_lt_u32 s%d, 0x8000\ns_cbranch_scc1 Lsp%d\nLok%d:" % (vPr, sTmp2, sTmp2, sExp, sExp, k, sTmp2, k, k), raw=True)
    def gate_job(self, B):
        ld = P(); c = P()
        ld("s_lshl_b32 s3, s%d, 4\ns_lshl_b32 s%d, s%d, 1\ns_add_u32 s3, s3, s%d\ns_add_u32 s3, s3, %d" % (sT, sTmp, sU, sTmp, 1 if B else 0))
        ld("s_lshl_b32 s3, s3, 2\ns_add_u32 s3, s3, s%d\ns_lshl_b32 s%d, s3, 3\ns_lshl_b32 s3, s3, 11" % (sWave, sHo))
        ld("buffer_load_dwordx4 a[240:243], v%d, %s, s3 offen\nbuffer_load_dwordx4 a[244:247], v%d, %s, s3 offen offset:1024" % (vL16, sr(sX), vL16, sr(sX)))
        ld("buffer_load_dwordx4 a[248:251], v%d, %s, 0 offen" % (vL16, sr(sM2)))
        for i in range(4):
            c("v_accvgpr_read_b32 v4, a%d\nv_accvgpr_read_b32 v5, a%d\nv_accvgpr_read_b32 v6, a%d" % (240 + i, 244 + i, 248 + i))
            c("v_lshlrev_b32 v7, 16, v4\nv_lshlrev_b32 v8, 16, v5\nv_lshlrev_b32 v9, 16, v6")
            if i == 0: c("v_mul_f32 v2, v7, v9\nv_mul_f32 v3, v8, v9")
            else: c("v_fmac_f32 v2, v7, v9\nv_fmac_f32 v3, v8, v9")
            c("v_and_b32 v4, 0xffff0000, v4\nv_and_b32 v5, 0xffff0000, v5\nv_and_b32 v6, 0xffff0000, v6")
            c("v_fmac_f32 v2, v4, v6\nv_fmac_f32 v3, v5, v6")
        c("v_permlane32_swap_b32 v2, v3\nv_add_f32 v2, v2, v3")
        for r in (8, 4, 2, 1): c("v_add_f32_dpp v2, v2, v2 row_ror:%d row_mask:0xf bank_mask:0xf" % r)
        c("v_mov_b32 v3, v2\nv_permlane16_swap_b32 v2, v3\nv_add_f32 v2, v2, v3")
        c("v_mul_f32 v2, 0x%x, v2\nv_exp_f32 v2, v2\nv_add_f32 v2, 1.0, v2\nv_rcp_f32 v2, v2" % f2u(-L2E))
        c("v_and_b32 v3, 31, v1\nv_lshlrev_b32 v3, 25, v3\nv_lshrrev_b32 v4, 3, v1\nv_or_b32 v3, v3, v4")
        c("s_add_u32 s3, s%d, 0x%x" % (sHo, WS_G))
        c("buffer_store_dword v2, v3, %s, s3 offen sc1" % sr(sH), tag="hst")
        return ld, c
    def wphi_load(self):
        p = P()
        p("s_and_b32 s3, s%d, 1\ns_lshl_b32 s3, s3, 10\ns_add_u32 m0, s3, %d\ns_lshl_b32 s%d, s%d, 11\ns_add_u32 s3, s3, s%d" % (sWave, MISC, sTmp, sU, sTmp))
        p("buffer_load_dwordx4 v%d, %s, s3 offen lds" % (vL16, sr(sM)), tag="wphi")
        return p
    def wphi_read(self, vd):
        p = P()
        p("v_bfe_u32 v2, v1, 2, 2\nv_lshrrev_b32 v3, 5, v1\nv_lshl_add_u32 v3, v3, 2, v2\nv_bfe_u32 v2, v1, 1, 1\nv_and_b32 v4, 16, v1\nv_lshl_add_u32 v4, v2, 3, v4\nv_lshl_add_u32 v4, v3, 5, v4")
        p("s_and_b32 s3, s%d, 1\ns_lshl_b32 s3, s3, 10\ns_add_u32 s3, s3, %d\nv_add_u32 v4, s3, v4" % (sWave, MISC))
        p("@wait vm:wphi")
        for b in range(2):
            for half in range(2): p("ds_read_b64_tr_b16 %s, v4 offset:%d" % (vr(vd + 4 * b + 2 * half, 2), b * 512 + half * 256))
        for i in range(8): p("v_xor_b32 v%d, v%d, v%d" % (vd + i, vd + i, vSign))
        return p
    def softmax(self, Pr, T, out):
        p = P()
        for k in range(5): p("v_max3_f32 v%d, v%d, v%d, v%d" % (T + k, Pr + 3 * k, Pr + 3 * k + 1, Pr + 3 * k + 2))
        p("v_max3_f32 v%d, v%d, v%d, v%d\nv_max3_f32 v%d, v%d, v%d, v%d\nv_max_f32 v%d, v%d, v%d" % (T, T, T + 1, Pr + 15, T + 2, T + 2, T + 3, T + 4, T, T, T + 2))
        p("v_mul_f32 v%d, 0x%x, v%d" % (T, f2u(-L2E), T))
        for k in range(8): p("v_pk_fma_f32 %s, %s, %s, %s op_sel_hi:[1,0,0]" % (vr(Pr + 2 * k, 2), vr(Pr + 2 * k, 2), sr(sL2E, 2), vr(T, 2)))
        for k in range(16): p("v_exp_f32 v%d, v%d" % (Pr + k, Pr + k))
        for k in range(4): p("v_pk_add_f32 %s, %s, %s" % (vr(T + 2 * k, 2), vr(Pr + 4 * k, 2), vr(Pr + 4 * k + 2, 2)))
        p("v_pk_add_f32 %s, %s, %s\nv_pk_add_f32 %s, %s, %s\nv_pk_add_f32 %s, %s, %s" % (vr(T, 2), vr(T, 2), vr(T + 2, 2), vr(T + 4, 2), vr(T + 4, 2), vr(T + 6, 2), vr(T, 2), vr(T, 2), vr(T + 4, 2)))
        p("v_add_f32 v%d, v%d, v%d\nv_rcp_f32 v%d, v%d" % (T, T, T + 1, T, T))
        for k in range(8): p("v_pk_mul_f32 %s, %s, %s op_sel_hi:[1,0]" % (vr(Pr + 2 * k, 2), vr(Pr + 2 * k, 2), vr(T, 2)))
        for k in range(8): p("v_cvt_pk_bf16_f32 v%d, v%d, v%d" % (out + k, Pr + 2 * k, Pr + 2 * k + 1))
        return p
    def gelu(self, a, T, soff, imm):
        p = P()
        for k in range(4): p("v_pk_mul_f32 %s, %s, %s" % (vr(T + 2 * k, 2), vr(a + 2 * k, 2), vr(a + 2 * k, 2)))
        for k in range(4): p("v_pk_fma_f32 %s, %s, %s, %s op_sel_hi:[1,0,0]" % (vr(T + 2 * k, 2), vr(T + 2 * k, 2), sr(sK2, 2), vr(vK1, 2)))
        for k in range(4): p("v_pk_mul_f32 %s, %s, %s" % (vr(T + 2 * k, 2), vr(T + 2 * k, 2), vr(a + 2 * k, 2)))
        for k in range(8): p("v_exp_f32 v%d, v%d" % (T + k, T + k))
        for k in range(4): p("v_pk_mul_f32 %s, %s, %s" % (vr(a + 2 * k, 2), vr(a + 2 * k, 2), vr(a + 8 + 2 * k, 2)))
        for k in range(4): p("v_pk_add_f32 %s, %s, 1.0 op_sel_hi:[1,0]" % (vr(T + 2 * k, 2), vr(T + 2 * k, 2)))
        for k in range(8): p("v_rcp_f32 v%d, v%d" % (T + k, T + k))
        for k in range(4): p("v_pk_mul_f32 %s, %s, %s" % (vr(a + 2 * k, 2), vr(a + 2 * k, 2), vr(T + 2 * k, 2)))
        for k in range(4): p("v_cvt_pk_bf16_f32 v%d, v%d, v%d" % (a + 8 + k, a + 2 * k, a + 2 * k + 1))
        p("buffer_store_dwordx4 %s, v%d, %s, s%d offen offset:%d sc1" % (vr(a + 8), vL16, sr(sH), soff, imm), tag="hst")
        return p
    def hpos(self, p, dst, ksreg, step0):
        p("s_and_b32 s3, s%d, 3\ns_mul_i32 s3, s3, 30\ns_lshr_b32 s%d, s%d, 2\ns_add_u32 s3, s3, s%d" % (ksreg, dst, ksreg, dst))
        if step0: p("s_add_u32 s3, s3, %d" % step0)
        p("s_lshl_b32 s3, s3, 11\ns_add_u32 s%d, s3, s%d" % (dst, sHo))
    def path(self, B):
        o = self.o; p = P(); nm = "B" if B else "A"
        self.nst = 0; self.stnames = []
        if B: p("LpathB:")
        s1, s2 = self.setup(B)
        p.ext(s1)
        nb = 5 if B else 4; nd = 13 if B else 12
        fx = lambda ps, tb: vFr + 28 * ps + 4 * tb
        fw = lambda ps, b: vFr + 28 * ps + 8 + 4 * b
        acc = lambda b, tb: vAcc + 16 * (2 * b + tb)
        def reads(sg, s):
            sl = sg % 3; ps = s & 1; r = []
            def rx(tb):
                if B: r.append([Ins("ds_read_b128 %s, v%d offset:%d" % (vr(fx(ps, tb)), vXa + 4 * tb + s, XS[sl]))])
                else: r.append([Ins("ds_read_b128 %s, v%d offset:%d" % (vr(fx(ps, tb)), vXa + s, XS[sl] + 4096 * tb))])
            def rw(b):
                for half in range(2):
                    if not B: va, off = vWa + 3 * sl + (b & 1), s * 2048 + half * 512 + (b >> 1) * 16384
                    elif b == 0: va, off = vWa + 3 * sl, s * 2048 + half * 512
                    elif b < 4: va, off = vWa + 3 * sl + 1, s * 3584 + half * 896 + (b - 1) * 32
                    else: va, off = vWa + 3 * sl + 2, s * 3584 + half * 896
                    r.append([Ins("ds_read_b64_tr_b16 %s, v%d offset:%d" % (vr(fw(ps, b) + 2 * half, 2), va, off))])
            rx(0); rw(0); rx(1)
            for b in range(1, nb): rw(b)
            return r
        dq = self.slab_dma(B, 0) + self.slab_dma(B, 1) + self.slab_dma(B, 2)
        npre = nd + o.get("pre1", 6)
        for c in dq[:nd]: p.ext(c)
        self.stamp(p, "issued0")
        p.ext(s2)
        if not B:
            p("s_cmp_eq_u32 s%d, 0\ns_cselect_b32 s%d, 0, 0x%x" % (sT, sTmp, OOB))
            p("s_lshl_b32 s3, s%d, 2\ns_add_u32 s3, s3, s%d\ns_lshl_b32 s3, s3, 12\ns_add_u32 s%d, s3, 0x%x\ns_add_u32 s3, s%d, s%d" % (sU, sWave, sM2r, WS_KV, sM2r, sTmp))
            for k in range(4): p("v_mov_b32 v%d, 0" % (vAcc + 128 + k))
            for k in range(3): p("buffer_store_dwordx4 %s, v%d, %s, s3 offen offset:%d sc1" % (vr(vAcc + 128), vL16, sr(sH), 1024 * k), tag="zst")
            p("s_lshl_b32 s3, s%d, 13\ns_add_u32 s3, s3, s%d\ns_add_u32 s3, s3, 0x%x\ns_lshl_b32 s%d, s%d, 26\ns_add_u32 s3, s3, s%d\nv_lshlrev_b32 v2, 7, v1" % (sU, sTmp, WS_FL, sTmp, sWave, sTmp))
            p("buffer_store_dword v%d, v2, %s, s3 offen sc1" % (vAcc + 128, sr(sH)), tag="zst")
        for c in dq[nd:npre]: p.ext(c)
        dq = dq[npre:]
        p("@wait vm:slab0\ns_barrier")
        self.stamp(p, "slab0")
        for c in reads(0, 0): p.ext(c)
        gl, gc = self.gate_job(B)
        v2a = vWo
        side = {}
        def addside(sg, s, pp, n=1):
            l = pp.l; side.setdefault((sg, s), [])
            side[(sg, s)] += [l[i:i + n] for i in range(0, len(l), n)]
        addside(1, 0, gl, 20)
        if not B:
            z = P(); z("s_cmp_eq_u32 s%d, 0\ns_cselect_b32 s%d, 0, 0x%x\ns_lshl_b32 s3, s%d, 2\ns_add_u32 s3, s3, s%d" % (sT, sTmp, OOB, sU, sTmp))
            z("buffer_store_dword v%d, v%d, %s, s3 offen sc1" % (vOne, vFlag, sr(sG)))
            addside(1, 2, z, 20)
        z = P(); self.poll_issue(z, "init"); addside(6, 0, z, 20)
        n = len(gc.l); q = (n + 7) // 8
        for k in range(8):
            z = P(); z.l = gc.l[k * q:(k + 1) * q]; addside(3 + k // 4, k % 4, z, 2)
        addside(6, 1, self.w2_addr(v2a), 2)
        for sg in range(8):
            for s in range(4):
                ps = s & 1
                if s == 3:
                    if sg == 7: self.poll_check(p, "init")
                    p("@wait lg:all vm:slab%d%s\ns_barrier" % (sg + 1, " vm:zst" if sg == 0 else ""))
                    if sg + 3 < 8: dq += self.slab_dma(B, sg + 3) + ([self.wphi_load().l] if sg == 1 else [])
                    elif sg == 5: dq += self.w2_dma(0) + self.w2_dma(1) + self.w2_dma(2)
                    elif sg == 6: dq += self.w2_dma(3) + self.w2_dma(4) + self.w2_dma(5)
                else: p("@wait lg:all")
                rd = reads(sg, s + 1) if s < 3 else (reads(sg + 1, 0) if sg < 7 else [])
                left = (3 - s) if s < 3 else 4
                nq = -(-len(dq) // left)
                ex = list(side.get((sg, s), []))
                mm = [(b, tb) for b in range(4) for tb in range(2)] + ([(4, 0)] if B else [])
                for gi, (b, tb) in enumerate(mm):
                    a = acc(b, tb)
                    p("v_mfma_f32_32x32x16_bf16 %s, %s, %s, %s" % (vr(a, 16), vr(fw(ps, b)), vr(fx(ps, tb)), "0" if (sg == 0 and s == 0) else vr(a, 16)))
                    for _ in range(2):
                        if rd: p.ext(rd.pop(0))
                    rem = len(mm) - gi
                    if nq >= rem and dq:
                        p.ext(dq.pop(0)); nq -= 1
                    k = -(-len(ex) // rem)
                    for _ in range(k): p.ext(ex.pop(0))
                while nq > 0 and dq: p.ext(dq.pop(0)); nq -= 1
                assert not rd and not ex
        assert not dq
        self.stamp(p, "gemm")
        w2 = []
        for i in range(15):
            w2 += self.w2_reads(i, v2a)
            if i + 6 < 15: w2 += self.w2_dma(i + 6)
        T = 2; vWp = vFr; vKf = vFr + 8; vPh = vFr + 24
        e = P()
        e("s_lshl_b32 s3, s%d, 1\ns_lshr_b32 s%d, s%d, 1\ns_add_u32 s3, s3, s%d\ns_mul_i32 s%d, s3, 245760" % (sT, sTmp, sWave, sTmp, sHo))
        e("s_and_b32 s%d, s%d, 1" % (sStr, sWave))
        ev = o.get("ev", 6)
        if not B:
            e.ext(self.wphi_read(vWp))
            vV = vXa
            e("v_and_b32 v2, 31, v1\nv_lshrrev_b32 v3, 5, v1\nv_bfe_u32 v4, v1, 1, 2\nv_lshlrev_b32 v5, 1, v3\nv_xor_b32 v4, v4, v5\nv_lshlrev_b32 v4, 4, v4\nv_lshl_add_u32 v4, v2, 6, v4")
            e("s_lshr_b32 s%d, s%d, 1\ns_lshl_b32 s3, s%d, 2\ns_add_u32 s%d, s%d, s3" % (sTmp, sWave, sStr, sTmp, sTmp))
            e("s_lshl_b32 s3, s%d, 12\ns_add_u32 s3, s3, %d\nv_add_u32 v29, s3, v4\nv_xor_b32 v36, 16, v29" % (sTmp, WS[1]))
            e("v_bfe_u32 v4, v1, 2, 1\nv_xor_b32 v4, v4, v3\nv_lshlrev_b32 v4, 4, v4\nv_lshl_add_u32 v4, v2, 5, v4")
            e("s_lshl_b32 s3, s%d, 11\ns_add_u32 s3, s3, %d\nv_add_u32 v30, s3, v4" % (sTmp, XS[1]))
            e("v_lshlrev_b32 v35, 2, v2\nv_lshl_add_u32 v35, v3, 9, v35")
            items = [(b, tb) for b in range(2) for tb in range(2)]
            for k, (b, tb) in enumerate(items):
                a = acc(b, tb)
                for i in range(4): e("v_cvt_pk_bf16_f32 v%d, v%d, v%d" % (vKf + 4 * k + i, a + 2 * i, a + 2 * i + 1))
                for i in range(4): e("v_cvt_pk_bf16_f32 v%d, v%d, v%d" % (vPh + 4 * k + i, a + 8 + 2 * i, a + 9 + 2 * i))
                e("ds_write_b128 v30, %s offset:%d" % (vr(vPh + 4 * k), b * 4096 + tb * 1024))
                e("v_mfma_f32_32x32x16_bf16 %s, %s, %s, 0" % (vr(a, 16), vr(vWp + 4 * b), vr(vKf + 4 * k)))
            e("v_bfe_u32 v4, v1, 2, 2\nv_lshl_add_u32 v5, v3, 2, v4")
            e("v_bfe_u32 v6, v1, 1, 1\nv_bfe_u32 v7, v1, 4, 1\nv_lshl_or_b32 v8, v7, 1, v6\nv_lshrrev_b32 v9, 1, v5\nv_xor_b32 v8, v8, v9\nv_lshlrev_b32 v8, 4, v8")
            e("v_and_b32 v9, 1, v1\nv_lshl_add_u32 v8, v9, 3, v8\nv_lshl_add_u32 v8, v5, 6, v8\ns_lshl_b32 s3, s%d, 13\ns_add_u32 s3, s3, %d\nv_add_u32 v31, s3, v8" % (sWave, WS[1]))
            e("v_xor_b32 v9, v9, v3\nv_lshlrev_b32 v9, 4, v9\nv_lshl_add_u32 v9, v6, 3, v9\nv_lshl_add_u32 v9, v5, 5, v9\ns_add_u32 s3, s%d, %d\nv_add_u32 v32, s3, v9" % (sMx, XS[1]))
            e("v_add_u32 v33, -1, v7\nv_mul_u32_u24 v34, 0x3f80, v7\nv_lshl_or_b32 v34, v34, 16, v34")
            for k, (b, tb) in enumerate(items):
                ph = vPh + 16 + 8 * (k & 1)
                e.ext(self.softmax(acc(b, tb), T, ph))
                e("ds_write_b128 v29, %s offset:%d\nds_write_b128 v36, %s offset:%d" % (vr(ph), b * 8192 + tb * 2048, vr(ph + 4), b * 8192 + tb * 2048))
            l, w2 = merge(e.l, w2, 0, 1, ev); p.ext(l); e = P()
            p("@wait lg:all\ns_barrier")
            self.stamp(p, "ksm")
            kv = vAcc + 128
            fa = lambda s: vAcc + 8 * s
            for s in range(8):
                for half in range(2): p("ds_read_b64_tr_b16 %s, v32 offset:%d" % (vr(fa(s) + 2 * half, 2), s * 512 + half * 256))
                for half in range(2): p("ds_read_b64_tr_b16 %s, v31 offset:%d" % (vr(fa(s) + 4 + 2 * half, 2), s * 1024 + half * 512))
                if s >= 2:
                    for i in range(4): p("v_and_or_b32 v%d, v%d, v33, v34" % (fa(s - 2) + i, fa(s - 2) + i))
                if s >= 3: p("v_mfma_f32_32x32x16_bf16 %s, %s, %s, %s" % (vr(kv, 16), vr(fa(s - 3)), vr(fa(s - 3) + 4), "0" if s == 3 else vr(kv, 16)))
            for s in (8, 9, 10):
                if s < 10:
                    for i in range(4): p("v_and_or_b32 v%d, v%d, v33, v34" % (fa(s - 2) + i, fa(s - 2) + i))
                p("v_mfma_f32_32x32x16_bf16 %s, %s, %s, %s" % (vr(kv, 16), vr(fa(s - 3)), vr(fa(s - 3) + 4), vr(kv, 16)))
            p("s_lshl_b32 s%d, s%d, 1\ns_add_u32 s%d, s%d, s%d" % (sTmp, sStr, sTmp, sTmp, sFfn)); self.hpos(p, sWa, sTmp, 0)
            p("s_add_u32 s%d, s%d, 1" % (sTmp, sTmp)); self.hpos(p, sWb, sTmp, 0)
            for i in range(8): p("buffer_atomic_add_f32 v%d, v35, %s, s%d offen offset:%d" % (kv + i, sr(sH), sM2r, (8 * (i >> 2) + (i & 3)) * 128), tag="kvat")
            p("s_mov_b32 exec_hi, 0\nbuffer_atomic_add_f32 v%d, v35, %s, s%d offen offset:2048" % (kv + 8, sr(sH), sM2r), tag="kvat")
            p("s_mov_b32 exec_hi, -1")
            for k, (b, tb) in enumerate(items):
                e.ext(self.gelu(acc(2 + b, tb), T, sWa if b == 0 else sWb, 1024 * tb))
                if k == o.get("kvflag_at", 2):
                    e("@wait vm:kvat\ns_barrier"); self.flag(e, "kv", B); self.stamp(e, "kvflag")
            l, w2 = merge(e.l, w2, 0, 1, ev); p.ext(l); e = P()
            self.stamp(p, "gelu")
            k = min(len(w2), o.get("w2_drain", 8))
            for c in w2[:k]: p.ext(c)
            w2 = w2[k:]
            p("@wait vm:hst\ns_barrier"); self.flag(p, "h", B)
            self.stamp(p, "hflag")
            for c in w2: p.ext(c)
        else:
            e("s_lshl_b32 s%d, s%d, 10" % (sMq, sStr))
            e("s_mul_i32 s%d, s%d, 3\ns_add_u32 s%d, s%d, s%d" % (sTmp, sStr, sTmp, sTmp, sFfn))
            for b in range(1, 5):
                if b == 4: e("s_add_u32 s%d, s%d, 6" % (sTmp, sFfn))
                self.hpos(e, sWa, sTmp, 0)
                e("s_add_u32 s%d, s%d, s%d\ns_xor_b32 s%d, s%d, 1024\ns_add_u32 s%d, s%d, 1" % (sWa, sWa, sMq, sWb, sWa, sTmp, sTmp))
                e.ext(self.gelu(acc(b, 0), T, sWa, 0))
                if b < 4: e.ext(self.gelu(acc(b, 1), T, sWb, 0))
            self.stamp(e, "gelu")
            e.ext(self.wphi_read(vWp))
            items = [(b, tb) for b in range(2) for tb in range(2)]
            pa = lambda k: vAcc + 32 + 16 * k
            for k, (b, tb) in enumerate(items):
                a = acc(0, tb) + 8 * b
                for i in range(4): e("v_cvt_pk_bf16_f32 v%d, v%d, v%d" % (vKf + 4 * k + i, a + 2 * i, a + 2 * i + 1))
                e("v_mfma_f32_32x32x16_bf16 %s, %s, %s, 0" % (vr(pa(k), 16), vr(vWp + 4 * b), vr(vKf + 4 * k)))
            e("v_lshrrev_b32 v2, 3, v1\nv_and_b32 v3, 7, v1\nv_lshrrev_b32 v4, 4, v1\nv_xor_b32 v3, v3, v4\nv_lshlrev_b32 v3, 4, v3\nv_lshl_add_u32 v29, v2, 7, v3\nv_xor_b32 v30, 64, v29")
            e("v_mov_b32 v2, 0x%x\nv_cmp_gt_u32 vcc, 8, v1\nv_cndmask_b32 v35, v2, v29, vcc" % OOB)
            e("v_and_b32 v2, 31, v1\nv_min_u32 v2, 16, v2\nv_lshrrev_b32 v3, 5, v1\nv_lshlrev_b32 v3, 2, v3\nv_bfe_u32 v4, v2, 1, 3\nv_xor_b32 v3, v3, v4\nv_lshlrev_b32 v3, 4, v3\nv_lshl_add_u32 v3, v2, 7, v3")
            e("s_lshl_b32 s3, s%d, 13\ns_add_u32 s3, s3, %d\nv_add_u32 v31, s3, v3\nv_xor_b32 v32, 16, v31\nv_xor_b32 v33, 32, v31\nv_xor_b32 v34, 48, v31" % (sStr, WS[1]))
            for k, (b, tb) in enumerate(items):
                e.ext(self.softmax(pa(k), T, vPh + 8 * k))
                if k == o.get("hflag_at", 0):
                    e("@wait vm:hst\ns_barrier"); self.flag(e, "h", B); self.stamp(e, "hflag")
            l, w2 = merge(e.l, w2, 0, 1, ev); p.ext(l); e = P()
            for c in w2: p.ext(c)
            self.stamp(p, "qsm")
            self.poll_issue(p, "kv"); self.poll_check(p, "kv")
            p("s_barrier")
            self.stamp(p, "kvseen")
            p("s_lshl_b32 s3, s%d, 2\ns_add_u32 s3, s3, s%d\ns_lshl_b32 s3, s3, 12\ns_add_u32 s3, s3, 0x%x\ns_add_u32 m0, s%d, %d" % (sU, sWave, WS_KV, sMx, WS[1]))
            for j, v in enumerate((29, 30, 35)): p("buffer_load_dwordx4 v%d, %s, s3 offen offset:%d sc1 lds" % (v, sr(sH), 1024 * j), tag="kvz")
            p("s_lshl_b32 s%d, s%d, 2\ns_lshl_b32 s3, s%d, 1\ns_add_u32 s%d, s%d, s3" % (sTmp, sU, sStr, sTmp, sTmp))
            self.hpos(p, sWa, sTmp, 22); p("s_add_u32 s%d, s%d, s%d\ns_add_u32 s%d, s%d, 1" % (sWa, sWa, sMq, sTmp, sTmp))
            self.hpos(p, sWb, sTmp, 22); p("s_add_u32 s%d, s%d, s%d" % (sWb, sWb, sMq))
            p("@wait vm:kvz\ns_barrier")
            kz = vAcc
            for b in range(2):
                for q4 in range(4): p("ds_read_b128 %s, v%d offset:%d" % (vr(kz + 16 * b + 4 * q4), 31 + q4, 4096 * b))
            for b in range(2):
                for i in range(8): p("v_cvt_pk_bf16_f32 v%d, v%d, v%d" % (vKf + 8 * b + i, kz + 16 * b + 2 * i, kz + 16 * b + 2 * i + 1))
                for tb in range(2):
                    k = 2 * b + tb
                    p("v_mfma_f32_32x32x16_bf16 %s, %s, %s, 0" % (vr(pa(k), 16), vr(vKf + 8 * b), vr(vPh + 8 * k)))
                    p("v_mfma_f32_32x32x16_bf16 %s, %s, %s, %s" % (vr(pa(k), 16), vr(vKf + 8 * b + 4), vr(vPh + 8 * k + 4), vr(pa(k), 16)))
            for k, (b, tb) in enumerate(items):
                a = pa(k); so = sWa if b == 0 else sWb
                p("v_add_f32 v%d, 0x%x, v%d\nv_rcp_f32 v%d, v%d" % (a + 8, f2u(1e-6), a + 8, a + 8, a + 8))
                for i in range(4): p("v_pk_mul_f32 %s, %s, %s op_sel_hi:[1,0]" % (vr(a + 2 * i, 2), vr(a + 2 * i, 2), vr(a + 8, 2)))
                for i in range(4): p("v_cvt_pk_bf16_f32 v%d, v%d, v%d" % (a + 12 + i, a + 2 * i, a + 2 * i + 1))
                p("buffer_store_dwordx4 %s, v%d, %s, s%d offen sc1" % (vr(a + 12), vL16, sr(sH), so), tag="ost")
                if tb == 0: p("s_xor_b32 s%d, s%d, 1024" % (so, so))
            self.poll_issue(p, "h")
            p("@wait vm:ost\ns_barrier"); self.flag(p, "o", B)
            self.stamp(p, "oflag")
        if not B: self.poll_issue(p, "h")
        p("s_lshl_b32 s3, s%d, 2\ns_add_u32 s3, s3, s%d\ns_mul_i32 s%d, s3, 61440" % (sTT, sWave, sHo))
        p("s_cmp_ge_u32 s%d, 2\ns_cselect_b32 s3, 0x%x, 0\nv_add_u32 v2, s3, v%d" % (sWave, OOB, vL16))
        p("v_and_b32 v3, 31, v1\nv_lshlrev_b32 v3, 2, v3\ns_lshl_b32 s%d, s%d, 8\ns_add_u32 s%d, s%d, 0x%x" % (sTmp, sTT, sTmp, sTmp, WS_G))
        p("v_mov_b32 v15, v%d" % vPoll8); self.poll_check(p, "h")
        p("@wait lg:all\ns_barrier")
        self.stamp(p, "hseen")
        PF = o["pf"]; NR = 14
        hf = lambda st, tb: 16 + 8 * (st % NR) + 4 * tb
        a2 = lambda part, cb, tb: 128 + 64 * part + 32 * cb + 16 * tb
        def hload(st):
            q = P()
            for tb in range(2):
                q("buffer_load_dwordx4 %s, v%d, %s, s%d offen offset:%d sc1" % (vr(hf(st, tb)), 2 if st == 21 else vL16, sr(sH), sHo, (st & 1) * 2048 + tb * 1024))
            if st & 1: q("s_add_u32 s%d, s%d, 4096" % (sHo, sHo))
            return q
        for st in range(PF): p.ext(hload(st))
        p("buffer_load_dword v4, v3, %s, s%d offen sc1\nbuffer_load_dword v6, v3, %s, s%d offen offset:128 sc1" % (sr(sH), sTmp, sr(sH), sTmp))
        sc = P()
        sc("v_sub_f32 v8, 1.0, v4\nv_sub_f32 v10, 1.0, v6")
        for cb in range(2):
            for tb in range(2):
                for i in range(8): sc("v_pk_mul_f32 %s, %s, %s op_sel_hi:[1,0]" % (vr(a2(0, cb, tb) + 2 * i, 2), vr(a2(0, cb, tb) + 2 * i, 2), vr(8 + 2 * tb, 2)))
        sc("v_and_b32 v2, 31, v1\nv_lshrrev_b32 v3, 5, v1\nv_and_b32 v5, 7, v1\nv_xor_b32 v3, v3, v5\nv_lshlrev_b32 v3, 4, v3\nv_lshl_add_u32 v3, v2, 8, v3")
        sc("s_lshl_b32 s3, s%d, 14\nv_add_u32 v12, s3, v3\nv_xor_b32 v13, 32, v12\nv_xor_b32 v15, 64, v12\nv_xor_b32 v9, 0x60, v12" % sWave)
        sc("v_lshrrev_b32 v2, 3, v0\nv_and_b32 v3, 7, v2\nv_lshlrev_b32 v7, 1, v5\nv_xor_b32 v3, v3, v7\nv_lshlrev_b32 v3, 4, v3\nv_lshl_add_u32 v3, v2, 8, v3\nv_xor_b32 v7, 16, v3")
        sc("v_lshlrev_b32 v5, 4, v5\nv_lshl_add_u32 v5, v2, 10, v5")
        sc("s_lshl_b32 s%d, s%d, 16\ns_lshl_b32 s3, s%d, 7\ns_add_u32 s%d, s%d, s3\ns_add_u32 s%d, s%d, 32768" % (sWa, sTT, sCT, sWa, sWa, sWb, sWa))
        scl = sc.l
        for st in range(30):
            nx = st + PF
            if nx == 22 - 2: self.poll_issue(p, "o", 15)
            if nx == 22:
                self.poll_check(p, "o", 15); p("s_barrier"); self.stamp(p, "oseen")
            ld = hload(nx).l if nx < 30 else []
            part = 1 if st >= 22 else 0
            for cb in range(2):
                for tb in range(2):
                    a = a2(part, cb, tb)
                    p("v_mfma_f32_32x32x16_bf16 %s, %s, %s, %s" % (vr(a, 16), ar(8 * st + 4 * cb), vr(hf(st, tb)), "0" if st in (0, 22) else vr(a, 16)))
                    if ld: p.ext([ld.pop(0)])
                    if st >= 23:
                        p.ext(scl[:3]); scl = scl[3:]
            assert not ld
        p.ext(scl)
        self.stamp(p, "p2mfma")
        wa = [12, 13, 15, 9]
        for cb in range(2):
            for tb in range(2):
                a = a2(0, cb, tb); b_ = a2(1, cb, tb)
                for j in range(4):
                    for i in (2 * j, 2 * j + 1): p("v_pk_fma_f32 %s, %s, %s, %s op_sel_hi:[1,0,1]" % (vr(a + 2 * i, 2), vr(b_ + 2 * i, 2), vr(4 + 2 * tb, 2), vr(a + 2 * i, 2)))
                    p("ds_write_b128 v%d, %s offset:%d" % (wa[j], vr(a + 4 * j), tb * 8192 + cb * 128))
        p("@wait lg:all\ns_barrier")
        for hh in range(2):
            for w in range(4):
                for i in range(2): p("ds_read_b128 %s, v%d offset:%d" % (vr(16 + 32 * hh + 8 * w + 4 * i), 7 if i else 3, w * 16384 + hh * 8192))
        for hh in range(2):
            b0 = 16 + 32 * hh
            for i in range(4): p("v_pk_add_f32 %s, %s, %s" % (vr(b0 + 2 * i, 2), vr(b0 + 2 * i, 2), vr(b0 + 8 + 2 * i, 2)))
            for i in range(4): p("v_pk_add_f32 %s, %s, %s" % (vr(b0 + 16 + 2 * i, 2), vr(b0 + 16 + 2 * i, 2), vr(b0 + 24 + 2 * i, 2)))
            for i in range(4): p("v_pk_add_f32 %s, %s, %s" % (vr(b0 + 2 * i, 2), vr(b0 + 2 * i, 2), vr(b0 + 16 + 2 * i, 2)))
            for i in range(4): p("v_cvt_pk_bf16_f32 v%d, v%d, v%d" % (b0 + 8 + i, b0 + 2 * i, b0 + 2 * i + 1))
            p("buffer_store_dwordx4 %s, v5, %s, s%d offen %s" % (vr(b0 + 8), sr(sOut), sWb if hh else sWa, o.get("outfl", "").replace("_", " ")))
        if o["stamps"]:
            p("@wait vm:all"); self.stamp(p, "end")
            p("s_waitcnt lgkmcnt(0)", raw=True)
            p("s_lshl_b32 s3, s2, 2\ns_add_u32 s3, s3, s%d\ns_lshl_b32 s3, s3, 6\ns_add_u32 s3, s3, 0x%x" % (sWave, WS_ST))
            p("v_mov_b32 v16, s94")
            for k in range(self.nst): p("v_mov_b32 v%d, s%d" % (17 + k, sStamp + 2 * k))
            p("v_lshlrev_b32 v2, 24, v1")
            for k in range(4): p("buffer_store_dwordx4 %s, v2, %s, s3 offen offset:%d" % (vr(16 + 4 * k), sr(sH), 16 * k))
        if o.get("calib"):
            p("Lcal%s:\ns_memrealtime s[96:97]\ns_waitcnt lgkmcnt(0)\ns_sub_u32 s3, s96, s94\ns_cmp_lt_u32 s3, %d\ns_cbranch_scc1 Lcal%s" % (nm, o["calib"], nm), raw=True)
        p("Lfin%s:" % nm)
        p("s_endpgm")
        return p
    def build(self):
        st = State(); stats = {}
        out = process(self.prologue().l, st, stats)
        stB = st.copy()
        out += process(self.path(False).l, st, stats); self.namesA = list(self.stnames)
        out += process(self.path(True).l, stB, stats); self.namesB = list(self.stnames)
        out.append("Lend:\ns_endpgm")
        self.stats = stats
        hdr = "; @launch grid=(256,1,1) block=(256,1,1) lds=163840\n"
        ex = self.o.get("extra")
        if ex:
            m = "; @launch kernel=%s grid=(256,1,1) block=(256,1,1) lds=163840\n" % KNAME
            e = "; @launch kernel=nop_kernel grid=(1,1,1) block=(64,1,1) lds=0\n"
            hdr = {"pre": e + m, "post": m + e, "only": m, "post2": m + e + e}[ex]
            out.append(".p2align 8\nnop_kernel:\ns_endpgm")
        hdr += '.amdgcn_target "amdgcn-amd-amdhsa--gfx950"\n.text\n.globl %s\n.p2align 8\n.type %s,@function\n%s:\n' % (KNAME, KNAME, KNAME)
        tail = """
.section .rodata,"a"
.p2align 6
.amdhsa_kernel %s
  .amdhsa_next_free_vgpr 512
  .amdhsa_next_free_sgpr 102
  .amdhsa_accum_offset 256
  .amdhsa_group_segment_fixed_size 0
  .amdhsa_kernarg_size 96
  .amdhsa_user_sgpr_count 2
  .amdhsa_user_sgpr_kernarg_segment_ptr 1
  .amdhsa_system_sgpr_workgroup_id_x 1
  .amdhsa_float_denorm_mode_32 3
.end_amdhsa_kernel
""" % KNAME
        if ex: tail += """.p2align 6
.amdhsa_kernel nop_kernel
  .amdhsa_next_free_vgpr 8
  .amdhsa_next_free_sgpr 16
  .amdhsa_accum_offset 8
  .amdhsa_group_segment_fixed_size 0
  .amdhsa_kernarg_size 96
  .amdhsa_user_sgpr_count 2
  .amdhsa_user_sgpr_kernarg_segment_ptr 1
  .amdhsa_system_sgpr_workgroup_id_x 1
.end_amdhsa_kernel
"""
        return hdr + "\n".join(out) + tail
if __name__ == "__main__":
    opts = {}
    for a in sys.argv[2:]:
        k, v = a.split("="); opts[k] = int(v) if v.lstrip("-").isdigit() else v
    g = Gen(**opts)
    open(sys.argv[1], "w").write(g.build())
    print("nops", g.stats)
```

```python
import sys, math, struct
from asmpass import Ins, State, process
KNAME = "gated_mix__linear_kernel_hedgehog__glu_gated_geglu__prompt_kernel"
def f2u(x): return struct.unpack("<I", struct.pack("<f", x))[0]
L2E = math.log2(math.e)
K1 = -2.0 * math.sqrt(2.0 / math.pi) * L2E
K2 = K1 * 0.044715
XS = [0, 16384, 32768]; WS = [49152, 86272, 123392]; MISC = 160512
WS_FL = 0x7C0000; FKV, FHD, FOD = 0, 128, 384
WS_G = 0x780000; WS_KV = 0x790000; WS_ST = 0x800000; WS_SIZE = 0x840000
OOB = 0x40000000
RING = [XS[2], WS[2], WS[2] + 16384, XS[0], WS[0], WS[0] + 16384]
RSET = [0, 1, 2, 0, 0, 1]; RBASE = [0, 65536, WS[2] + 16384]
sX, sW, sQ, sD, sO, sH, sG, sOut, sM, sM2 = 28, 32, 36, 40, 44, 48, 52, 56, 60, 64
(sWave, sT, sU, sFfn, sTT, sCT, sXo, sWa, sWb, sStr, sMx, sMw, sMq, sW2o, sM2r, sTmp, sTmp2, sExp, sHo, sE8) = range(68, 88)
sHs = 28
sOs = 35
sC = 39
sF1, sF2, sPk, sPh, sPo, sGo, sOa, sOb = range(60, 68)
sL2E = 88
sK2 = 90
sPC = 92
sTc = 96
sStamp = 4
def sr(b, n=4): return "s[%d:%d]" % (b, b + n - 1)
def vr(b, n=4): return "v[%d:%d]" % (b, b + n - 1)
def ar(b, n=4): return "a[%d:%d]" % (b, b + n - 1)
vTid, vLane = 0, 1
vT = 2
vFlag, vPoll, vOne, vPr = 10, 11, 12, 13
vL16 = 14; vPoll8 = 15; vDummy = 51
vXo = 16
vWo = 20
vXa = 29
vWa = 37
v2o = 46
vTa = 55; vSign = 50; vK1 = 52
vFr = 56
vAcc = 112
class P:
    def __init__(self): self.l = []
    def __call__(self, s, tag=None, raw=False):
        for x in s.split("\n"):
            if x.strip(): self.l.append(Ins(x, tag, raw))
    def ext(self, o): self.l += o.l if isinstance(o, P) else o
def merge(main, side, start=0, per=1, every=1):
    out = []; k = 0
    for i, x in enumerate(main):
        out.append(x)
        if i >= start and (i - start) % every == every - 1:
            for _ in range(per):
                if k < len(side): out += side[k]; k += 1
    return out, side[k:]

class Gen:
    def __init__(self, **o):
        self.o = dict(stamps=False, p2map="4x8", pf=7, touch="", codepf=True)
        self.o.update(o); self.ntouch = 0; self.nst = 0; self.nlab = 0; self.stnames = []
    def stamp(self, p, name):
        if self.o.get("calat") == name: p("s_memrealtime s[94:95]", raw=True)
        if self.o["stamps"]:
            p("s_memrealtime s[%d:%d]" % (sStamp + 2 * self.nst, sStamp + 2 * self.nst + 1), raw=True)
            self.nst += 1; self.stnames.append(name); assert self.nst <= 12
    def srd(self, p, d, ptr, size):
        p("s_mov_b32 s%d, s%d\ns_mov_b32 s%d, s%d\ns_mov_b32 s%d, 0x%x\ns_mov_b32 s%d, 0x20000" % (d, ptr, d + 1, ptr + 1, d + 2, size, d + 3))
    def touch(self, g):
        p = P(); d = 252 + self.ntouch; self.ntouch += 1
        if g == "w":
            p("s_mul_i32 s3, s2, %d\nv_lshlrev_b32 v2, 7, v0\nv_mov_b32 v3, 0x%x\nv_cmp_gt_u32 vcc, 43, v0\nv_cndmask_b32 v4, v3, v2, vcc" % (43 * 128, OOB))
            p("buffer_load_dword a%d, v4, %s, s3 offen" % (d, sr(sD)))
            p("s_lshl_b32 s3, s2, 11\nv_subrev_u32 v2, 8192, v2\nv_cmp_gt_u32 vcc, 2048, v2\nv_cndmask_b32 v4, v3, v2, vcc")
            p("buffer_load_dword a255, v4, %s, s3 offen" % sr(sO))
        else:
            m = sum(1 << k for k in range(int(g[0]), int(g[1]) + 1)) * 0x01010101
            p("s_mov_b32 exec_lo, 0x%x\ns_mov_b32 exec_hi, 0x%x" % (m, m))
            p("buffer_load_dword a%d, v%d, %s, 0 offen" % (d, vTa, sr(sTc)))
            p("s_mov_b64 exec, -1")
        return p.l
    def touches(self, pos):
        r = []
        for t in self.o.get("touch", "").split(","):
            if t and t.split("@")[1] == pos: r.append(self.touch(t.split("@")[0]))
        return r
    def prologue(self):
        p = P(); o = self.o
        if o["stamps"] or o.get("calib"): p("s_memrealtime s[94:95]", raw=True)
        p("s_load_dwordx16 s[4:19], s[0:1], 0\ns_load_dwordx8 s[20:27], s[0:1], 64")
        p("s_cmp_ge_u32 s2, 256\ns_cbranch_scc1 Lend")
        if o["codepf"]:
            p("s_getpc_b64 s[%d:%d]" % (sPC, sPC + 1))
            p("Lpc:")
            p("s_bitcmp1_b32 s2, 3\ns_cselect_b32 s3, LbodyB-Lpc, 0\nv_lshl_add_u32 v2, v0, 7, s3\nv_cmp_gt_u32 vcc, 160, v0\nv_cndmask_b32 v2, 0, v2, vcc\nv_min_u32 v2, Lend-Lpc, v2")
            p("global_load_dword v%d, v2, s[%d:%d]" % (vDummy, sPC, sPC + 1))
        p("v_and_b32 v1, 63, v0\nv_lshrrev_b32 v2, 6, v0\nv_readfirstlane_b32 s%d, v2" % sWave)
        p("s_and_b32 s%d, s2, 7\ns_lshr_b32 s%d, s2, 3" % (sTmp, sTmp2))
        p("s_lshr_b32 s%d, s%d, 2\ns_lshl_b32 s%d, s%d, 3\ns_lshr_b32 s3, s%d, 2\ns_add_u32 s%d, s%d, s3" % (sT, sTmp, sT, sT, sTmp2, sT, sT))
        p("s_lshl_b32 s%d, s%d, 17\ns_lshl_b32 s3, s%d, 15\ns_add_u32 s%d, s%d, s3" % (sXo, sT, sWave, sXo, sXo))
        p("s_lshl_b32 s%d, s%d, 12" % (sMx, sWave))
        p("v_lshrrev_b32 v2, 3, v1\nv_and_b32 v3, 7, v1\nv_lshrrev_b32 v4, 4, v1\nv_and_b32 v5, 1, v4")
        p("v_xor_b32 v6, v3, v4\nv_lshlrev_b32 v6, 4, v6\nv_lshl_add_u32 v%d, v2, 10, v6" % vXo)
        p("v_xor_b32 v6, 64, v%d\nv_add_u32 v%d, 7168, v6\nv_add_u32 v%d, 14336, v%d\nv_add_u32 v%d, 21504, v6" % (vXo, vXo + 1, vXo + 2, vXo, vXo + 3))
        tw = any(t and t[0] != "w" for t in o.get("touch", "").split(","))
        if tw:
            p("s_mov_b32 s3, 176128\ns_cmp_eq_u32 s%d, 1\ns_cselect_b32 s%d, 196608, s3\ns_lshl_b32 s%d, s%d, 3" % (sWave, sWa, sTc + 2, sWa))
            p("s_cmp_eq_u32 s%d, 0\ns_cselect_b32 s%d, 128, s%d\ns_cselect_b32 s%d, 8, 6\ns_cselect_b32 s%d, 10, 7\ns_cselect_b32 s%d, 0x200000, s%d" % (sWave, sWa, sWa, sWb, sStr, sTc + 2, sTc + 2))
            p("s_mul_i32 s3, s2, s%d\nv_add_u32 v6, s3, v2\nv_lshlrev_b32 v6, s%d, v6\nv_mad_u32_u24 v6, v3, s%d, v6" % (sWb, sStr, sWa))
            p("v_mov_b32 v7, 0x%x\nv_cmp_gt_u32 vcc, s%d, v2\nv_cndmask_b32 v%d, v7, v6, vcc\ns_mov_b32 s%d, 0x20000" % (OOB, sWb, vTa, sTc + 3))
        p("s_and_b32 s3, s%d, 3\ns_mul_i32 s%d, s3, 22\ns_lshl_b32 s%d, s3, 1\ns_bfe_u32 s3, s%d, 0x10001\ns_add_u32 s%d, s%d, s3" % (sTmp, sFfn, sU, sTmp2, sU, sU))
        if self.o["p2map"] == "4x8":
            p("s_lshl_b32 s%d, s%d, 2\ns_lshr_b32 s3, s%d, 3\ns_add_u32 s%d, s%d, s3\ns_and_b32 s%d, s%d, 7" % (sTT, sTmp, sTmp2, sTT, sTT, sCT, sTmp2))
        else:
            p("s_lshr_b32 s%d, s%d, 1\ns_lshl_b32 s%d, s%d, 3\ns_lshr_b32 s3, s%d, 2\ns_add_u32 s%d, s%d, s3" % (sTT, sTmp, sTT, sTT, sTmp2, sTT, sTT))
            p("s_and_b32 s%d, s%d, 1\ns_lshl_b32 s%d, s%d, 2\ns_and_b32 s3, s%d, 3\ns_add_u32 s%d, s%d, s3" % (sCT, sTmp, sCT, sCT, sTmp2, sCT, sCT))
        p("v_lshlrev_b32 v6, 2, v5\nv_xor_b32 v6, v3, v6\nv_lshlrev_b32 v7, 4, v6")
        self.srd(p, sX, 4, 2048 * 1024)
        if tw:
            p("s_bitcmp1_b32 s%d, 0\ns_cselect_b64 s[%d:%d], s[6:7], s[4:5]\ns_cselect_b64 s[100:101], s[16:17], s[14:15]" % (sWave, sTc, sTc + 1))
            p("s_cmp_lt_u32 s%d, 2\ns_cselect_b64 s[%d:%d], s[%d:%d], s[100:101]" % (sWave, sTc, sTc + 1, sTc, sTc + 1))
        for c in self.touches("pre"): p.ext(c)
        for c in self.slab_dma(False, 0)[:4]: p.ext(c)
        for c in self.touches("x0"): p.ext(c)
        p("s_bitcmp0_b32 s2, 3\ns_cbranch_scc1 LpathA")
        return p
    def setup(self, B):
        p = P(); o = self.o
        if B: p("s_and_b32 s3, s%d, 1\ns_mul_i32 s3, s3, 7\ns_add_u32 s%d, s%d, s3\ns_add_u32 s%d, s%d, 8" % (sU, sFfn, sFfn, sFfn, sFfn))
        else: p("s_and_b32 s3, s%d, 1\ns_lshl_b32 s3, s3, 2\ns_add_u32 s%d, s%d, s3" % (sU, sFfn, sFfn))
        if not B:
            p("s_movk_i32 s3, 2752\ns_cmp_lt_u32 s%d, 2\ns_cselect_b32 s%d, 3072, s3" % (sWave, sStr))
            p("s_lshl_b32 s3, s%d, 7\ns_lshl_b32 s%d, s%d, 10\ns_add_u32 s3, s3, s%d\ns_add_u32 s3, s3, 1024\ns_lshl_b32 s%d, s%d, 5" % (sU, sTmp, sWave, sTmp, sTmp, sFfn))
            p("s_cmp_lt_u32 s%d, 2\ns_cselect_b32 s%d, s3, s%d" % (sWave, sWa, sTmp))
            p("s_lshl_b32 s3, s%d, 5\ns_add_u32 s%d, s%d, s3" % (sStr, sWb, sWa))
            p("s_and_b32 s3, s%d, 1\ns_lshl_b32 s3, s3, 2" % sWave)
            p("v_lshlrev_b32 v6, 1, v5\nv_xor_b32 v6, v3, v6\nv_xor_b32 v6, s3, v6\nv_lshlrev_b32 v6, 4, v6")
            p("v_mad_u32_u24 v%d, v2, s%d, v6" % (vWo, sStr))
            p("s_lshl_b32 s3, s%d, 3\ns_sub_u32 s3, s3, 1024" % sStr)
            for j in range(1, 4): p("v_add_u32 v%d, s3, v%d" % (vWo + j, vWo + j - 1))
            p("s_lshl_b32 s%d, s%d, 6\ns_lshl_b32 s%d, s%d, 13" % (sStr, sStr, sMw, sWave))
        else:
            p("s_mul_i32 s%d, s%d, %d\ns_lshl_b32 s3, s%d, 7\ns_add_u32 s%d, s%d, s3" % (sWb, sWave, 16 * 3072, sU, sWb, sWb))
            p("s_and_b32 s%d, s%d, 1\ns_mul_i32 s%d, s%d, %d\ns_lshl_b32 s3, s%d, 5\ns_add_u32 s%d, s%d, s3" % (sTmp, sWave, sWa, sTmp, 32 * 2752, sFfn, sWa, sWa))
            p("s_mul_i32 s%d, s%d, 7168\ns_lshr_b32 s3, s%d, 1\ns_mul_i32 s3, s3, 14464\ns_add_u32 s%d, s%d, s3\ns_add_u32 s%d, s%d, 8192" % (sMw, sTmp, sWave, sMw, sMw, sMw, sMw))
            p("s_lshl_b32 s%d, s%d, 11" % (sMq, sWave))
            p("v_mul_u32_u24 v6, 3072, v2\nv_add_u32 v%d, v6, v7\nv_add_u32 v%d, %d, v%d" % (vWo, vWo + 1, 8 * 3072 - 1024, vWo))
            for j in range(7):
                r = vWo + 2 + j
                p("v_add_u32 v6, %d, v1\nv_mul_u32_u24 v8, 4682, v6\nv_lshrrev_b32 v8, 16, v8" % (64 * j))
                p("v_mul_u32_u24 v8, %d, v8\nv_lshl_add_u32 v%d, v6, 4, v8" % (2752 - 224, r))
                if j & 3: p("v_subrev_u32 v%d, %d, v%d" % (r, 1024 * (j & 3), r))
        if not B:
            p("s_cmp_eq_u32 s%d, 2\ns_cselect_b64 s[%d:%d], s[14:15], s[16:17]" % (sWave, sW, sW + 1))
            p("s_cmp_lt_u32 s%d, 2\ns_cselect_b64 s[%d:%d], s[6:7], s[%d:%d]\ns_cselect_b32 s%d, 0x%x, 0" % (sWave, sW, sW + 1, sW, sW + 1, sW + 2, 512 * 3072 - 512 * 2752))
            p("s_add_u32 s%d, s%d, 0x%x\ns_mov_b32 s%d, 0x20000" % (sW + 2, sW + 2, 512 * 2752, sW + 3))
        else:
            p("s_cmp_lt_u32 s%d, 2\ns_cselect_b64 s[%d:%d], s[14:15], s[16:17]" % (sWave, sW, sW + 1))
            p("s_mov_b32 s%d, 0x%x\ns_mov_b32 s%d, 0x20000" % (sW + 2, 512 * 2752, sW + 3))
            self.srd(p, sQ, 6, 512 * 3072)
        q = P()
        q("v_lshl_add_u32 v%d, v2, 10, v7\nv_add_u32 v%d, 7168, v%d\nv_add_u32 v%d, %d, v%d\nv_add_u32 v%d, %d, v%d" % (v2o, v2o + 1, v2o, v2o + 2, 65536 - 2048, v2o, v2o + 3, 65536 - 2048, v2o + 1))
        self.srd(q, sD, 18, 1376 * 1024); self.srd(q, sO, 10, 512 * 1024); self.srd(q, sH, 26, WS_SIZE)
        self.srd(q, sG, 24, 256); self.srd(q, sOut, 22, 2048 * 1024); self.srd(q, sM, 8, 16384); self.srd(q, sM2, 20, 1024)
        q("v_lshlrev_b32 v%d, 4, v1" % vL16)
        q("v_mov_b32 v%d, 1\nv_mov_b32 v6, 0x%x\nv_cmp_eq_u32 vcc, 0, v0\nv_cndmask_b32 v%d, v6, 0, vcc" % (vOne, OOB, vFlag))
        q("v_lshlrev_b32 v7, 7, v0\nv_cmp_gt_u32 vcc, 16, v0\nv_cndmask_b32 v%d, v6, v7, vcc\nv_cmp_gt_u32 vcc, 8, v0\nv_cndmask_b32 v%d, v6, v7, vcc" % (vPoll, vPoll8))
        q("s_mov_b32 s%d, 0x%x\ns_mov_b32 s%d, 0x%x\ns_mov_b32 s%d, 0x%x\ns_mov_b32 s%d, 0x%x\nv_mov_b32 v%d, 0x%x" % (sL2E, f2u(L2E), sL2E + 1, f2u(L2E), sK2, f2u(K2), sK2 + 1, f2u(K2), vK1, f2u(K1)))
        q("s_cmp_eq_u32 s%d, 0\ns_cselect_b32 s%d, 0xffff, 0\ns_cselect_b32 s%d, 0xff, 0" % (sWave, sExp, sE8))
        q("v_bfe_u32 v6, v1, 2, 1\nv_mul_u32_u24 v6, 0x8000, v6\nv_lshl_or_b32 v%d, v6, 16, v6" % vSign)
        q("s_lshl_b32 s%d, s%d, 14\ns_lshl_b32 s3, s%d, 7\ns_add_u32 s%d, s%d, s3" % (sW2o, sWave, sCT, sW2o, sW2o))
        q("v_and_b32 v2, 31, v1\nv_lshrrev_b32 v3, 5, v1\nv_bfe_u32 v6, v2, 1, 3\nv_xor_b32 v6, v3, v6\nv_lshlrev_b32 v6, 4, v6\nv_lshl_add_u32 v6, v2, 7, v6")
        if B: q("s_lshl_b32 s3, s%d, 12" % sWave)
        else: q("s_lshr_b32 s3, s%d, 1\ns_lshl_b32 s3, s3, 13" % sWave)
        q("v_add_u32 v%d, s3, v6" % vXa)
        for s in range(1, 4): q("v_xor_b32 v%d, %d, v%d" % (vXa + s, s << 5, vXa))
        if B:
            for s in range(4): q("v_xor_b32 v%d, 0x1000, v%d" % (vXa + 4 + s, vXa + s))
        q("v_bfe_u32 v4, v1, 2, 2\nv_lshrrev_b32 v6, 1, v4\nv_and_b32 v7, 3, v1\nv_lshlrev_b32 v7, 3, v7\nv_lshl_add_u32 v8, v3, 3, v4")
        q("s_and_b32 s%d, s%d, 1\ns_lshl_b32 s3, s%d, 1" % (sTmp, sWave, sTmp))
        if not B:
            q("v_lshl_or_b32 v9, v5, 1, v6\nv_xor_b32 v9, s3, v9\nv_lshl_add_u32 v9, v9, 5, v7\nv_lshl_add_u32 v9, v8, 7, v9\nv_lshl_add_u32 v9, v5, 13, v9")
            for sl in range(3): q("v_add_u32 v%d, %d, v9\nv_xor_b32 v%d, 32, v%d" % (vWa + 3 * sl, WS[sl], vWa + 3 * sl + 1, vWa + 3 * sl))
        else:
            q("v_lshl_or_b32 v9, v6, 1, v5\nv_xor_b32 v9, s3, v9\nv_lshl_add_u32 v9, v9, 5, v7\nv_lshl_add_u32 v9, v8, 7, v9")
            for sl in range(3): q("v_add_u32 v%d, %d, v9" % (vWa + 3 * sl, WS[sl]))
            q("v_mul_u32_u24 v9, 224, v8\nv_add_u32 v9, v9, v7\nv_mul_u32_u24 v8, 14464, v5\nv_add_u32 v9, v9, v8\ns_mul_i32 s3, s%d, 96" % sTmp)
            for sl in range(3): q("v_add_u32 v%d, %d, v9\nv_add_u32 v%d, s3, v%d\nv_add_u32 v%d, 192, v%d" % (vWa + 3 * sl + 2, WS[sl] + 8192, vWa + 3 * sl + 1, vWa + 3 * sl + 2, vWa + 3 * sl + 2, vWa + 3 * sl + 2))
        return p, q
    def slab_dma(self, B, sg):
        sl = sg % 3; tag = "slab%d" % sg; ch = []
        def dma(pre, v, srd, so, imm, post=""):
            p = P()
            if pre: p(pre)
            p("buffer_load_dwordx4 v%d, %s, s%d offen offset:%d lds" % (v, sr(srd), so, imm), tag=tag)
            if post: p(post)
            ch.append(p.l)
        for j in range(4):
            dma("s_add_u32 m0, s%d, %d" % (sMx, XS[sl]) if j == 0 else "", vXo + j, sX, sXo, 1024 * j, "s_add_u32 s%d, s%d, 128" % (sXo, sXo) if j == 3 else "")
        if not B:
            for j in range(8):
                so = sWa if j < 4 else sWb
                dma("s_add_u32 m0, s%d, %d" % (sMw, WS[sl] + 1024 * j) if j % 4 == 0 else "", vWo + j % 4, sW, so, 1024 * (j % 4), "s_add_u32 s%d, s%d, s%d" % (so, so, sStr) if j % 4 == 3 else "")
        else:
            for j in range(2):
                dma("s_add_u32 m0, s%d, %d" % (sMq, WS[sl]) if j == 0 else "", vWo + j, sQ, sWb, 1024 * j, "s_add_u32 s%d, s%d, %d" % (sWb, sWb, 64 * 3072) if j == 1 else "")
            for j in range(7):
                dma("s_add_u32 m0, s%d, %d" % (sMw, WS[sl] + 1024 * j) if j % 4 == 0 else "", vWo + 2 + j, sW, sWa, 1024 * (j % 4), "s_add_u32 s%d, s%d, %d" % (sWa, sWa, 64 * 2752) if j == 6 else "")
        return ch
    def w2_dma(self, i):
        ch = []
        for j in range(4):
            p = P()
            if j == 0:
                if i >= 6: p("@wait lg:w2r%d" % (i - 6))
                p("s_add_u32 m0, s%d, %d" % (sMx, RING[i % 6]))
            p("buffer_load_dwordx4 v%d, %s, s%d offen offset:%d lds" % (v2o + j, sr(sD if i < 11 else sO), sW2o, 1024 * j), tag="w2d%d" % i)
            if j == 3:
                if i == 10: p("s_sub_u32 s%d, s%d, %d" % (sW2o, sW2o, 10 * 131072))
                else: p("s_add_u32 s%d, s%d, %d" % (sW2o, sW2o, 131072))
            ch.append(p.l)
        return ch
    def w2_reads(self, i, va):
        ch = []
        rs = RSET[i % 6]; off = RING[i % 6] - RBASE[rs]
        for st in range(2):
            for cb in range(2):
                p = P()
                if st == 0 and cb == 0: p("@wait vm:w2d%d" % i)
                for half in range(2):
                    d = 8 * (2 * i + st) + 4 * cb + 2 * half
                    p("ds_read_b64_tr_b16 %s, v%d offset:%d" % (ar(d, 2), va + 2 * rs + cb, off + st * 2048 + half * 1024), tag="w2r%d" % i)
                ch.append(p.l)
        return ch
    def w2_addr(self, va):
        p = P()
        p("v_bfe_u32 v2, v1, 2, 2\nv_lshrrev_b32 v3, 5, v1\nv_lshl_add_u32 v3, v3, 2, v2\nv_and_b32 v2, 2, v2\nv_bfe_u32 v4, v1, 4, 1\nv_or_b32 v2, v2, v4")
        p("v_and_b32 v4, 3, v1\nv_lshlrev_b32 v4, 3, v4\nv_lshl_add_u32 v4, v2, 5, v4\nv_lshl_add_u32 v4, v3, 7, v4\nv_add_u32 v%d, s%d, v4\nv_xor_b32 v%d, 64, v%d" % (va, sMx, va + 1, va))
        for k in (1, 2): p("v_add_u32 v%d, %d, v%d\nv_add_u32 v%d, %d, v%d" % (va + 2 * k, RBASE[k], va, va + 2 * k + 1, RBASE[k], va + 1))
        return p
    def flag_off(self, p, kind, B, d):
        if kind == "kv": p("s_lshl_b32 s%d, s%d, 4\ns_add_u32 s%d, s%d, s%d\ns_lshl_b32 s%d, s%d, 7" % (d, sU, d, d, sT, d, d)); base = FKV
        elif kind == "h": p("s_lshl_b32 s%d, s%d, 3\ns_add_u32 s%d, s%d, s%d\ns_lshl_b32 s%d, s%d, 8" % (d, sT, d, d, sU, d, d)); base = FHD + (1 if B else 0)
        else: p("s_lshl_b32 s%d, s%d, 3\ns_add_u32 s%d, s%d, s%d\ns_lshl_b32 s%d, s%d, 7" % (d, sT, d, d, sU, d, d)); base = FOD
        p("s_add_u32 s%d, s%d, 0x%x" % (d, d, WS_FL + base * 128))
    def flag(self, p, d):
        p("buffer_store_dword v%d, v%d, %s, s%d offen sc1" % (vOne, vFlag, sr(sH), d))
    def poll_off(self, p, kind):
        d = {"kv": sPk, "h": sPh, "o": sPo}[kind]
        if kind == "kv": p("s_lshl_b32 s%d, s%d, 11\ns_add_u32 s%d, s%d, 0x%x" % (d, sU, d, d, WS_FL + FKV * 128))
        elif kind == "h": p("s_lshr_b32 s%d, s%d, 1\ns_lshl_b32 s%d, s%d, 11\ns_add_u32 s%d, s%d, 0x%x" % (d, sTT, d, d, d, d, WS_FL + FHD * 128))
        else: p("s_lshr_b32 s%d, s%d, 1\ns_lshl_b32 s%d, s%d, 10\ns_add_u32 s%d, s%d, 0x%x" % (d, sTT, d, d, d, d, WS_FL + FOD * 128))
    def poll_ins(self, kind):
        if kind == "init": return "buffer_load_dword v%d, v54, %s, 0 offen sc1" % (vPr, sr(sG))
        return "buffer_load_dword v%d, v%d, %s, s%d offen sc1" % (vPr, vPoll8 if kind == "o" else vPoll, sr(sH), {"kv": sPk, "h": sPh, "o": sPo}[kind])
    def poll_issue(self, p, kind):
        if kind == "init": p("v_lshrrev_b32 v54, 5, v%d" % vPoll8)
        p(self.poll_ins(kind))
    def poll_check(self, p, kind):
        k = self.nlab; self.nlab += 1
        e = sE8 if kind in ("init", "o") else sExp
        p("v_cmp_eq_u32 vcc, 1, v%d\ns_nop 1\ns_and_b32 s3, vcc_lo, s%d\ns_cmp_eq_u32 s3, s%d\ns_cbranch_scc1 Lok%d" % (vPr, e, e, k))
        p("s_mov_b32 s%d, 0\nLsp%d:\ns_sleep %d\n%s\ns_waitcnt vmcnt(0)" % (sTmp2, k, self.o.get("sleep", 2), self.poll_ins(kind)), raw=True)
        p("v_cmp_eq_u32 vcc, 1, v%d\ns_add_u32 s%d, s%d, 1\ns_nop 0\ns_and_b32 s3, vcc_lo, s%d\ns_cmp_eq_u32 s3, s%d\ns_cbranch_scc1 Lok%d\ns_cmp_lt_u32 s%d, 0x8000\ns_cbranch_scc1 Lsp%d\nLok%d:" % (vPr, sTmp2, sTmp2, e, e, k, sTmp2, k, k), raw=True)
    def gate_job(self, B):
        ld = P(); c = P()
        ld("s_lshl_b32 s3, s%d, 4\ns_lshl_b32 s%d, s%d, 1\ns_add_u32 s3, s3, s%d\ns_add_u32 s3, s3, %d" % (sT, sTmp, sU, sTmp, 1 if B else 0))
        ld("s_lshl_b32 s3, s3, 2\ns_add_u32 s3, s3, s%d\ns_lshl_b32 s%d, s3, 3\ns_lshl_b32 s3, s3, 11" % (sWave, sHo))
        ld("buffer_load_dwordx4 a[240:243], v%d, %s, s3 offen\nbuffer_load_dwordx4 a[244:247], v%d, %s, s3 offen offset:1024" % (vL16, sr(sX), vL16, sr(sX)))
        ld("buffer_load_dwordx4 a[248:251], v%d, %s, 0 offen" % (vL16, sr(sM2)))
        for i in range(4):
            c("v_accvgpr_read_b32 v4, a%d\nv_accvgpr_read_b32 v5, a%d\nv_accvgpr_read_b32 v6, a%d" % (240 + i, 244 + i, 248 + i))
            c("v_lshlrev_b32 v7, 16, v4\nv_lshlrev_b32 v8, 16, v5\nv_lshlrev_b32 v9, 16, v6")
            if i == 0: c("v_mul_f32 v2, v7, v9\nv_mul_f32 v3, v8, v9")
            else: c("v_fmac_f32 v2, v7, v9\nv_fmac_f32 v3, v8, v9")
            c("v_and_b32 v4, 0xffff0000, v4\nv_and_b32 v5, 0xffff0000, v5\nv_and_b32 v6, 0xffff0000, v6")
            c("v_fmac_f32 v2, v4, v6\nv_fmac_f32 v3, v5, v6")
        c("v_permlane32_swap_b32 v2, v3\nv_add_f32 v2, v2, v3")
        for r in (8, 4, 2, 1): c("v_add_f32_dpp v2, v2, v2 row_ror:%d row_mask:0xf bank_mask:0xf" % r)
        c("v_mov_b32 v3, v2\nv_permlane16_swap_b32 v2, v3\nv_add_f32 v2, v2, v3")
        c("v_mul_f32 v2, 0x%x, v2\nv_exp_f32 v2, v2\nv_add_f32 v2, 1.0, v2\nv_rcp_f32 v2, v2" % f2u(-L2E))
        c("v_and_b32 v3, 31, v1\nv_lshlrev_b32 v3, 25, v3\nv_lshrrev_b32 v4, 3, v1\nv_or_b32 v3, v3, v4")
        c("s_add_u32 s3, s%d, 0x%x" % (sHo, WS_G))
        c("buffer_store_dword v2, v3, %s, s3 offen sc1" % sr(sH), tag="hst")
        return ld, c
    def wphi_load(self):
        p = P()
        p("s_and_b32 s3, s%d, 1\ns_lshl_b32 s3, s3, 10\ns_add_u32 m0, s3, %d\ns_lshl_b32 s%d, s%d, 11\ns_add_u32 s3, s3, s%d" % (sWave, MISC, sTmp, sU, sTmp))
        p("buffer_load_dwordx4 v%d, %s, s3 offen lds" % (vL16, sr(sM)), tag="wphi")
        return p
    def wphi_read(self):
        p = P(); q = P()
        p("v_bfe_u32 v2, v1, 2, 2\nv_lshrrev_b32 v3, 5, v1\nv_lshl_add_u32 v3, v3, 2, v2\nv_bfe_u32 v2, v1, 1, 1\nv_and_b32 v4, 16, v1\nv_lshl_add_u32 v4, v2, 3, v4\nv_lshl_add_u32 v4, v3, 5, v4")
        p("s_and_b32 s3, s%d, 1\ns_lshl_b32 s3, s3, 10\ns_add_u32 s3, s3, %d\nv_add_u32 v54, s3, v4" % (sWave, MISC))
        p("@wait vm:wphi")
        for b in range(2):
            for half in range(2): p("ds_read_b64_tr_b16 %s, v54 offset:%d" % (vr(2 + 4 * b + 2 * half, 2), b * 512 + half * 256))
        for i in range(8): q("v_xor_b32 v%d, v%d, v%d" % (2 + i, 2 + i, vSign))
        for i in range(8): q("v_accvgpr_write_b32 a%d, v%d" % (240 + i, 2 + i))
        return p, q
    def softmax(self, Pr, T, out):
        p = P()
        for k in range(5): p("v_max3_f32 v%d, v%d, v%d, v%d" % (T + k, Pr + 3 * k, Pr + 3 * k + 1, Pr + 3 * k + 2))
        p("v_max3_f32 v%d, v%d, v%d, v%d\nv_max3_f32 v%d, v%d, v%d, v%d\nv_max_f32 v%d, v%d, v%d" % (T, T, T + 1, Pr + 15, T + 2, T + 2, T + 3, T + 4, T, T, T + 2))
        p("v_mul_f32 v%d, 0x%x, v%d" % (T, f2u(-L2E), T))
        for k in range(8): p("v_pk_fma_f32 %s, %s, %s, %s op_sel_hi:[1,0,0]" % (vr(Pr + 2 * k, 2), vr(Pr + 2 * k, 2), sr(sL2E, 2), vr(T, 2)))
        for k in range(16): p("v_exp_f32 v%d, v%d" % (Pr + k, Pr + k))
        for k in range(4): p("v_pk_add_f32 %s, %s, %s" % (vr(T + 2 * k, 2), vr(Pr + 4 * k, 2), vr(Pr + 4 * k + 2, 2)))
        p("v_pk_add_f32 %s, %s, %s\nv_pk_add_f32 %s, %s, %s\nv_pk_add_f32 %s, %s, %s" % (vr(T, 2), vr(T, 2), vr(T + 2, 2), vr(T + 4, 2), vr(T + 4, 2), vr(T + 6, 2), vr(T, 2), vr(T, 2), vr(T + 4, 2)))
        p("v_add_f32 v%d, v%d, v%d\nv_rcp_f32 v%d, v%d" % (T, T, T + 1, T, T))
        for k in range(8): p("v_pk_mul_f32 %s, %s, %s op_sel_hi:[1,0]" % (vr(Pr + 2 * k, 2), vr(Pr + 2 * k, 2), vr(T, 2)))
        for k in range(8): p("v_cvt_pk_bf16_f32 v%d, v%d, v%d" % (out + k, Pr + 2 * k, Pr + 2 * k + 1))
        return p
    def gelu(self, a, T, soff, imm):
        p = P()
        for k in range(4): p("v_pk_mul_f32 %s, %s, %s" % (vr(T + 2 * k, 2), vr(a + 2 * k, 2), vr(a + 2 * k, 2)))
        for k in range(4): p("v_pk_fma_f32 %s, %s, %s, %s op_sel_hi:[1,0,0]" % (vr(T + 2 * k, 2), vr(T + 2 * k, 2), sr(sK2, 2), vr(vK1, 2)))
        for k in range(4): p("v_pk_mul_f32 %s, %s, %s" % (vr(T + 2 * k, 2), vr(T + 2 * k, 2), vr(a + 2 * k, 2)))
        for k in range(8): p("v_exp_f32 v%d, v%d" % (T + k, T + k))
        for k in range(4): p("v_pk_mul_f32 %s, %s, %s" % (vr(a + 2 * k, 2), vr(a + 2 * k, 2), vr(a + 8 + 2 * k, 2)))
        for k in range(4): p("v_pk_add_f32 %s, %s, 1.0 op_sel_hi:[1,0]" % (vr(T + 2 * k, 2), vr(T + 2 * k, 2)))
        for k in range(8): p("v_rcp_f32 v%d, v%d" % (T + k, T + k))
        for k in range(4): p("v_pk_mul_f32 %s, %s, %s" % (vr(a + 2 * k, 2), vr(a + 2 * k, 2), vr(T + 2 * k, 2)))
        for k in range(4): p("v_cvt_pk_bf16_f32 v%d, v%d, v%d" % (a + 8 + k, a + 2 * k, a + 2 * k + 1))
        p("buffer_store_dwordx4 %s, v%d, %s, s%d offen offset:%d sc1" % (vr(a + 8), vL16, sr(sH), soff, imm), tag="hst")
        return p
    def hpos(self, p, dst, ksreg, step0):
        p("s_and_b32 s3, s%d, 3\ns_mul_i32 s3, s3, 30\ns_lshr_b32 s%d, s%d, 2\ns_add_u32 s3, s3, s%d" % (ksreg, dst, ksreg, dst))
        if step0: p("s_add_u32 s3, s3, %d" % step0)
        p("s_lshl_b32 s3, s3, 11\ns_add_u32 s%d, s3, s%d" % (dst, sHo))
    def path(self, B):
        o = self.o; p = P(); nm = "B" if B else "A"
        self.nst = 0; self.stnames = []
        if not B: p("LpathA:")
        self.ntouch = self.ntouch0
        s1, s2 = self.setup(B)
        p.ext(s1)
        nb = 5 if B else 4; nd = 13 if B else 12
        fx = lambda ps, tb: vFr + 28 * ps + 4 * tb
        fw = lambda ps, b: vFr + 28 * ps + 8 + 4 * b
        acc = lambda b, tb: vAcc + 16 * (2 * b + tb)
        def reads(sg, s):
            sl = sg % 3; ps = s & 1; r = []
            def rx(tb):
                if B: r.append([Ins("ds_read_b128 %s, v%d offset:%d" % (vr(fx(ps, tb)), vXa + 4 * tb + s, XS[sl]))])
                else: r.append([Ins("ds_read_b128 %s, v%d offset:%d" % (vr(fx(ps, tb)), vXa + s, XS[sl] + 4096 * tb))])
            def rw(b):
                for half in range(2):
                    if not B: va, off = vWa + 3 * sl + (b & 1), s * 2048 + half * 512 + (b >> 1) * 16384
                    elif b == 0: va, off = vWa + 3 * sl, s * 2048 + half * 512
                    elif b < 4: va, off = vWa + 3 * sl + 1, s * 3584 + half * 896 + (b - 1) * 32
                    else: va, off = vWa + 3 * sl + 2, s * 3584 + half * 896
                    r.append([Ins("ds_read_b64_tr_b16 %s, v%d offset:%d" % (vr(fw(ps, b) + 2 * half, 2), va, off))])
            rx(0); rw(0); rx(1)
            for b in range(1, nb): rw(b)
            return r
        for c in self.slab_dma(B, 0)[4:] + self.touches("s0"): p.ext(c)
        self.stamp(p, "issued0")
        if B: p("s_branch LbodyB\n@cut\nLbodyB:")
        p.ext(s2)
        dq = self.touches("q0") + self.slab_dma(B, 1) + self.touches("s1") + self.slab_dma(B, 2) + self.touches("s2")
        npre = o.get("pre1", 6)
        if not B:
            p("s_cmp_eq_u32 s%d, 0\ns_cselect_b32 s%d, 0, 0x%x" % (sT, sTmp, OOB))
            p("s_lshl_b32 s3, s%d, 2\ns_add_u32 s3, s3, s%d\ns_lshl_b32 s3, s3, 12\ns_add_u32 s%d, s3, 0x%x\ns_add_u32 s3, s%d, s%d" % (sU, sWave, sM2r, WS_KV, sM2r, sTmp))
            for k in range(4): p("v_mov_b32 v%d, 0" % (vAcc + 128 + k))
            for k in range(3): p("buffer_store_dwordx4 %s, v%d, %s, s3 offen offset:%d sc1" % (vr(vAcc + 128), vL16, sr(sH), 1024 * k), tag="zst")
            p("s_lshl_b32 s3, s%d, 13\ns_add_u32 s3, s3, s%d\ns_add_u32 s3, s3, 0x%x\ns_lshl_b32 s%d, s%d, 26\ns_add_u32 s3, s3, s%d\nv_lshlrev_b32 v2, 7, v1" % (sU, sTmp, WS_FL, sTmp, sWave, sTmp))
            p("buffer_store_dword v%d, v2, %s, s3 offen sc1" % (vAcc + 128, sr(sH)), tag="zst")
        for c in dq[:npre]: p.ext(c)
        dq = dq[npre:]
        p("@wait vm:slab0\ns_barrier")
        self.stamp(p, "slab0")
        for c in reads(0, 0): p.ext(c)
        gl, gc = self.gate_job(B)
        v2a = vWo
        side = {}
        def addside(sg, s, pp, n=1):
            l = pp.l; side.setdefault((sg, s), [])
            side[(sg, s)] += [l[i:i + n] for i in range(0, len(l), n)]
        def spread(pp, k0, k1):
            n = len(pp.l); q = -(-n // (k1 - k0))
            for k in range(k0, k1):
                z = P(); z.l = pp.l[(k - k0) * q:(k - k0 + 1) * q]; addside(k // 4, k % 4, z, 1)
        addside(1, 0, gl, 20)
        if not B:
            z = P(); z("s_cmp_eq_u32 s%d, 0\ns_cselect_b32 s%d, 0, 0x%x\ns_lshl_b32 s3, s%d, 2\ns_add_u32 s3, s3, s%d" % (sT, sTmp, OOB, sU, sTmp))
            z("buffer_store_dword v%d, v%d, %s, s3 offen sc1" % (vOne, vFlag, sr(sG)))
            addside(1, 2, z, 20)
        spread(gc, 12, 18)
        w1, w2_ = self.wphi_read(); spread(w1, 18, 19); spread(w2_, 19, 20)
        z = P(); self.poll_issue(z, "init"); addside(6, 0, z, 20)
        items = [(b, tb) for b in range(2) for tb in range(2)]
        e = P()
        if not B:
            aPw, aPw2, aVw, aPr, aVr, aKeep, aOnes, aAt = 33, 34, 35, 36, 26, 27, 28, 39
            e("s_and_b32 s%d, s%d, 1" % (sTmp, sWave))
            e("v_and_b32 v2, 31, v1\nv_lshrrev_b32 v3, 5, v1\nv_bfe_u32 v4, v1, 1, 2\nv_lshlrev_b32 v5, 1, v3\nv_xor_b32 v4, v4, v5\nv_lshlrev_b32 v4, 4, v4\nv_lshl_add_u32 v4, v2, 6, v4")
            e("s_lshl_b32 s3, s%d, 2\ns_lshr_b32 s%d, s%d, 1\ns_add_u32 s%d, s%d, s3" % (sTmp, sTmp, sWave, sTmp, sTmp))
            e("s_lshl_b32 s3, s%d, 12\ns_add_u32 s3, s3, %d\nv_add_u32 v%d, s3, v4\nv_xor_b32 v%d, 16, v%d" % (sTmp, WS[1], aPw, aPw2, aPw))
            e("v_bfe_u32 v4, v1, 2, 1\nv_xor_b32 v4, v4, v3\nv_lshlrev_b32 v4, 4, v4\nv_lshl_add_u32 v4, v2, 5, v4")
            e("s_lshl_b32 s3, s%d, 11\ns_add_u32 s3, s3, %d\nv_add_u32 v%d, s3, v4" % (sTmp, XS[1], aVw))
            e("v_lshlrev_b32 v%d, 2, v2\nv_lshl_add_u32 v%d, v3, 9, v%d" % (aAt, aAt, aAt))
            e("v_bfe_u32 v4, v1, 2, 2\nv_lshl_add_u32 v5, v3, 2, v4")
            e("v_bfe_u32 v6, v1, 1, 1\nv_bfe_u32 v7, v1, 4, 1\nv_lshl_or_b32 v8, v7, 1, v6\nv_lshrrev_b32 v9, 1, v5\nv_xor_b32 v8, v8, v9\nv_lshlrev_b32 v8, 4, v8")
            e("v_and_b32 v9, 1, v1\nv_lshl_add_u32 v8, v9, 3, v8\nv_lshl_add_u32 v8, v5, 6, v8\ns_lshl_b32 s3, s%d, 13\ns_add_u32 s3, s3, %d\nv_add_u32 v%d, s3, v8" % (sWave, WS[1], aPr))
            e("v_xor_b32 v9, v9, v3\nv_lshlrev_b32 v9, 4, v9\nv_lshl_add_u32 v9, v6, 3, v9\nv_lshl_add_u32 v9, v5, 5, v9\ns_add_u32 s3, s%d, %d\nv_add_u32 v%d, s3, v9" % (sMx, XS[1], aVr))
            e("v_add_u32 v%d, -1, v7\nv_mul_u32_u24 v%d, 0x3f80, v7\nv_lshl_or_b32 v%d, v%d, 16, v%d" % (aKeep, aOnes, aOnes, aOnes, aOnes))
            spread(e, 20, 23); e = P()
        self.flag_off(e, "h", B, sF1); self.flag_off(e, "o" if B else "kv", B, sF2)
        self.poll_off(e, "h"); self.poll_off(e, "o")
        if B: self.poll_off(e, "kv")
        e("s_lshl_b32 s%d, s%d, 8\ns_add_u32 s%d, s%d, 0x%x" % (sGo, sTT, sGo, sGo, WS_G))
        e("s_lshl_b32 s%d, s%d, 16\ns_lshl_b32 s3, s%d, 7\ns_add_u32 s%d, s%d, s3\ns_add_u32 s%d, s%d, 32768" % (sOa, sTT, sCT, sOa, sOa, sOb, sOa))
        if B: spread(e, 20, 23); e = P()
        e.ext(self.w2_addr(v2a))
        e("s_lshl_b32 s3, s%d, 1\ns_lshr_b32 s%d, s%d, 1\ns_add_u32 s3, s3, s%d\ns_mul_i32 s%d, s3, 245760" % (sT, sTmp, sWave, sTmp, sHo))
        e("s_and_b32 s%d, s%d, 1" % (sC, sWave))
        if not B:
            e("s_lshl_b32 s%d, s%d, 1\ns_add_u32 s%d, s%d, s%d" % (sTmp, sC, sTmp, sTmp, sFfn)); self.hpos(e, sHs, sTmp, 0)
            e("s_add_u32 s%d, s%d, 1" % (sTmp, sTmp)); self.hpos(e, sHs + 1, sTmp, 0)
        else:
            e("s_lshl_b32 s3, s%d, 10\ns_add_u32 s%d, s%d, s3" % (sC, sHo, sHo))
            e("s_mul_i32 s%d, s%d, 3\ns_add_u32 s%d, s%d, s%d" % (sTmp, sC, sTmp, sTmp, sFfn))
            for b in range(4):
                if b == 3: e("s_add_u32 s%d, s%d, 6" % (sTmp, sFfn))
                self.hpos(e, sHs + 2 * b, sTmp, 0)
                if b < 3: e("s_xor_b32 s%d, s%d, 1024\ns_add_u32 s%d, s%d, 1" % (sHs + 2 * b + 1, sHs + 2 * b, sTmp, sTmp))
            e("s_mul_i32 s3, s%d, 60\ns_add_u32 s3, s3, s%d\ns_add_u32 s3, s3, 22\ns_lshl_b32 s3, s3, 11\ns_add_u32 s%d, s3, s%d" % (sC, sU, sOs, sHo))
            e("s_xor_b32 s%d, s%d, 1024\ns_add_u32 s%d, s%d, 61440\ns_add_u32 s%d, s%d, 61440" % (sOs + 1, sOs, sOs + 2, sOs, sOs + 3, sOs + 1))
            e("s_lshl_b32 s3, s%d, 2\ns_add_u32 s3, s3, s%d\ns_lshl_b32 s3, s3, 12\ns_add_u32 s%d, s3, 0x%x" % (sU, sWave, sM2r, WS_KV))
            bD = [26, 27, 28]; bR = [16, 17, 18, 19]
            e("v_lshrrev_b32 v2, 3, v1\nv_and_b32 v3, 7, v1\nv_lshrrev_b32 v4, 4, v1\nv_xor_b32 v3, v3, v4\nv_lshlrev_b32 v3, 4, v3\nv_lshl_add_u32 v26, v2, 7, v3\nv_xor_b32 v27, 64, v26")
            e("v_lshl_or_b32 v28, v2, 24, v26")
            e("v_and_b32 v2, 31, v1\nv_min_u32 v2, 16, v2\nv_lshrrev_b32 v3, 5, v1\nv_lshlrev_b32 v3, 2, v3\nv_bfe_u32 v4, v2, 1, 3\nv_xor_b32 v3, v3, v4\nv_lshlrev_b32 v3, 4, v3\nv_lshl_add_u32 v3, v2, 7, v3")
            e("s_lshl_b32 s3, s%d, 13\ns_add_u32 s3, s3, %d\nv_add_u32 v16, s3, v3\nv_xor_b32 v17, 16, v16\nv_xor_b32 v18, 32, v16\nv_xor_b32 v19, 48, v16" % (sC, WS[1]))
        e("s_lshl_b32 s3, s%d, 2\ns_add_u32 s3, s3, s%d\ns_mul_i32 s%d, s3, 61440" % (sTT, sWave, sHo))
        spread(e, 23, 31 if B else 28)
        W = {}
        for i in range(15): W["R%d" % i] = self.w2_reads(i, v2a); W["D%d" % i] = self.w2_dma(i)
        used = []
        def w2(spec):
            r = []
            for t in spec.split("."):
                if t: r += W[t]; used.append(t)
            return r
        for sg in range(8):
            for s in range(4):
                ps = s & 1
                if s == 3:
                    if sg == 7: self.poll_check(p, "init")
                    p("@wait lg:all vm:slab%d%s\ns_barrier" % (sg + 1, " vm:zst" if sg == 0 else ""))
                    if sg + 3 < 8: dq += self.slab_dma(B, sg + 3) + ([self.wphi_load().l] if sg == 1 else []) + self.touches("s%d" % (sg + 3))
                    elif sg == 5: dq += w2("D0.D1.D2")
                    elif sg == 6: dq += w2("D3.D4.D5")
                    else: dq += w2(o.get("w2z", "D6"))
                else: p("@wait lg:all")
                rd = reads(sg, s + 1) if s < 3 else (reads(sg + 1, 0) if sg < 7 else [])
                if sg == 7 and s < 3:
                    for c in w2("R%d" % s):
                        rd += [c[:-1], c[-1:]]
                left = (3 - s) if s < 3 else (4 if sg < 7 else 1)
                nq = -(-len(dq) // left)
                ex = list(side.get((sg, s), []))
                mm = [(b, tb) for b in range(4) for tb in range(2)] + ([(4, 0)] if B else [])
                if B and sg == 7 and s == 3: mm = mm[2:] + mm[:2]
                rper = 2 if len(rd) <= 2 * (len(mm) - 2) else 3
                for gi, (b, tb) in enumerate(mm):
                    a = acc(b, tb)
                    p("v_mfma_f32_32x32x16_bf16 %s, %s, %s, %s" % (vr(a, 16), vr(fw(ps, b)), vr(fx(ps, tb)), "0" if (sg == 0 and s == 0) else vr(a, 16)))
                    for _ in range(rper):
                        if rd: p.ext(rd.pop(0))
                    rem = len(mm) - gi
                    if nq >= rem and dq:
                        p.ext(dq.pop(0)); nq -= 1
                    k = -(-len(ex) // rem)
                    for _ in range(k): p.ext(ex.pop(0))
                while nq > 0 and dq: p.ext(dq.pop(0)); nq -= 1
                assert not rd and not ex
        assert not dq
        self.stamp(p, "gemm")
        def seg(e, spec):
            ch = w2(spec)
            if ch:
                l, rest = merge(e.l, ch, 0, 1, max(1, len(e.l) // (len(ch) + 1)))
                p.ext(l)
                for c in rest: p.ext(c)
            else: p.ext(e)
        T = 2
        PF = o["pf"]; NR = 11
        hf = lambda st, tb: 40 + 8 * (st % NR) + 4 * tb
        a2 = lambda part, cb, tb: 128 + 64 * part + 32 * cb + 16 * tb
        vDm, vGo, vG, vG1 = 29, 30, 4, 32
        def p2pre(e):
            e("s_lshr_b32 s3, s%d, 1\ns_lshl_b32 s3, s3, 30\nv_add_u32 v%d, s3, v%d\nv_and_b32 v%d, 31, v1\nv_lshlrev_b32 v%d, 2, v%d" % (sWave, vDm, vL16, vGo, vGo, vGo))
        def hload(st):
            q = P()
            for tb in range(2):
                q("buffer_load_dwordx4 %s, v%d, %s, s%d offen offset:%d sc1" % (vr(hf(st, tb)), vDm if st == 21 else vL16, sr(sH), sHo, (st & 1) * 2048 + tb * 1024))
            if st & 1: q("s_add_u32 s%d, s%d, 4096" % (sHo, sHo))
            return q
        if not B:
            vKf = vFr; vV = vFr + 16; vPh = vFr + 32
            e = P()
            for k, (b, tb) in enumerate(items):
                a = acc(b, tb)
                for i in range(4): e("v_cvt_pk_bf16_f32 v%d, v%d, v%d" % (vKf + 4 * k + i, a + 2 * i, a + 2 * i + 1))
                for i in range(4): e("v_cvt_pk_bf16_f32 v%d, v%d, v%d" % (vV + 4 * k + i, a + 8 + 2 * i, a + 9 + 2 * i))
                e("ds_write_b128 v%d, %s offset:%d" % (aVw, vr(vV + 4 * k), b * 4096 + tb * 1024))
                e("v_mfma_f32_32x32x16_bf16 %s, %s, %s, 0" % (vr(a, 16), ar(240 + 4 * b), vr(vKf + 4 * k)))
            for k, (b, tb) in enumerate(items):
                ph = vPh + 8 * (k & 1)
                e.ext(self.softmax(acc(b, tb), T, ph))
                e("ds_write_b128 v%d, %s offset:%d\nds_write_b128 v%d, %s offset:%d" % (aPw, vr(ph), b * 8192 + tb * 2048, aPw2, vr(ph + 4), b * 8192 + tb * 2048))
            seg(e, o.get("a1", "D7.D8"))
            p("@wait lg:all\ns_barrier")
            self.stamp(p, "ksm")
            kv = vAcc + 128
            fa = lambda s: vAcc + 8 * s
            e = P()
            for s in range(11):
                if s < 8:
                    for half in range(2): e("ds_read_b64_tr_b16 %s, v%d offset:%d" % (vr(fa(s) + 2 * half, 2), aVr, s * 512 + half * 256))
                    for half in range(2): e("ds_read_b64_tr_b16 %s, v%d offset:%d" % (vr(fa(s) + 4 + 2 * half, 2), aPr, s * 1024 + half * 512))
                if 2 <= s < 10:
                    for i in range(4): e("v_and_or_b32 v%d, v%d, v%d, v%d" % (fa(s - 2) + i, fa(s - 2) + i, aKeep, aOnes))
                if s >= 3: e("v_mfma_f32_32x32x16_bf16 %s, %s, %s, %s" % (vr(kv, 16), vr(fa(s - 3)), vr(fa(s - 3) + 4), "0" if s == 3 else vr(kv, 16)))
            g0 = self.gelu(acc(2, 0), T, sHs, 0)
            e.ext(g0.l[:12])
            for i in range(8): e("buffer_atomic_add_f32 v%d, v%d, %s, s%d offen offset:%d" % (kv + i, aAt, sr(sH), sM2r, (8 * (i >> 2) + (i & 3)) * 128), tag="kvat")
            e("s_mov_b32 exec_hi, 0\nbuffer_atomic_add_f32 v%d, v%d, %s, s%d offen offset:2048" % (kv + 8, aAt, sr(sH), sM2r), tag="kvat")
            e("s_mov_b32 exec_hi, -1")
            p.ext(e); e = P()
            self.stamp(p, "atom")
            e.ext(g0.l[12:])
            for k, (b, tb) in enumerate(items):
                if k: e.ext(self.gelu(acc(2 + b, tb), T, sHs + b, 1024 * tb))
            seg(e, o.get("a2", ""))
            self.stamp(p, "gelu")
            e = P(); p2pre(e); seg(e, o.get("a3", "R3.D9.R4.D10.R5.D11"))
            if o.get("asplit", 0):
                p("@wait vm:kvat\ns_barrier"); self.flag(p, sF2)
                p("@wait vm:hst\ns_barrier"); self.flag(p, sF1)
            else:
                p("@wait vm:hst\ns_barrier"); self.flag(p, sF2); self.flag(p, sF1)
            self.stamp(p, "hflag")
            seg(P(), o.get("a4", "R6.D12.R7.D13.R8.D14.R9.R10.R11.R12.R13"))
            self.poll_issue(p, "h")
            seg(P(), "R14")
            self.poll_check(p, "h")
            p("@wait lg:all\ns_barrier")
            self.stamp(p, "hseen")
            for st in range(PF): p.ext(hload(st))
        else:
            vKf = vFr; vKz = 208; vPh = 224
            pa = lambda k: vAcc + 32 + 16 * k
            e = P()
            for b in range(1, 5):
                e.ext(self.gelu(acc(b, 0), T, sHs + 2 * b - 2, 0))
                if b < 4: e.ext(self.gelu(acc(b, 1), T, sHs + 2 * b - 1, 0))
                if b == 2:
                    for k, (b_, tb) in enumerate(items):
                        a = acc(0, tb) + 8 * b_
                        for i in range(4): e("v_cvt_pk_bf16_f32 v%d, v%d, v%d" % (vKf + 4 * k + i, a + 2 * i, a + 2 * i + 1))
                    for k, (b_, tb) in enumerate(items):
                        e("v_mfma_f32_32x32x16_bf16 %s, %s, %s, 0" % (vr(pa(k), 16), ar(240 + 4 * b_), vr(vKf + 4 * k)))
            seg(e, o.get("b1", "D7.D8"))
            self.stamp(p, "gelu")
            hat = o.get("hflag_at", 1)
            e = P()
            for k in range(hat): e.ext(self.softmax(pa(k), T, vPh + 8 * k))
            seg(e, o.get("b2", "R3.D9.R4.D10"))
            p("@wait vm:hst\ns_barrier"); self.flag(p, sF1); self.stamp(p, "hflag")
            e = P(); p2pre(e)
            for k in range(hat, 4): e.ext(self.softmax(pa(k), T, vPh + 8 * k))
            seg(e, o.get("b3", "R5.D11.R6.D12.R7.D13.R8.D14"))
            self.poll_issue(p, "kv")
            self.stamp(p, "qsm")
            seg(P(), o.get("b4", "R9.R10.R11.R12.R13.R14"))
            self.poll_check(p, "kv")
            p("s_add_u32 m0, s%d, %d\ns_barrier" % (sMx, WS[1]))
            self.stamp(p, "kvseen")
            for j in range(3): p("buffer_load_dwordx4 v%d, %s, s%d offen offset:%d sc1 lds" % (bD[j], sr(sH), sM2r, 1024 * j), tag="kvz")
            early = o.get("bearly", 1)
            if early:
                self.poll_issue(p, "h"); self.poll_check(p, "h")
            p("@wait vm:kvz lg:all\ns_barrier")
            if early: self.stamp(p, "hseen")
            kz = pa(2)
            for b in range(2):
                for q4 in range(4): p("ds_read_b128 %s, v%d offset:%d" % (vr(kz + 16 * b + 4 * q4), bR[q4], 4096 * b))
            if early:
                for st in range(min(PF, o.get("bpf", 4))): p.ext(hload(st))
            for b in range(2):
                for i in range(8): p("v_cvt_pk_bf16_f32 v%d, v%d, v%d" % (vKz + 8 * b + i, kz + 16 * b + 2 * i, kz + 16 * b + 2 * i + 1))
            for k, (b, tb) in enumerate(items):
                p("v_mfma_f32_32x32x16_bf16 %s, %s, %s, 0" % (vr(pa(k), 16), vr(vKz + 8 * b), vr(vPh + 8 * k)))
                p("v_mfma_f32_32x32x16_bf16 %s, %s, %s, %s" % (vr(pa(k), 16), vr(vKz + 8 * b + 4), vr(vPh + 8 * k + 4), vr(pa(k), 16)))
            if not early: self.poll_issue(p, "h")
            for k, (b, tb) in enumerate(items):
                a = pa(k)
                p("v_add_f32 v%d, 0x%x, v%d\nv_rcp_f32 v%d, v%d" % (a + 8, f2u(1e-6), a + 8, a + 8, a + 8))
                for i in range(4): p("v_pk_mul_f32 %s, %s, %s op_sel_hi:[1,0]" % (vr(a + 2 * i, 2), vr(a + 2 * i, 2), vr(a + 8, 2)))
                for i in range(4): p("v_cvt_pk_bf16_f32 v%d, v%d, v%d" % (a + 12 + i, a + 2 * i, a + 2 * i + 1))
                p("buffer_store_dwordx4 %s, v%d, %s, s%d offen sc1" % (vr(a + 12), vL16, sr(sH), sOs + k), tag="ost")
            if early:
                for st in range(min(PF, o.get("bpf", 4)), PF): p.ext(hload(st))
            else:
                self.poll_check(p, "h"); p("s_barrier"); self.stamp(p, "hseen")
                for st in range(PF): p.ext(hload(st))
        assert sorted(used) == sorted(W.keys()), sorted(set(W.keys()) - set(used))
        p("buffer_load_dword v%d, v%d, %s, s%d offen sc1\nbuffer_load_dword v%d, v%d, %s, s%d offen offset:128 sc1" % (vG, vGo, sr(sH), sGo, vG + 2, vGo, sr(sH), sGo))
        wa = [16, 17, 18, 19]; ra = [20, 21]; oa = 22
        ad = P()
        ad("v_and_b32 v2, 31, v1\nv_lshrrev_b32 v3, 5, v1\nv_and_b32 v8, 7, v1\nv_xor_b32 v3, v3, v8\nv_lshlrev_b32 v3, 4, v3\nv_lshl_add_u32 v3, v2, 8, v3")
        ad("s_lshl_b32 s3, s%d, 14\nv_add_u32 v16, s3, v3\nv_xor_b32 v17, 32, v16\nv_xor_b32 v18, 64, v16\nv_xor_b32 v19, 0x60, v16" % sWave)
        ad("v_lshrrev_b32 v2, 3, v0\nv_and_b32 v3, 7, v2\nv_lshlrev_b32 v9, 1, v8\nv_xor_b32 v3, v3, v9\nv_lshlrev_b32 v3, 4, v3\nv_lshl_add_u32 v20, v2, 8, v3\nv_xor_b32 v21, 16, v20")
        ad("v_lshlrev_b32 v8, 4, v8\nv_lshl_add_u32 v22, v2, 10, v8")
        ad("v_sub_f32 v%d, 1.0, v%d\nv_sub_f32 v%d, 1.0, v%d" % (vG1, vG, vG1 + 2, vG + 2))
        adl = ad.l
        oreg = lambda j, tb: hf(22 + (tb * 8 + j) // 2, (tb * 8 + j) & 1)
        def oload(n):
            q = P()
            for k in (2 * n, 2 * n + 1):
                tb, j = k // 8, k % 8
                q("buffer_load_dwordx4 %s, v%d, %s, s%d offen offset:%d sc1" % (vr(oreg(j, tb)), vL16, sr(sH), sHo, (j & 1) * 2048 + tb * 1024))
            if n == 3: q("s_sub_u32 s%d, s%d, %d" % (sHo, sHo, 3 * 4096))
            elif n < 7: q("s_add_u32 s%d, s%d, 4096" % (sHo, sHo))
            return q
        def scale(tb):
            q = P()
            for cb in range(2):
                for i in range(8): q("v_pk_mul_f32 %s, %s, %s op_sel_hi:[1,0]" % (vr(a2(0, cb, tb) + 2 * i, 2), vr(a2(0, cb, tb) + 2 * i, 2), vr(vG1 + 2 * tb, 2)))
            return q
        def comb(tb):
            q = P()
            for cb in range(2):
                a = a2(0, cb, tb); b_ = a2(1, cb, tb)
                for j in range(4):
                    for i in (2 * j, 2 * j + 1): q("v_pk_fma_f32 %s, %s, %s, %s op_sel_hi:[1,0,1]" % (vr(a + 2 * i, 2), vr(b_ + 2 * i, 2), vr(vG + 2 * tb, 2), vr(a + 2 * i, 2)))
                    q("ds_write_b128 v%d, %s offset:%d" % (wa[j], vr(a + 4 * j), tb * 8192 + cb * 128))
            return q
        fill = []
        for st in range(30):
            nx = st + PF
            if B and st == o.get("oflag_at", 2):
                p("@wait vm:ost\ns_barrier"); self.flag(p, sF2); self.stamp(p, "oflag")
            if nx == 22 - o.get("opoll", 2): self.poll_issue(p, "o")
            if nx == 22:
                self.poll_check(p, "o"); p("s_barrier"); self.stamp(p, "oseen")
            ld = hload(nx).l if nx < 22 else (oload(nx - 22).l if nx < 30 else [])
            if st == 8: fill = adl
            if st == 23: fill = scale(0).l + scale(1).l
            if st == 27: fill += comb(0).l
            for g_ in range(4):
                if st < 22:
                    cb, tb = g_ >> 1, g_ & 1; a = a2(0, cb, tb)
                    p("v_mfma_f32_32x32x16_bf16 %s, %s, %s, %s" % (vr(a, 16), ar(8 * st + 4 * cb), vr(hf(st, tb)), "0" if st == 0 else vr(a, 16)))
                else:
                    k = 2 * (st - 22) + (g_ >> 1); tb, j = k // 8, k % 8; cb = g_ & 1; a = a2(1, cb, tb)
                    p("v_mfma_f32_32x32x16_bf16 %s, %s, %s, %s" % (vr(a, 16), ar(8 * (22 + j) + 4 * cb), vr(oreg(j, tb)), "0" if j == 0 else vr(a, 16)))
                if ld: p.ext([ld.pop(0)])
                p.ext(fill[:2]); fill = fill[2:]
            assert not ld
        p.ext(fill)
        self.stamp(p, "p2mfma")
        p.ext(comb(1))
        p("@wait lg:all\ns_barrier")
        for hh in range(2):
            for w in range(4):
                for i in range(2): p("ds_read_b128 %s, v%d offset:%d" % (vr(40 + 32 * hh + 8 * w + 4 * i), ra[i], w * 16384 + hh * 8192))
        for hh in range(2):
            b0 = 40 + 32 * hh
            for i in range(4): p("v_pk_add_f32 %s, %s, %s" % (vr(b0 + 2 * i, 2), vr(b0 + 2 * i, 2), vr(b0 + 8 + 2 * i, 2)))
            for i in range(4): p("v_pk_add_f32 %s, %s, %s" % (vr(b0 + 16 + 2 * i, 2), vr(b0 + 16 + 2 * i, 2), vr(b0 + 24 + 2 * i, 2)))
            for i in range(4): p("v_pk_add_f32 %s, %s, %s" % (vr(b0 + 2 * i, 2), vr(b0 + 2 * i, 2), vr(b0 + 16 + 2 * i, 2)))
            for i in range(4): p("v_cvt_pk_bf16_f32 v%d, v%d, v%d" % (b0 + 8 + i, b0 + 2 * i, b0 + 2 * i + 1))
            p("buffer_store_dwordx4 %s, v%d, %s, s%d offen %s" % (vr(b0 + 8), oa, sr(sOut), sOb if hh else sOa, o.get("outfl", "").replace("_", " ")))
        if o["stamps"]:
            p("@wait vm:all"); self.stamp(p, "end")
            p("s_waitcnt lgkmcnt(0)", raw=True)
            p("s_lshl_b32 s3, s2, 2\ns_add_u32 s3, s3, s%d\ns_lshl_b32 s3, s3, 6\ns_add_u32 s3, s3, 0x%x" % (sWave, WS_ST))
            p("v_mov_b32 v16, s94")
            for k in range(self.nst): p("v_mov_b32 v%d, s%d" % (17 + k, sStamp + 2 * k))
            p("v_lshlrev_b32 v2, 24, v1")
            for k in range(4): p("buffer_store_dwordx4 %s, v2, %s, s3 offen offset:%d" % (vr(16 + 4 * k), sr(sH), 16 * k))
        if o.get("calib"):
            p("Lcal%s:\ns_memrealtime s[96:97]\ns_waitcnt lgkmcnt(0)\ns_sub_u32 s3, s96, s94\ns_cmp_lt_u32 s3, %d\ns_cbranch_scc1 Lcal%s" % (nm, o["calib"], nm), raw=True)
        p("Lfin%s:" % nm)
        p("s_endpgm")
        return p
    def build(self):
        st = State(); stats = {}
        out = process(self.prologue().l, st, stats)
        stB = st.copy(); self.ntouch0 = self.ntouch
        oa = process(self.path(False).l, st, stats); self.namesA = list(self.stnames)
        ob = process(self.path(True).l, stB, stats); self.namesB = list(self.stnames)
        k = ob.index("@cut")
        out += ob[:k] + oa + ob[k + 1:]
        out.append("Lend:\ns_endpgm")
        self.stats = stats
        hdr = "; @launch grid=(256,1,1) block=(256,1,1) lds=163840\n"
        ex = self.o.get("extra")
        if ex:
            m = "; @launch kernel=%s grid=(256,1,1) block=(256,1,1) lds=163840\n" % KNAME
            e = "; @launch kernel=nop_kernel grid=(1,1,1) block=(64,1,1) lds=0\n"
            hdr = {"pre": e + m, "post": m + e, "only": m, "post2": m + e + e}[ex]
            out.append(".p2align 8\nnop_kernel:\ns_endpgm")
        hdr += '.amdgcn_target "amdgcn-amd-amdhsa--gfx950"\n.text\n.globl %s\n.p2align 8\n.type %s,@function\n%s:\n' % (KNAME, KNAME, KNAME)
        tail = """
.section .rodata,"a"
.p2align 6
.amdhsa_kernel %s
  .amdhsa_next_free_vgpr 512
  .amdhsa_next_free_sgpr 102
  .amdhsa_accum_offset 256
  .amdhsa_group_segment_fixed_size 0
  .amdhsa_kernarg_size 96
  .amdhsa_user_sgpr_count 2
  .amdhsa_user_sgpr_kernarg_segment_ptr 1
  .amdhsa_system_sgpr_workgroup_id_x 1
  .amdhsa_float_denorm_mode_32 3
.end_amdhsa_kernel
""" % KNAME
        if ex: tail += """.p2align 6
.amdhsa_kernel nop_kernel
  .amdhsa_next_free_vgpr 8
  .amdhsa_next_free_sgpr 16
  .amdhsa_accum_offset 8
  .amdhsa_group_segment_fixed_size 0
  .amdhsa_kernarg_size 96
  .amdhsa_user_sgpr_count 2
  .amdhsa_user_sgpr_kernarg_segment_ptr 1
  .amdhsa_system_sgpr_workgroup_id_x 1
.end_amdhsa_kernel
"""
        return hdr + "\n".join(out) + tail
if __name__ == "__main__":
    opts = {}
    for a in sys.argv[2:]:
        k, v = a.split("="); opts[k] = int(v) if v.lstrip("-").isdigit() else v
    g = Gen(**opts)
    open(sys.argv[1], "w").write(g.build())
    print("nops", g.stats)
```

```python
import re, copy
REG = re.compile(r'\b([vas])(\d+)\b|\b([vas])\[(\d+):(\d+)\]|\b(vcc|exec|m0)\b')
TRANS = ("v_exp_f32", "v_log_f32", "v_rcp_f32", "v_rsq_f32", "v_sqrt_f32", "v_sin_f32", "v_cos_f32")
def regs(tok):
    out = []
    for m in REG.finditer(tok):
        if m.group(1): out.append(m.group(1) + m.group(2))
        elif m.group(3): out += [m.group(3) + str(i) for i in range(int(m.group(4)), int(m.group(5)) + 1)]
        else: out.append(m.group(6))
    return out
def split_ops(s):
    out, depth, cur = [], 0, ""
    for ch in s:
        if ch == "[": depth += 1
        if ch == "]": depth -= 1
        if ch == "," and depth == 0: out.append(cur.strip()); cur = ""
        else: cur += ch
    if cur.strip(): out.append(cur.strip())
    return out
class Ins:
    def __init__(self, text, tag=None, raw=False):
        self.text = text; self.tag = tag; self.raw = raw
        t = text.split(";")[0].strip()
        self.op = t.split()[0] if t else ""
        rest = t[len(self.op):].strip()
        self.ops = split_ops(rest)
        op = self.op
        self.cls = "other"; self.w = []; self.r = []; self.srcc = []; self.ab = []; self.data = []
        R = [regs(o) for o in self.ops]
        flat = lambda l: [x for y in l for x in y]
        if op.endswith(":") or op.startswith(".") or op == "" or op.startswith("@"): self.cls = "meta"
        elif op.startswith("v_mfma"):
            self.cls = "mfma"; self.w = R[0]; self.ab = R[1] + R[2]; self.srcc = R[3]; self.r = self.ab + self.srcc
            self.passes = 8 if "32x32" in op else 4
        elif op.startswith("v_"):
            self.cls = "valu"; self.w = list(R[0]); self.r = flat(R[1:])
            if op.startswith("v_permlane") and "swap" in op: self.w = R[0] + R[1]; self.r = R[0] + R[1]
            if op.startswith(("v_fmac", "v_dot2c", "v_writelane")) or "dpp" in op: self.r += R[0]
            if "_co_" in op: self.w = R[0] + R[1]; self.r = flat(R[2:])
        elif op.startswith("ds_"):
            self.cls = "ds"
            if op.startswith(("ds_read", "ds_bpermute", "ds_swizzle")): self.w = R[0]; self.r = flat(R[1:])
            else: self.r = flat(R)
        elif op.startswith(("buffer_", "global_")):
            self.cls = "vmem"
            lds = re.search(r'\blds\b', t) or "load_lds" in op
            if "load" in op and not lds: self.w = R[0]; self.r = flat(R[1:])
            elif "atomic" in op and re.search(r'\bsc0\b', t): self.w = R[0]; self.r = flat(R)
            else:
                self.r = flat(R)
                if lds: self.r.append("m0"); self.lds = True
                if "store" in op and ("x4" in op or "x3" in op): self.data = R[0] if op.startswith("buffer") else R[1]
        elif op.startswith(("s_load", "s_buffer_load", "s_memtime", "s_memrealtime")):
            self.cls = "smem"; self.w = R[0]; self.r = flat(R[1:])
        elif op.startswith("s_"):
            self.cls = "salu"
            if op.startswith(("s_cmp", "s_bitcmp", "s_cbranch", "s_branch", "s_waitcnt", "s_barrier", "s_nop", "s_sleep", "s_setprio", "s_endpgm")): self.r = flat(R)
            else:
                self.w = list(R[0]) if R else []; self.r = flat(R[1:])
                if "saveexec" in op: self.w.append("exec")
        self.ws = set(self.w); self.rs = set(self.r)
    def states(self):
        if self.cls == "meta": return 0
        if self.op == "s_nop": return int(self.ops[0]) + 1
        return 1
def need(p, c):
    n = 0
    isv = lambda s: {x for x in s if x[0] in "va" and x != "vcc"}
    iss = lambda s: {x for x in s if x[0] == "s" or x == "vcc"}
    if p.cls == "valu":
        raw = p.ws & c.rs
        if isv(raw):
            if c.cls == "mfma": n = max(n, 2)
            if c.op.startswith(("v_readfirstlane", "v_readlane")): n = max(n, 1)
            if c.op.startswith("v_permlane") or "dpp" in c.op: n = max(n, 2)
            if p.op.replace("_e32", "").replace("_e64", "") in TRANS: n = max(n, 1)
        if iss(raw):
            if c.cls == "valu": n = max(n, 4 if c.op.startswith(("v_readlane", "v_writelane")) else 2)
            if c.cls == "vmem": n = max(n, 5)
            if c.cls in ("salu", "smem"): n = max(n, 2)
    if p.cls == "mfma":
        big = 12 if p.passes == 8 else 8
        if c.cls == "mfma":
            if p.ws & set(c.ab): n = max(n, big)
            ov = p.ws & set(c.srcc)
            if ov and not (c.srcc == p.w and c.passes == p.passes): n = max(n, big - 2)
            if (p.ws & c.ws) and not ov and not (c.w == p.w and c.passes == p.passes): n = max(n, big)
        elif c.cls in ("valu", "vmem", "ds"):
            if p.ws & (c.rs | c.ws): n = max(n, big)
            if c.cls == "valu" and set(p.srcc) & c.ws: n = max(n, 7 if p.passes == 8 else 3)
    if p.cls == "salu" and "m0" in p.ws and "m0" in c.rs and c.cls == "vmem": n = max(n, 1)
    if p.cls == "vmem" and p.data and set(p.data) & c.ws: n = max(n, 2)
    return n
class State:
    def __init__(self):
        self.vm = []; self.lg = []; self.hist = []; self.smem = []; self.seen = set()
    def copy(self):
        s = State(); s.vm = list(self.vm); s.lg = list(self.lg); s.hist = list(self.hist); s.smem = list(self.smem); s.seen = set(self.seen); return s
def process(ins, st, stats=None):
    out = []
    def emit(i):
        if i.cls != "meta":
            d = 0; req = 0
            for p in reversed(st.hist):
                req = max(req, need(p, i) - d)
                d += p.states()
                if d >= 20: break
            if req > 0:
                nop = Ins("s_nop %d" % (req - 1)); out.append(nop.text); st.hist.append(nop)
                if stats is not None: stats["nop"] = stats.get("nop", 0) + req
            st.hist.append(i); st.hist = st.hist[-24:]
        out.append(i.text)
    def wait(vm=None, lg=None):
        parts = []
        if vm is not None:
            vm = min(vm, 62)
            if len(st.vm) > vm: parts.append("vmcnt(%d)" % vm); st.vm = st.vm[len(st.vm) - vm:] if vm else []
        if lg is not None:
            if st.smem: lg = 0
            lg = min(lg, 14)
            if len(st.lg) > lg or st.smem: parts.append("lgkmcnt(%d)" % lg); st.lg = st.lg[len(st.lg) - lg:] if lg else []; st.smem = []
        if parts: emit(Ins("s_waitcnt " + " ".join(parts)))
    def younger(q, pred):
        for k in range(len(q) - 1, -1, -1):
            if pred(q[k]): return len(q) - 1 - k
        return None
    for i in ins:
        if i.raw:
            out.append(i.text); continue
        if i.op == "@wait":
            vm = lg = None
            for o in i.text.split()[1:]:
                k, tag = o.split(":")
                if tag.endswith("?"): tag = tag[:-1]
                elif tag != "all" and tag not in st.seen: raise Exception("wait on unseen tag " + tag)
                if k == "vm":
                    y = 0 if tag == "all" else younger(st.vm, lambda x: x.tag == tag)
                    if y is not None: vm = y if vm is None else min(vm, y)
                else:
                    y = 0 if tag == "all" else younger(st.lg, lambda x: x.tag == tag)
                    if y is not None: lg = y if lg is None else min(lg, y)
            wait(vm, lg); continue
        if i.op == "s_waitcnt": raise Exception("use @wait")
        touch = i.rs | i.ws
        vm = younger(st.vm, lambda x: x.ws & touch)
        lg = younger(st.lg, lambda x: x.ws & touch)
        if any(x.ws & touch for x in st.smem): lg = 0
        wait(vm, lg)
        emit(i)
        if i.tag: st.seen.add(i.tag)
        if i.cls == "vmem": st.vm.append(i)
        elif i.cls == "ds": st.lg.append(i)
        elif i.cls == "smem": st.smem.append(i)
    return out
```

```python
import sys, math, struct
from asmpass import Ins, State, process
KNAME = "gated_mix__linear_kernel_hedgehog__glu_gated_geglu__prompt_kernel"
def f2u(x): return struct.unpack("<I", struct.pack("<f", x))[0]
L2E = math.log2(math.e)
K1 = -2.0 * math.sqrt(2.0 / math.pi) * L2E
K2 = K1 * 0.044715
XS = [0, 16384, 32768]
A_KV = 49152; A_J2 = 98304; A_PHI = 49152; A_V = 81920
B_W = 49152; B_SW = 28928; B_Q = [135936, 144128, 152320, 107008, 115200, 123392, 32768, 40960]; B_KZ = 107008
MISC = 160512
WS_FL = 0xFC0000; FKV, FHD, FOD = 0, 128, 384
WS_G = 0xF80000; WS_KV = 0xF90000; WS_ST = 0xFE0000; WS_SIZE = 0x1000000
OOB = 0x40000000
sX, sW, sQ, sD, sO, sH, sG, sOut, sM, sM2 = 28, 32, 36, 40, 44, 48, 52, 56, 60, 64
(sWave, sT, sU, sFfn, sTT, sCT, sXo, sWa, sWb, sC, sMx, sMw, sMq, sW2o, sKv, sTmp, sTmp2, sExp, sHo, sE8) = range(68, 88)
sL2E = 88; sK2 = 90; sPC = 92; sTc = 96
sHs = 28
sOs = 96
sF1, sF2, sPk, sPh, sPo, sGo, sOa, sOb = range(60, 68)
sStamp = 4
def sr(b, n=4): return "s[%d:%d]" % (b, b + n - 1)
def vr(b, n=4): return "v[%d:%d]" % (b, b + n - 1)
def ar(b, n=4): return "a[%d:%d]" % (b, b + n - 1)
vFlag, vPoll, vOne, vPr, vL16, vPoll8 = 10, 11, 12, 13, 14, 15
vXo = 16; vWo = 20
v2o = 44; v2a = 48
vK1 = 54
vSign, vTa, vDum = 56, 57, 58
vWp = 60; vGt = 68; vFr = 80
MF = "v_mfma_f32_32x32x16_bf16"
class P:
    def __init__(self, l=None): self.l = list(l) if l else []
    def __call__(self, s, tag=None, raw=False):
        for x in s.split("\n"):
            if x.strip(): self.l.append(Ins(x, tag, raw))
    def ext(self, o): self.l += o.l if isinstance(o, P) else o
def merge(main, side, every):
    out = []; k = 0
    for i, x in enumerate(main):
        out.append(x)
        if i % every == every - 1 and k < len(side): out += side[k]; k += 1
    for c in side[k:]: out += c
    return out

class Gen:
    def __init__(self, **o):
        self.o = dict(stamps=False, p2map="4x8", pf=5, touch="13@pre,47@s2", codepf=True, outfl="sc1", aux="B")
        self.o.update(o); self.hs = 2 if self.o.get("heven", 1) else 1; self.B = None; self.started = set(); self.ntouch = 0; self.nst = 0; self.nlab = 0; self.stnames = []
    def stamp(self, p, name):
        if self.o.get("calat") == name: p("s_memrealtime s[94:95]", raw=True)
        if self.o["stamps"] and name not in self.o.get("nostamp", "").split("."):
            p("%s s[%d:%d]" % ("s_memtime" if self.o.get("cyc") else "s_memrealtime", sStamp + 2 * self.nst, sStamp + 2 * self.nst + 1), raw=True)
            self.nst += 1; self.stnames.append(name); assert self.nst <= 12, self.stnames
    def srd(self, p, d, ptr, size):
        p("s_mov_b32 s%d, s%d\ns_mov_b32 s%d, s%d\ns_mov_b32 s%d, 0x%x\ns_mov_b32 s%d, 0x20000" % (d, ptr, d + 1, ptr + 1, d + 2, size, d + 3))
    def touch(self, g):
        p = P(); d = vWp + self.ntouch; self.ntouch += 2 if g in "wc" else 1
        if g == "c":
            p("s_lshr_b32 s%d, s2, 3\ns_mul_i32 s3, s%d, %d\nv_lshlrev_b32 v2, 10, v0\nv_subrev_u32 v2, %d, v2\nv_mov_b32 v3, 0x%x\nv_cmp_gt_u32 vcc, %d, v2\nv_cndmask_b32 v4, v3, v2, vcc" % (sTmp, sTmp, 43 * 1024, 128 * 1024, OOB, 43 * 1024))
            p("buffer_load_dword v%d, v4, %s, s3 offen offset:384" % (d, sr(sD)))
            p("s_lshl_b32 s3, s%d, 14\nv_subrev_u32 v2, 65536, v2\nv_cmp_gt_u32 vcc, 16384, v2\nv_cndmask_b32 v4, v3, v2, vcc" % sTmp)
            p("buffer_load_dword v%d, v4, %s, s3 offen offset:384" % (d + 1, sr(sO)))
        elif g == "w":
            p("s_mul_i32 s3, s2, %d\nv_lshlrev_b32 v2, 7, v0\nv_mov_b32 v3, 0x%x\nv_cmp_gt_u32 vcc, 43, v0\nv_cndmask_b32 v4, v3, v2, vcc" % (43 * 128, OOB))
            p("buffer_load_dword v%d, v4, %s, s3 offen" % (d, sr(sD)))
            p("s_lshl_b32 s3, s2, 11\nv_subrev_u32 v2, 8192, v2\nv_cmp_gt_u32 vcc, 2048, v2\nv_cndmask_b32 v4, v3, v2, vcc")
            p("buffer_load_dword v%d, v4, %s, s3 offen" % (d + 1, sr(sO)))
        elif g in ("L", "H", "U", "M"):
            if g == "L": p("s_mov_b32 exec_lo, 0xffff0000")
            p("buffer_load_dword v%d, v%d, %s, %s offen" % (d, vTa, sr(sTc), "s%d" % sPC if g == "H" else "0"))
            if g == "L": p("s_mov_b32 exec_lo, -1")
        else:
            m = sum(1 << k for k in range(int(g[0]), int(g[1]) + 1)) * 0x01010101
            p("s_mov_b32 exec_lo, 0x%x\ns_mov_b32 exec_hi, 0x%x" % (m, m))
            p("buffer_load_dword v%d, v%d, %s, 0 offen" % (d, vTa, sr(sTc)))
            p("s_mov_b64 exec, -1")
        return p.l
    def touch2(self):
        a = P(); t = vGt + 4
        a("s_lshr_b32 s%d, s2, 4\ns_lshl_b32 s3, s%d, 3\ns_and_b32 s%d, s2, 7\ns_add_u32 s3, s3, s%d" % (sTmp, sTmp, sTmp2, sTmp2))
        a("v_mov_b32 v2, s3\nv_mov_b32 v3, s%d\nv_cmp_gt_u32 vcc, 128, v0\nv_cndmask_b32 v2, v3, v2, vcc\nv_cndmask_b32 v3, 10, 7, vcc" % sTmp)
        a("v_and_b32 v4, 127, v0\nv_lshrrev_b32 v5, 7, v0\nv_mul_u32_u24 v5, 384, v5\nv_mov_b32 v6, 0x%x" % OOB)
        for k, n in enumerate((86, 32)):
            a("v_mul_u32_u24 v7, %d, v2\nv_add_u32 v7, v7, v4\nv_lshlrev_b32 v7, v3, v7\nv_add_u32 v7, v7, v5\nv_cmp_gt_u32 vcc, %d, v%d\nv_cndmask_b32 v%d, v6, v7, vcc" % (n, n, 4 if self.o.get("tc", 1) else 0, t + k))
        return a, [[Ins("buffer_load_dword v%d, v%d, %s, 0 offen" % (t + k, t + k, sr(d)))] for k, d in enumerate((sD, sO))]
    def touches(self, pos):
        skip = {None: "", False: "U", True: "LHM"}[self.B]
        return [self.touch(t.split("@")[0]) for t in self.o["touch"].split(",") if t and t.split("@")[1] == pos and t[0] not in skip]
    def prologue(self):
        p = P(); o = self.o
        if o["stamps"] or o.get("calib"): p("%s s[94:95]" % ("s_memtime" if o.get("cyc") else "s_memrealtime"), raw=True)
        p("s_load_dwordx16 s[4:19], s[0:1], 0\ns_load_dwordx8 s[20:27], s[0:1], 64")
        p("s_cmp_ge_u32 s2, 256\ns_cbranch_scc1 Lend")
        if o["codepf"]:
            p("s_getpc_b64 s[%d:%d]" % (sPC, sPC + 1))
            p("Lpc:")
            p("s_bitcmp1_b32 s2, 3\ns_cselect_b32 s3, LbodyB-Lpc, 0\nv_lshl_add_u32 v2, v0, 7, s3\nv_cmp_gt_u32 vcc, 160, v0\nv_cndmask_b32 v2, 0, v2, vcc\nv_min_u32 v2, Lend-Lpc, v2")
            p("global_load_dword v%d, v2, s[%d:%d]" % (vDum, sPC, sPC + 1))
        p("v_and_b32 v1, 63, v0\nv_lshrrev_b32 v2, 6, v0\nv_readfirstlane_b32 s%d, v2" % sWave)
        p("s_and_b32 s%d, s2, 7\ns_lshr_b32 s%d, s2, 3" % (sTmp, sTmp2))
        p("s_lshr_b32 s%d, s%d, 2\ns_lshl_b32 s%d, s%d, 3\ns_lshr_b32 s3, s%d, 2\ns_add_u32 s%d, s%d, s3" % (sT, sTmp, sT, sT, sTmp2, sT, sT))
        p("s_lshl_b32 s%d, s%d, 17\ns_lshl_b32 s3, s%d, 15\ns_add_u32 s%d, s%d, s3" % (sXo, sT, sWave, sXo, sXo))
        p("s_lshl_b32 s%d, s%d, 12\ns_and_b32 s%d, s%d, 1" % (sMx, sWave, sC, sWave))
        p("v_lshrrev_b32 v2, 3, v1\nv_and_b32 v3, 7, v1\nv_lshrrev_b32 v4, 4, v1\nv_and_b32 v5, 1, v4")
        p("v_xor_b32 v6, v3, v4\nv_lshlrev_b32 v6, 4, v6\nv_lshl_add_u32 v%d, v2, 10, v6" % vXo)
        p("v_xor_b32 v6, 64, v%d\nv_add_u32 v%d, 7168, v6\nv_add_u32 v%d, 14336, v%d\nv_add_u32 v%d, 21504, v6" % (vXo, vXo + 1, vXo + 2, vXo, vXo + 3))
        tw = any(t and t[0] not in "wc" for t in o["touch"].split(","))
        t2 = any(t and t[0] in "LHUM" for t in o["touch"].split(","))
        if t2:
            r16, r128, b0, s1, s2_, s3_, nj = sKv, sW2o, sWa, sWb, sMw, sMq, sHo
            p("s_lshr_b32 s%d, s2, 4\ns_lshl_b32 s%d, s%d, 3\ns_add_u32 s%d, s%d, s%d" % (r16, r128, r16, r128, r128, sTmp))
            p("s_mov_b32 s3, 0x%x\ns_cmp_eq_u32 s%d, 1\ns_cselect_b32 s%d, 0x%x, s3\ns_cmp_eq_u32 s%d, 0\ns_cselect_b32 s%d, 0x200000, s%d" % (512 * 2752, sWave, sTc + 2, 512 * 3072, sWave, sTc + 2, sTc + 2))
            z = """s_movk_i32 s{s3}, 128
s_movk_i32 s{s2}, 512
s_bitcmp1_b32 s2, 3
s_cbranch_scc1 LtB
s_lshr_b32 s{s1}, s{sz}, 3
s_mov_b32 s{nj}, 4
s_cmp_eq_u32 s{w}, 1
s_cbranch_scc1 LtA1
s_cmp_eq_u32 s{w}, 0
s_cbranch_scc1 LtA0
s_mul_i32 s{b0}, s{r16}, 11008
s_and_b32 s3, s2, 3
s_mul_i32 s3, s3, 448
s_add_u32 s{b0}, s{b0}, s3
s_movk_i32 s{s2}, 2752
s_branch LtE
LtA0:
s_lshl_b32 s{b0}, s{r128}, 14
s_movk_i32 s{s1}, 128
s_movk_i32 s{s2}, 4096
s_movk_i32 s{s3}, 1024
s_branch LtE
LtA1:
s_lshr_b32 s3, s{r128}, 1
s_add_u32 s{b0}, s{r128}, s3
s_add_u32 s{b0}, s{b0}, 1
s_lshl_b32 s{b0}, s{b0}, 10
s_mov_b32 s{nj}, 2
s_branch LtE
LtB:
s_lshr_b32 s{s1}, s{sz}, 9
s_mul_i32 s{b0}, s{r128}, s{s1}
s_lshl_b32 s{b0}, s{b0}, 2
s_cmp_ge_u32 s{w}, 2
s_cselect_b32 s3, 1728, 0
s_add_u32 s{b0}, s{b0}, s3
s_cmp_eq_u32 s{w}, 0
s_cselect_b32 s{nj}, 0, 2
LtE:""".format(s1=s1, s2=s2_, s3=s3_, b0=b0, nj=nj, r16=r16, r128=r128, w=sWave, sz=sTc + 2)
            p(z, raw=True)
            p("v_bfe_u32 v7, v1, 2, 2\nv_and_b32 v8, 3, v1\nv_mov_b32 v6, s%d\nv_mad_u32_u24 v6, v4, s%d, v6\nv_mad_u32_u24 v6, v7, s%d, v6\nv_mad_u32_u24 v6, v8, s%d, v6" % (b0, s1, s2_, s3_))
            p("v_mov_b32 v8, 0x%x\nv_cmp_gt_u32 vcc, s%d, v7\nv_cndmask_b32 v%d, v8, v6, vcc\ns_mov_b32 s%d, 0x20000\ns_lshl_b32 s%d, s%d, 2" % (OOB, nj, vTa, sTc + 3, sPC, s1))
        elif tw:
            p("s_mov_b32 s3, 176128\ns_cmp_eq_u32 s%d, 1\ns_cselect_b32 s%d, 196608, s3\ns_lshl_b32 s%d, s%d, 3" % (sWave, sWa, sTc + 2, sWa))
            p("s_cmp_eq_u32 s%d, 0\ns_cselect_b32 s%d, 128, s%d\ns_cselect_b32 s%d, 8, 6\ns_cselect_b32 s%d, 10, 7\ns_cselect_b32 s%d, 0x200000, s%d" % (sWave, sWa, sWa, sWb, sMw, sTc + 2, sTc + 2))
            p("s_mul_i32 s3, s2, s%d\nv_add_u32 v6, s3, v2\nv_lshlrev_b32 v6, s%d, v6\nv_mad_u32_u24 v6, v3, s%d, v6" % (sWb, sMw, sWa))
            p("v_mov_b32 v7, 0x%x\nv_cmp_gt_u32 vcc, s%d, v2\nv_cndmask_b32 v%d, v7, v6, vcc\ns_mov_b32 s%d, 0x20000" % (OOB, sWb, vTa, sTc + 3))
        p("s_and_b32 s3, s%d, 3\ns_lshl_b32 s%d, s3, 1\ns_bfe_u32 s3, s%d, 0x10001\ns_add_u32 s%d, s%d, s3" % (sTmp, sU, sTmp2, sU, sU))
        if o["p2map"] == "4x8":
            p("s_lshl_b32 s%d, s%d, 2\ns_lshr_b32 s3, s%d, 3\ns_add_u32 s%d, s%d, s3\ns_and_b32 s%d, s%d, 7" % (sTT, sTmp, sTmp2, sTT, sTT, sCT, sTmp2))
        else:
            p("s_lshr_b32 s%d, s%d, 1\ns_lshl_b32 s%d, s%d, 3\ns_lshr_b32 s3, s%d, 2\ns_add_u32 s%d, s%d, s3" % (sTT, sTmp, sTT, sTT, sTmp2, sTT, sTT))
            p("s_and_b32 s%d, s%d, 1\ns_lshl_b32 s%d, s%d, 2\ns_and_b32 s3, s%d, 3\ns_add_u32 s%d, s%d, s3" % (sCT, sTmp, sCT, sCT, sTmp2, sCT, sCT))
        self.srd(p, sX, 4, 2048 * 1024)
        if tw:
            p("s_bitcmp1_b32 s%d, 0\ns_cselect_b64 s[%d:%d], s[6:7], s[4:5]\ns_cselect_b64 s[100:101], s[16:17], s[14:15]" % (sWave, sTc, sTc + 1))
            p("s_cmp_lt_u32 s%d, 2\ns_cselect_b64 s[%d:%d], s[%d:%d], s[100:101]" % (sWave, sTc, sTc + 1, sTc, sTc + 1))
        for c in self.touches("pre"):
            if t2:
                p("s_bitcmp%d_b32 s2, 3\ns_cselect_b32 s3, 0x%x, 0" % (0 if "U@pre" in o["touch"] else 1, OOB))
                for i in c: p(i.text.replace(", 0 offen", ", s3 offen"))
            else: p.ext(c)
        for c in self.xdma(0): p.ext(c)
        for c in self.touches("x0"): p.ext(c)
        p("s_cmp_lt_u32 s%d, 2\ns_cselect_b64 s[%d:%d], s[14:15], s[16:17]" % (sWave, sW, sW + 1))
        p("s_mov_b32 s%d, 0x%x\ns_mov_b32 s%d, 0x20000" % (sW + 2, 512 * 2752, sW + 3))
        self.srd(p, sQ, 6, 512 * 3072)
        p("s_bitcmp0_b32 s2, 3\ns_cbranch_scc1 LpathA")
        return p
    def dma(self, pre, v, srd, so, imm, post, tag):
        p = P()
        if pre: p(pre)
        p("buffer_load_dwordx4 v%d, %s, s%d offen offset:%d lds" % (v, sr(srd), so, imm), tag=tag)
        if post: p(post)
        return p.l
    def group(self, n, m0reg, m0off, v, srd, so, step, tag):
        first = so not in self.started; self.started.add(so)
        def pre(j):
            if j % 4: return ""
            t = "s_add_u32 m0, s%d, %d" % (m0reg, m0off + 1024 * j)
            if j == 0 and not first: t += "\ns_%s_u32 s%d, s%d, %d" % ("add" if step > 0 else "sub", so, so, abs(step))
            return t
        return [self.dma(pre(j), v + j, srd, so, 1024 * (j % 4), "", tag) for j in range(n)]
    def xdma(self, sg): return self.group(4, sMx, XS[sg % 3], vXo, sX, sXo, 128, "slab%d" % sg)
    def common2(self, q, B):
        q("v_lshlrev_b32 v6, 2, v5\nv_xor_b32 v6, v3, v6\nv_lshlrev_b32 v7, 4, v6")
        q("v_lshl_add_u32 v%d, v2, 10, v7\nv_add_u32 v%d, 7168, v%d\nv_add_u32 v%d, %d, v%d\nv_add_u32 v%d, %d, v%d" % (v2o, v2o + 1, v2o, v2o + 2, 65536 - 2048, v2o, v2o + 3, 65536 - 2048, v2o + 1))
        if B: q("v_mul_u32_u24 v6, 3072, v2\nv_add_u32 v%d, v6, v7\nv_add_u32 v%d, %d, v%d" % (vWo + 7, vWo + 8, 8 * 3072 - 1024, vWo + 7))
        self.srd(q, sD, 18, 1376 * 1024); self.srd(q, sO, 10, 512 * 1024); self.srd(q, sH, 26, WS_SIZE)
        self.srd(q, sG, 24, 256); self.srd(q, sOut, 22, 2048 * 1024); self.srd(q, sM, 8, 16384); self.srd(q, sM2, 20, 1024)
        q("v_lshlrev_b32 v%d, 4, v1" % vL16)
        q("v_mov_b32 v%d, 1\nv_mov_b32 v6, 0x%x\nv_cmp_eq_u32 vcc, 0, v0\nv_cndmask_b32 v%d, v6, 0, vcc" % (vOne, OOB, vFlag))
        q("v_lshlrev_b32 v7, 7, v0\nv_cmp_gt_u32 vcc, 16, v0\nv_cndmask_b32 v%d, v6, v7, vcc\nv_cmp_gt_u32 vcc, 8, v0\nv_cndmask_b32 v%d, v6, v7, vcc" % (vPoll, vPoll8))
        q("s_mov_b32 s%d, 0x%x\ns_mov_b32 s%d, 0x%x\ns_mov_b32 s%d, 0x%x\ns_mov_b32 s%d, 0x%x\nv_mov_b32 v%d, 0x%x" % (sL2E, f2u(L2E), sL2E + 1, f2u(L2E), sK2, f2u(K2), sK2 + 1, f2u(K2), vK1, f2u(K1)))
        q("s_cmp_eq_u32 s%d, 0\ns_cselect_b32 s%d, 0xffff, 0\ns_cselect_b32 s%d, 0xff, 0" % (sWave, sExp, sE8))
        q("s_lshl_b32 s%d, s%d, 14\ns_lshl_b32 s3, s%d, 7\ns_add_u32 s%d, s%d, s3" % (sW2o, sWave, sCT, sW2o, sW2o))
        q("s_lshl_b32 s3, s%d, 2\ns_add_u32 s3, s3, s%d\ns_lshl_b32 s3, s3, 12\ns_add_u32 s%d, s3, 0x%x" % (sU, sWave, sKv, WS_KV))
        q("v_and_b32 v2, 31, v1\nv_lshrrev_b32 v3, 5, v1\nv_bfe_u32 v6, v2, 1, 3\nv_xor_b32 v6, v3, v6\nv_lshlrev_b32 v6, 4, v6\nv_lshl_add_u32 v6, v2, 7, v6")
        q("v_bfe_u32 v4, v1, 2, 2\nv_lshrrev_b32 v9, 1, v4\nv_and_b32 v7, 3, v1\nv_lshlrev_b32 v7, 3, v7\nv_lshl_add_u32 v8, v3, 3, v4")
    def w2_init(self, loc, bases, avail):
        self.loc = loc; self.bases = bases; self.used = []; self.avail = avail; self.g = 0
    def w2(self, spec):
        r = []
        for t in spec.split("."):
            if not t: continue
            if t in ("T", "X", "Z"): r += self.extra[t]; continue
            if t[0] == "P":
                z = P(); self.poll_issue(z, t[1:]); r.append(z.l); continue
            i = int(t[1:]); assert t not in self.used, t
            self.used.append(t)
            if t[0] in "GQ":
                assert i == 0 or "%s%d" % (t[0], i - 1) in self.used
                assert self.g >= self.avail[t], (t, self.g)
                r += self.other(i)
            elif t[0] == "D":
                assert i == 0 or "D%d" % (i - 1) in self.used
                assert self.g >= self.avail[self.loc[i]], (t, self.g)
                prev = [k for k in range(i) if self.loc[k] == self.loc[i]]
                g = self.group(4, sMx, self.loc[i], v2o, sD if i < 11 else sO, sW2o, -10 * 131072 + 32768 if i == 11 else 131072 - 32768 if i == 7 else 131072, "w2d%d" % i)
                if prev: g[0] = [Ins("@wait lg:w2r%d" % prev[-1])] + g[0]
                r += g
            else:
                assert self.g >= 34 + 2 * i, (t, self.g)
                rs = max(k for k, b in enumerate(self.bases) if b <= self.loc[i]); off = self.loc[i] - self.bases[rs]
                assert off + 4096 <= 65536
                for st in range(2):
                    for cb in range(2):
                        for half in range(2):
                            p = P()
                            if st == cb == half == 0: p("@wait vm:w2d%d" % i)
                            p("ds_read_b64_tr_b16 %s, v%d offset:%d" % (ar(8 * (2 * i + st) + 4 * cb + 2 * half, 2), v2a + 2 * rs + cb, off + st * 2048 + half * 1024), tag="w2r%d" % i)
                            r.append(p.l)
        return r
    def w2_addr(self):
        p = P(); va = v2a
        p("v_bfe_u32 v2, v1, 2, 2\nv_lshrrev_b32 v3, 5, v1\nv_lshl_add_u32 v3, v3, 2, v2\nv_and_b32 v2, 2, v2\nv_bfe_u32 v4, v1, 4, 1\nv_or_b32 v2, v2, v4")
        p("v_and_b32 v4, 3, v1\nv_lshlrev_b32 v4, 3, v4\nv_lshl_add_u32 v4, v2, 5, v4\nv_lshl_add_u32 v4, v3, 7, v4\nv_add_u32 v%d, s%d, v4\nv_xor_b32 v%d, 64, v%d" % (va, sMx, va + 1, va))
        assert self.bases[0] == 0
        for k in range(1, len(self.bases)): p("v_add_u32 v%d, %d, v%d\nv_add_u32 v%d, %d, v%d" % (va + 2 * k, self.bases[k], va, va + 2 * k + 1, self.bases[k], va + 1))
        return p
    def flag_off(self, p, kind, B, d):
        if kind == "kv": p("s_lshl_b32 s%d, s%d, 4\ns_add_u32 s%d, s%d, s%d\ns_lshl_b32 s%d, s%d, 7" % (d, sU, d, d, sT, d, d)); base = FKV
        elif kind == "h": p("s_lshl_b32 s%d, s%d, 4\ns_add_u32 s%d, s%d, s%d\ns_lshl_b32 s%d, s%d, 7" % (d, sT, d, d, sU, d, d)); base = FHD + (0 if B else 8)
        else: p("s_lshl_b32 s%d, s%d, 3\ns_add_u32 s%d, s%d, s%d\ns_lshl_b32 s%d, s%d, 7" % (d, sT, d, d, sU, d, d)); base = FOD
        p("s_add_u32 s%d, s%d, 0x%x" % (d, d, WS_FL + base * 128))
    def flag(self, p, d):
        p("buffer_store_dword v%d, v%d, %s, s%d offen sc1" % (vOne, vFlag, sr(sH), d))
    def poll_off(self, p, kind):
        d = {"kv": sPk, "h": sPh, "o": sPo}[kind]
        if kind == "kv": p("s_lshl_b32 s%d, s%d, 11\ns_add_u32 s%d, s%d, 0x%x" % (d, sU, d, d, WS_FL + FKV * 128))
        elif kind == "h": p("s_lshr_b32 s%d, s%d, 1\ns_lshl_b32 s%d, s%d, 11\ns_add_u32 s%d, s%d, 0x%x" % (d, sTT, d, d, d, d, WS_FL + FHD * 128))
        else: p("s_lshr_b32 s%d, s%d, 1\ns_lshl_b32 s%d, s%d, 10\ns_add_u32 s%d, s%d, 0x%x" % (d, sTT, d, d, d, d, WS_FL + FOD * 128))
    def poll_ins(self, kind, first=False):
        if kind == "init": return "buffer_load_dword v%d, v%d, %s, 0 offen sc1" % (vPr, vDum + 1, sr(sG))
        if self.o.get("apoll", 1) > (1 if first else 0):
            return "v_mov_b32 v%d, 0\nbuffer_atomic_or v%d, v%d, %s, s%d offen offset:%d sc0" % (vPr, vPr, vPoll if kind == "kv" else vPoll8, sr(sH), {"kv": sPk, "h": sPh, "a": sPh, "o": sPo}[kind], 1024 if kind == "a" else 0)
        return "buffer_load_dword v%d, v%d, %s, s%d offen offset:%d sc1" % (vPr, vPoll if kind == "kv" else vPoll8, sr(sH), {"kv": sPk, "h": sPh, "a": sPh, "o": sPo}[kind], 1024 if kind == "a" else 0)
    def poll_issue(self, p, kind):
        if kind == "init": p("v_lshrrev_b32 v%d, 5, v%d" % (vDum + 1, vPoll8))
        p(self.poll_ins(kind, True))
    def poll_check(self, p, kind):
        k = self.nlab; self.nlab += 1
        e = sExp if kind == "kv" else sE8
        p("v_cmp_eq_u32 vcc, 1, v%d\ns_nop 1\ns_and_b32 s%d, vcc_lo, s%d\ns_cmp_eq_u32 s%d, s%d\ns_cbranch_scc1 Lok%d" % (vPr, sPC, e, sPC, e, k))
        p("s_mov_b32 s%d, 0\nLsp%d:\ns_sleep %d\n%s\ns_waitcnt vmcnt(0)" % (sPC + 1, k, self.o.get("sleep", 0), self.poll_ins(kind)), raw=True)
        p("v_cmp_eq_u32 vcc, 1, v%d\ns_add_u32 s%d, s%d, 1\ns_nop 0\ns_and_b32 s%d, vcc_lo, s%d\ns_cmp_eq_u32 s%d, s%d\ns_cbranch_scc1 Lok%d\ns_cmp_lt_u32 s%d, 0x8000\ns_cbranch_scc1 Lsp%d\nLok%d:" % (vPr, sPC + 1, sPC + 1, sPC, e, sPC, e, k, sPC + 1, k, k), raw=True)
    def gate_job(self, g=112, sA=sMw, sB=sMq, tag="hst"):
        ld = P(); c = P(); gw = vGt; vA = vGt + 6
        ld("s_lshl_b32 s3, s%d, 3\ns_add_u32 s3, s3, s%d\ns_lshl_b32 s3, s3, 2\ns_add_u32 s3, s3, s%d" % (sT, sU, sWave))
        ld("s_lshl_b32 s%d, s3, 4\ns_add_u32 s%d, s%d, 0x%x\ns_lshl_b32 s%d, s3, 12\nv_lshlrev_b32 v%d, 4, v1" % (sA, sA, sA, WS_G, sB, vA))
        lds = [ld.l + [Ins("buffer_load_dwordx4 %s, v%d, %s, 0 offen" % (vr(gw), vA, sr(sM2)))]]
        for k in range(4): lds.append([Ins("buffer_load_dwordx4 %s, v%d, %s, s%d offen offset:%d" % (vr(g + 4 * k), vA, sr(sX), sB, 1024 * k))])
        for i in range(4):
            c("v_lshlrev_b32 v6, 16, v%d\nv_and_b32 v7, 0xffff0000, v%d" % (gw + i, gw + i))
            for k in range(4):
                c("v_lshlrev_b32 v8, 16, v%d\nv_and_b32 v9, 0xffff0000, v%d" % (g + 4 * k + i, g + 4 * k + i))
                c("%s v%d, v8, v6\nv_fmac_f32 v%d, v9, v7" % ("v_mul_f32" if i == 0 else "v_fmac_f32", 2 + k, 2 + k))
        c("v_and_b32 v6, 15, v1\nv_lshlrev_b32 v6, 25, v6")
        c("v_permlane32_swap_b32 v2, v4\nv_permlane32_swap_b32 v3, v5\nv_add_f32 v2, v2, v4\nv_add_f32 v3, v3, v5")
        c("v_lshrrev_b32 v7, 2, v1\nv_or_b32 v6, v6, v7")
        c("v_permlane16_swap_b32 v2, v3\nv_add_f32 v2, v2, v3")
        for r in (8, 4, 2, 1): c("v_add_f32_dpp v2, v2, v2 row_ror:%d row_mask:0xf bank_mask:0xf" % r)
        c("v_mul_f32 v2, 0x%x, v2\nv_exp_f32 v2, v2\nv_add_f32 v2, 1.0, v2\nv_rcp_f32 v%d, v2\nv_mov_b32 v%d, v6" % (f2u(-L2E), gw, gw + 1))
        st = P(); st("buffer_store_dword v%d, v%d, %s, s%d offen sc1" % (gw, gw + 1, sr(sH), sA), tag=tag)
        return lds, c, st
    def wphi_load(self):
        p = P()
        p("s_lshl_b32 s3, s%d, 10\ns_add_u32 m0, s3, %d\ns_lshl_b32 s%d, s%d, 11\ns_add_u32 s3, s3, s%d" % (sC, MISC, sTmp, sU, sTmp))
        p("buffer_load_dwordx4 v%d, %s, s3 offen lds" % (vL16, sr(sM)), tag="wphi")
        return p.l
    def wphi_read(self):
        p = P()
        p("v_bfe_u32 v2, v1, 2, 2\nv_lshrrev_b32 v3, 5, v1\nv_lshl_add_u32 v3, v3, 2, v2\nv_bfe_u32 v2, v1, 1, 1\nv_and_b32 v4, 16, v1\nv_lshl_add_u32 v4, v2, 3, v4\nv_lshl_add_u32 v4, v3, 5, v4")
        p("s_lshl_b32 s3, s%d, 10\ns_add_u32 s3, s3, %d\nv_add_u32 v4, s3, v4" % (sC, MISC))
        p("@wait vm:wphi")
        for b in range(2):
            for half in range(2): p("ds_read_b64_tr_b16 %s, v4 offset:%d" % (vr(vWp + 4 * b + 2 * half, 2), b * 512 + half * 256))
        p("v_bfe_u32 v6, v1, 2, 1\nv_mul_u32_u24 v6, 0x8000, v6\nv_lshl_or_b32 v%d, v6, 16, v6" % vSign)
        q = P()
        for i in range(8): q("v_xor_b32 v%d, v%d, v%d" % (vWp + i, vWp + i, vSign))
        return p, q
    def softmax(self, Pr, T, out, pk=True):
        p = P()
        if not pk:
            for k in range(5): p("v_max3_f32 v%d, v%d, v%d, v%d" % (T + k, Pr + 3 * k, Pr + 3 * k + 1, Pr + 3 * k + 2))
            p("v_max3_f32 v%d, v%d, v%d, v%d\nv_max3_f32 v%d, v%d, v%d, v%d\nv_max_f32 v%d, v%d, v%d" % (T, T, T + 1, Pr + 15, T + 2, T + 2, T + 3, T + 4, T, T, T + 2))
            p("v_mul_f32 v%d, 0x%x, v%d" % (T, f2u(-L2E), T))
            for k in range(2): p("v_fma_f32 v%d, v%d, s%d, v%d" % (Pr + k, Pr + k, sL2E, T))
            for k in range(16):
                p("v_exp_f32 v%d, v%d" % (Pr + k, Pr + k))
                if k < 14: p("v_fma_f32 v%d, v%d, s%d, v%d" % (Pr + k + 2, Pr + k + 2, sL2E, T))
                if k == 3: p("v_add_f32 v%d, v%d, v%d" % (T + 1, Pr, Pr + 1))
                if k > 3: p("v_add_f32 v%d, v%d, v%d" % (T + 1, T + 1, Pr + k - 2))
            p("v_add_f32 v%d, v%d, v%d\nv_add_f32 v%d, v%d, v%d\nv_rcp_f32 v%d, v%d" % (T + 1, T + 1, Pr + 14, T + 1, T + 1, Pr + 15, T, T + 1))
            for k in range(8):
                p("v_mul_f32 v%d, v%d, v%d\nv_mul_f32 v%d, v%d, v%d" % (Pr + 2 * k, Pr + 2 * k, T, Pr + 2 * k + 1, Pr + 2 * k + 1, T))
                if k: p("v_cvt_pk_bf16_f32 v%d, v%d, v%d" % (out + k - 1, Pr + 2 * k - 2, Pr + 2 * k - 1))
            p("v_cvt_pk_bf16_f32 v%d, v%d, v%d" % (out + 7, Pr + 14, Pr + 15))
            return p
        for k in range(5): p("v_max3_f32 v%d, v%d, v%d, v%d" % (T + k, Pr + 3 * k, Pr + 3 * k + 1, Pr + 3 * k + 2))
        p("v_max3_f32 v%d, v%d, v%d, v%d\nv_max3_f32 v%d, v%d, v%d, v%d\nv_max_f32 v%d, v%d, v%d" % (T, T, T + 1, Pr + 15, T + 2, T + 2, T + 3, T + 4, T, T, T + 2))
        p("v_mul_f32 v%d, 0x%x, v%d" % (T, f2u(-L2E), T))
        for k in range(8): p("v_pk_fma_f32 %s, %s, %s, %s op_sel_hi:[1,0,0]" % (vr(Pr + 2 * k, 2), vr(Pr + 2 * k, 2), sr(sL2E, 2), vr(T, 2)))
        for k in range(16): p("v_exp_f32 v%d, v%d" % (Pr + k, Pr + k))
        for k in range(4): p("v_pk_add_f32 %s, %s, %s" % (vr(T + 2 * k, 2), vr(Pr + 4 * k, 2), vr(Pr + 4 * k + 2, 2)))
        p("v_pk_add_f32 %s, %s, %s\nv_pk_add_f32 %s, %s, %s\nv_pk_add_f32 %s, %s, %s" % (vr(T, 2), vr(T, 2), vr(T + 2, 2), vr(T + 4, 2), vr(T + 4, 2), vr(T + 6, 2), vr(T, 2), vr(T, 2), vr(T + 4, 2)))
        p("v_add_f32 v%d, v%d, v%d\nv_rcp_f32 v%d, v%d" % (T, T, T + 1, T, T))
        for k in range(8): p("v_pk_mul_f32 %s, %s, %s op_sel_hi:[1,0]" % (vr(Pr + 2 * k, 2), vr(Pr + 2 * k, 2), vr(T, 2)))
        for k in range(8): p("v_cvt_pk_bf16_f32 v%d, v%d, v%d" % (out + k, Pr + 2 * k, Pr + 2 * k + 1))
        return p
    def gelu(self, a, T, soff, imm, pk=True):
        p = P()
        if not pk:
            for k in range(8): p("v_mul_f32 v%d, v%d, v%d" % (T + k, a + k, a + k))
            for k in range(8): p("v_fma_f32 v%d, v%d, s%d, v%d" % (T + k, T + k, sK2, vK1))
            for k in range(2): p("v_mul_f32 v%d, v%d, v%d" % (T + k, T + k, a + k))
            for k in range(8):
                p("v_exp_f32 v%d, v%d" % (T + k, T + k))
                if k < 6: p("v_mul_f32 v%d, v%d, v%d" % (T + k + 2, T + k + 2, a + k + 2))
                p("v_mul_f32 v%d, v%d, v%d" % (a + k, a + k, a + 8 + k))
            for k in range(2): p("v_add_f32 v%d, 1.0, v%d" % (T + k, T + k))
            for k in range(8):
                p("v_rcp_f32 v%d, v%d" % (T + k, T + k))
                if k < 6: p("v_add_f32 v%d, 1.0, v%d" % (T + k + 2, T + k + 2))
                if k >= 1: p("v_mul_f32 v%d, v%d, v%d" % (a + k - 1, a + k - 1, T + k - 1))
            p("v_cvt_pk_bf16_f32 v%d, v%d, v%d\nv_mul_f32 v%d, v%d, v%d" % (a + 8, a, a + 1, a + 7, a + 7, T + 7))
            for k in range(1, 4): p("v_cvt_pk_bf16_f32 v%d, v%d, v%d" % (a + 8 + k, a + 2 * k, a + 2 * k + 1))
            p("buffer_store_dwordx4 %s, v%d, %s, s%d offen offset:%d sc1" % (vr(a + 8), vL16, sr(sH), soff, imm), tag="hst")
            return p
        for k in range(4): p("v_pk_mul_f32 %s, %s, %s" % (vr(T + 2 * k, 2), vr(a + 2 * k, 2), vr(a + 2 * k, 2)))
        for k in range(4): p("v_pk_fma_f32 %s, %s, %s, %s op_sel_hi:[1,0,0]" % (vr(T + 2 * k, 2), vr(T + 2 * k, 2), sr(sK2, 2), vr(vK1, 2)))
        for k in range(4): p("v_pk_mul_f32 %s, %s, %s" % (vr(T + 2 * k, 2), vr(T + 2 * k, 2), vr(a + 2 * k, 2)))
        for k in range(8): p("v_exp_f32 v%d, v%d" % (T + k, T + k))
        for k in range(4): p("v_pk_mul_f32 %s, %s, %s" % (vr(a + 2 * k, 2), vr(a + 2 * k, 2), vr(a + 8 + 2 * k, 2)))
        for k in range(4): p("v_pk_add_f32 %s, %s, 1.0 op_sel_hi:[1,0]" % (vr(T + 2 * k, 2), vr(T + 2 * k, 2)))
        for k in range(8): p("v_rcp_f32 v%d, v%d" % (T + k, T + k))
        for k in range(4): p("v_pk_mul_f32 %s, %s, %s" % (vr(a + 2 * k, 2), vr(a + 2 * k, 2), vr(T + 2 * k, 2)))
        for k in range(4): p("v_cvt_pk_bf16_f32 v%d, v%d, v%d" % (a + 8 + k, a + 2 * k, a + 2 * k + 1))
        p("buffer_store_dwordx4 %s, v%d, %s, s%d offen offset:%d sc1" % (vr(a + 8), vL16, sr(sH), soff, imm), tag="hst")
        return p
    def hpos(self, p, dst, ksreg):
        p("s_and_b32 s3, s%d, 3\ns_mul_i32 s3, s3, 30\ns_lshr_b32 s%d, s%d, 2\ns_add_u32 s3, s3, s%d" % (ksreg, dst, ksreg, dst))
        p("s_lshl_b32 s3, s3, %d\ns_add_u32 s%d, s3, s%d" % (10 + self.hs, dst, sHo))
    def scalars(self, e, B):
        if self.hs == 2: e("v_lshrrev_b32 v2, 3, v1\nv_lshl_add_u32 v%d, v2, 7, v%d" % (vL16, vL16))
        self.flag_off(e, "h", B, sF1); self.flag_off(e, "o" if B else "kv", B, sF2)
        self.poll_off(e, "h"); self.poll_off(e, "o")
        if B: self.poll_off(e, "kv")
        e("s_lshl_b32 s%d, s%d, 8\ns_add_u32 s%d, s%d, 0x%x" % (sGo, sTT, sGo, sGo, WS_G))
        e("s_lshl_b32 s%d, s%d, 16\ns_lshl_b32 s3, s%d, 7\ns_add_u32 s%d, s%d, s3\ns_add_u32 s%d, s%d, 32768" % (sOa, sTT, sCT, sOa, sOa, sOb, sOa))
    @staticmethod
    def cost(c):
        t = 0
        for i in c:
            if i.raw or i.op.startswith("@cut"): continue
            t += 8 if i.op.startswith(("v_exp", "v_rcp")) else 40 if i.op == "ds_write_b128" else 20 if i.cls == "vmem" else 32 if i.cls == "mfma" else 4
        return t
    @staticmethod
    def zones(l):
        out = []; pk = [i.op.startswith("v_pk") for i in l]; k = 0
        while k < len(l):
            if not pk[k]: out.append([l[k]]); k += 1; continue
            e = k
            while any(pk[e + 1:e + 4]): e += 1
            out.append(l[k:e + 1]); k = e + 1
        return out
    def flush(self, p):
        self.nflush = len(self.fq)
        for c in self.fq: p.ext(c)
        self.fq = []
    def engine(self, p, nsteps, mfmas, reads, pre, rel, dq, front, budget=lambda g: 24):
        self.fq = []; debt = 0
        for g in range(nsteps):
            self.g = g
            pre(g, p)
            if g in rel: dq += rel[g]()
            nxt = min([k for k in rel if k > g] + [nsteps])
            nq = -(-len(dq) // (nxt - g))
            mm = mfmas(g); rd = reads(g); ex = list(self.side.get(g, []))
            fr = front(g)
            if fr: nq = max(nq, min(len(dq), fr * len(mm)))
            rper = max(2, -(-len(rd) // max(1, len(mm) - 1)))
            if self.fq and len(rd) <= len(mm) and (g % 4 != 2 or len(mm) == 2): rper = 1
            for gi, m in enumerate(mm):
                xm = self.o.get("x_j1", 0) if g < 31 else 0
                if not xm & 1: p(m)
                n0 = len(p.l)
                for _ in range(rper):
                    if rd:
                        c = rd.pop(0)
                        if not xm & 2 or len(rd) == 0: p.ext(c)
                rem = len(mm) - gi
                k = max(nq // rem, min(nq, fr))
                for _ in range(k):
                    c = dq.pop(0); nq -= 1
                    if xm & 4 and c[-1].cls == "vmem" and len(dq) > 0: c = c[:-1]
                    p.ext(c)
                k = -(-len(ex) // rem)
                for _ in range(k): p.ext(ex.pop(0))
                used = self.cost(p.l[n0:])
                while self.fq:
                    c = self.fq[0]; z = c[0].op.startswith("v_pk"); cc = self.cost(c)
                    if not z and used + min(cc, 16) > budget(g): break
                    p.ext(self.fq.pop(0)); used += cc
                    if c[0].cls == "mfma": used = 0
                    if z: break
            assert not rd and not ex and nq == 0
        assert not dq
        self.g = nsteps
        self.flush(p)
    def addside(self, g, chunks): self.side.setdefault(g, []); self.side[g] += chunks
    def spread(self, chunks, g0, g1):
        if isinstance(chunks, P): chunks = [[i] for i in chunks.l]
        n = len(chunks)
        for g in range(g0, g1): self.addside(g, chunks[(g - g0) * n // (g1 - g0):(g - g0 + 1) * n // (g1 - g0)])
    def seg(self, p, e, spec):
        ch = self.w2(spec)
        p.ext(merge(e.l, ch, max(1, len(e.l) // (len(ch) + 1))))
    xf = staticmethod(lambda g, tb: ar(8 * (g % 32) + 4 * tb))
    def pathA(self):
        o = self.o; p = P(); B = self.B = False; self.side = {}
        vWo2 = 24; vXa = 28; vWa1 = 32; vWa2 = 34
        aPw, aPw2, aVw, aPr, aVr, aKeep, aOnes, aAt = range(36, 44)
        J = [A_J2 + 16384 * i for i in range(4)]
        K = [A_KV + 16384 * i for i in range(3)]
        ex = o.get("aexp", 1); sHs = 36
        gx = 32 if ex else 4 * o.get("axb", 12) + 3; gk = gx + o.get("akv", 3 if ex else 4)
        GL = J + XS + [J[0]]
        bars = [int(x) for x in str(o.get("abar", "8.11.13.15" if ex else "8.9.10.11.12.13.15")).split(".")]
        fb = lambda n: 4 * min(k for k in bars if k >= n) + 3
        av = {}
        for m in range(8): av[GL[m]] = fb(8 + m)
        for i in range(3): av[K[i]] = fb(gk // 4)
        for i in range(8): av["G%d" % i] = [23, 23, 23, 23, 27, 31, 23, fb(8)][i]
        self.w2_init(K + J[1:] + XS + [J[0]] + K + J[1:3] if ex else J[1:] + XS[:1] + K + XS[1:] + J + XS[:1] + K[:1], [0, 65536, 131072], av)
        p("LpathA:")
        p("s_lshr_b32 s%d, s%d, 1\ns_lshl_b32 s3, s%d, 2" % (sTmp, sWave, sTmp))
        p("v_lshlrev_b32 v6, 1, v5\nv_xor_b32 v6, v3, v6\nv_xor_b32 v6, s3, v6\nv_lshlrev_b32 v6, 4, v6")
        p("v_mul_u32_u24 v7, 3072, v2\nv_add_u32 v%d, v6, v7" % vWo)
        for j in range(1, 4): p("v_add_u32 v%d, %d, v%d" % (vWo + j, j * (8 * 3072 - 1024), vWo))
        p("s_lshl_b32 s%d, s%d, 10\ns_lshl_b32 s3, s%d, 7\ns_add_u32 s%d, s%d, s3\ns_mul_i32 s3, s%d, %d\ns_add_u32 s%d, s%d, s3\ns_add_u32 s%d, s%d, 1024" % (sWa, sTmp, sU, sWa, sWa, sC, 32 * 3072, sWa, sWa, sWa, sWa))
        kvdma = lambda sg: self.group(4, sMx, A_KV + 16384 * (sg % 3), vWo, sQ, sWa, 64 * 3072, "slab%d" % sg)
        gudma = lambda m: self.group(4, sMx, GL[m], vWo2, sW, sWb, 64 * 2752, "slab%d" % (8 + m))
        self.other = gudma
        for c in kvdma(0) + self.touches("s0"): p.ext(c)
        self.stamp(p, "issued0")
        dq = self.xdma(1) + kvdma(1)
        npre = o.get("apre", 8)
        for c in dq[:npre]: p.ext(c)
        dq = dq[npre:]
        p("v_mul_u32_u24 v7, 2752, v2\nv_add_u32 v%d, v6, v7" % vWo2)
        for j in range(1, 4): p("v_add_u32 v%d, %d, v%d" % (vWo2 + j, j * (8 * 2752 - 1024), vWo2))
        p("s_lshl_b32 s3, s%d, 2\ns_add_u32 s%d, s3, 54" % (sU, sFfn))
        p("s_lshl_b32 s%d, s%d, 5\ns_mul_i32 s3, s%d, %d\ns_add_u32 s%d, s%d, s3" % (sWb, sFfn, sC, 32 * 2752, sWb, sWb))
        self.common2(p, B)
        p("s_lshr_b32 s3, s%d, 1\ns_lshl_b32 s3, s3, 13\nv_add_u32 v%d, s3, v6" % (sWave, vXa))
        for s in range(1, 4): p("v_xor_b32 v%d, %d, v%d" % (vXa + s, s << 5, vXa))
        p("s_lshl_b32 s3, s%d, 1\nv_lshl_or_b32 v9, v5, 1, v9\nv_xor_b32 v9, s3, v9\nv_lshl_add_u32 v9, v9, 5, v7\nv_lshl_add_u32 v9, v8, 7, v9\nv_lshl_add_u32 v9, v5, 13, v9" % sC)
        p("v_add_u32 v%d, %d, v9\nv_xor_b32 v%d, 32, v%d\nv_add_u32 v%d, %d, v9\nv_xor_b32 v%d, 32, v%d" % (vWa1, A_KV, vWa1 + 1, vWa1, vWa2, A_J2, vWa2 + 1, vWa2))
        p("s_cmp_eq_u32 s%d, 0\ns_cselect_b32 s%d, 0, 0x%x\ns_add_u32 s3, s%d, s%d" % (sT, sTmp, OOB, sKv, sTmp))
        for k in range(4): p("v_mov_b32 v%d, 0" % (96 + k))
        for k in range(3): p("buffer_store_dwordx4 %s, v%d, %s, s3 offen offset:%d sc1" % (vr(96), vL16, sr(sH), 1024 * k), tag="zst")
        p("s_lshl_b32 s3, s%d, 13\ns_add_u32 s3, s3, s%d\ns_add_u32 s3, s3, 0x%x\ns_lshl_b32 s%d, s%d, 26\ns_add_u32 s3, s3, s%d\nv_lshlrev_b32 v2, 7, v1" % (sU, sTmp, WS_FL, sTmp, sWave, sTmp))
        p("buffer_store_dword v96, v2, %s, s3 offen sc1" % sr(sH), tag="zst")
        dq += self.touches("s1") + self.xdma(2) + kvdma(2) + self.touches("s2")
        p("@wait vm:slab0\ns_barrier")
        self.stamp(p, "slab0")
        fw = lambda g, b: vFr + 8 * (g & 1) + 4 * b
        acc = lambda job, b, tb: 128 + 64 * job + 32 * b + 16 * tb
        def rd(g):
            r = []
            if g >= 64: return r
            sg, s = g // 4, g % 4
            def w(b):
                for half in range(2):
                    if g < 32: va, off = vWa1 + b, 16384 * (sg % 3)
                    elif GL[sg - 8] >= A_J2: va, off = vWa2 + b, GL[sg - 8] - A_J2
                    else: va, off = vWa1 + b, GL[sg - 8]
                    r.append([Ins("ds_read_b64_tr_b16 %s, v%d offset:%d" % (vr(fw(g, b) + 2 * half, 2), va, off + s * 2048 + half * 512))])
            def x(tb):
                if g < 32: r.append([Ins("ds_read_b128 %s, v%d offset:%d" % (self.xf(g, tb), vXa + s, XS[sg % 3] + 4096 * tb))])
            x(0); w(0); x(1); w(1)
            return r
        for c in rd(0): p.ext(c)
        def mfmas(g):
            return ["%s %s, %s, %s, %s" % (MF, vr(acc(g // 32, b, tb), 16), vr(fw(g, b)), self.xf(g, tb), "0" if g % 32 == 0 else vr(acc(g // 32, b, tb), 16)) for b in range(2) for tb in range(2)]
        gl, gc, gst = self.gate_job()
        t2a, t2l = self.touch2()
        if o["aux"] == "B": gl, gc, gst, t2a, t2l = [], P(), P(), P(), []
        self.addside(8, gl[:1])
        z = P(); z("s_cmp_eq_u32 s%d, 0\ns_cselect_b32 s%d, 0, 0x%x\ns_lshl_b32 s3, s%d, 2\ns_add_u32 s3, s3, s%d" % (sT, sTmp, OOB, sU, sTmp))
        z("buffer_store_dword v%d, v%d, %s, s3 offen sc1" % (vOne, vFlag, sr(sG)))
        self.addside(7, [z.l])
        e = P()
        e("v_and_b32 v2, 31, v1\nv_lshrrev_b32 v3, 5, v1\nv_bfe_u32 v4, v1, 1, 2\nv_lshlrev_b32 v5, 1, v3\nv_xor_b32 v4, v4, v5\nv_lshlrev_b32 v4, 4, v4\nv_lshl_add_u32 v4, v2, 6, v4")
        e("s_lshl_b32 s3, s%d, 2\ns_lshr_b32 s%d, s%d, 1\ns_add_u32 s%d, s%d, s3" % (sC, sTmp, sWave, sTmp, sTmp))
        e("s_lshl_b32 s3, s%d, 12\ns_add_u32 s3, s3, %d\nv_add_u32 v%d, s3, v4\nv_xor_b32 v%d, 16, v%d" % (sTmp, A_PHI, aPw, aPw2, aPw))
        e("v_bfe_u32 v4, v1, 2, 1\nv_xor_b32 v4, v4, v3\nv_lshlrev_b32 v4, 4, v4\nv_lshl_add_u32 v4, v2, 5, v4")
        e("s_lshl_b32 s3, s%d, 11\ns_add_u32 s3, s3, %d\nv_add_u32 v%d, s3, v4" % (sTmp, A_V, aVw))
        e("v_lshlrev_b32 v%d, 2, v2\nv_lshl_add_u32 v%d, v3, 9, v%d" % (aAt, aAt, aAt))
        e("v_bfe_u32 v4, v1, 2, 2\nv_lshl_add_u32 v5, v3, 2, v4")
        e("v_bfe_u32 v6, v1, 1, 1\nv_bfe_u32 v7, v1, 4, 1\nv_lshl_or_b32 v8, v7, 1, v6\nv_lshrrev_b32 v9, 1, v5\nv_xor_b32 v8, v8, v9\nv_lshlrev_b32 v8, 4, v8")
        e("v_and_b32 v9, 1, v1\nv_lshl_add_u32 v8, v9, 3, v8\nv_lshl_add_u32 v8, v5, 6, v8\ns_lshl_b32 s3, s%d, 13\ns_add_u32 s3, s3, %d\nv_add_u32 v%d, s3, v8" % (sWave, A_PHI, aPr))
        e("v_xor_b32 v9, v9, v3\nv_lshlrev_b32 v9, 4, v9\nv_lshl_add_u32 v9, v6, 3, v9\nv_lshl_add_u32 v9, v5, 5, v9\ns_add_u32 s3, s%d, %d\nv_add_u32 v%d, s3, v9" % (sMx, A_V, aVr))
        e("v_add_u32 v%d, -1, v7\nv_mul_u32_u24 v%d, 0x3f80, v7\nv_lshl_or_b32 v%d, v%d, 16, v%d" % (aKeep, aOnes, aOnes, aOnes, aOnes))
        w1, w2_ = self.wphi_read()
        e.ext(self.w2_addr()); e.ext(t2a); e.ext(w1)
        self.spread(e, 11, 23)
        e = P(); e.ext(w2_); self.scalars(e, B)
        e("s_lshl_b32 s3, s%d, 1\ns_lshr_b32 s%d, s%d, 1\ns_add_u32 s3, s3, s%d\ns_mul_i32 s%d, s3, %d" % (sT, sTmp, sWave, sTmp, sHo, 245760 * self.hs))
        e("s_lshl_b32 s%d, s%d, 1\ns_add_u32 s%d, s%d, s%d\ns_add_u32 s%d, s%d, 2" % (sTmp, sC, sTmp, sTmp, sFfn, sTmp, sTmp)); self.hpos(e, sHs, sTmp)
        e("s_add_u32 s%d, s%d, 1" % (sTmp, sTmp)); self.hpos(e, sHs + 1, sTmp)
        e("s_lshl_b32 s3, s%d, 2\ns_add_u32 s3, s3, s%d\ns_mul_i32 s%d, s3, %d" % (sTT, sWave, sHo, 61440 * self.hs))
        self.spread(e, 24, 32)
        items = [(b, tb) for b in range(2) for tb in range(2)]
        vKf, vV, vPh = 96, 104, 112
        e = P()
        def prep(k):
            b, tb = items[k]; a = acc(0, b, tb); kf = vKf + 4 * (k & 1); vv = vV + 4 * (k & 1)
            for i in range(4): e("v_cvt_pk_bf16_f32 v%d, v%d, v%d" % (kf + i, a + 2 * i, a + 2 * i + 1))
            for i in range(4): e("v_cvt_pk_bf16_f32 v%d, v%d, v%d" % (vv + i, a + 8 + 2 * i, a + 9 + 2 * i))
            e("ds_write_b128 v%d, %s offset:%d" % (aVw, vr(vv), b * 4096 + tb * 1024))
            e("%s %s, %s, %s, 0" % (MF, vr(a, 16), vr(vWp + 4 * b), vr(kf)))
        e("v_subrev_u32 v%d, %d, v%d\nv_subrev_u32 v%d, %d, v%d" % (vWa1, A_KV, vWa1, vWa1 + 1, A_KV, vWa1 + 1))
        prep(0); prep(1)
        for k, (b, tb) in enumerate(items):
            ph = vPh + 8 * (k & 1)
            sm = self.softmax(acc(0, b, tb), 2, ph, pk=bool(o.get("apk", 1))).l
            e.ext(sm[:17])
            if k < 2: prep(k + 2)
            k4 = -4 if o.get("apk", 1) else -8
            e.ext(sm[17:k4])
            e("ds_write_b128 v%d, %s offset:%d" % (aPw, vr(ph), b * 8192 + tb * 2048))
            e.ext(sm[k4:])
            e("ds_write_b128 v%d, %s offset:%d" % (aPw2, vr(ph + 4), b * 8192 + tb * 2048))
        e0 = e
        z = P(); self.poll_issue(z, "init"); self.addside(29, [z.l])
        kv = 96; fa = lambda s: 128 + 8 * s
        e = P()
        for s in range(11):
            if s < 8:
                for half in range(2): e("ds_read_b64_tr_b16 %s, v%d offset:%d" % (vr(fa(s) + 2 * half, 2), aVr, s * 512 + half * 256))
                for half in range(2): e("ds_read_b64_tr_b16 %s, v%d offset:%d" % (vr(fa(s) + 4 + 2 * half, 2), aPr, s * 1024 + half * 512))
            if 2 <= s < 10:
                for i in range(4): e("v_and_or_b32 v%d, v%d, v%d, v%d" % (fa(s - 2) + i, fa(s - 2) + i, aKeep, aOnes))
            if s >= 3: e("%s %s, %s, %s, %s" % (MF, vr(kv, 16), vr(fa(s - 3)), vr(fa(s - 3) + 4), "0" if s == 3 else vr(kv, 16)))
        self.spread(e, gx, gk)
        ch = [[Ins("buffer_atomic_add_f32 v%d, v%d, %s, s%d offen offset:%d" % (kv + i, aAt, sr(sH), sKv, (8 * (i >> 2) + (i & 3)) * 128), "kvat")] for i in range(8)]
        z = P(); z("s_mov_b32 exec_hi, 0\nbuffer_atomic_add_f32 v%d, v%d, %s, s%d offen offset:2048" % (kv + 8, aAt, sr(sH), sKv), tag="kvat"); z("s_mov_b32 exec_hi, -1")
        self.stamp(z, "atom")
        ga = o.get("aat", gk + 2 if ex else gk + 1)
        self.spread(ch + [z.l] + (t2l if o.get("atz") else []), ga, ga + 2)
        gg = o.get("agl", gx + 1)
        self.spread(gl[1:], gg, gg + 2)
        if ex: self.spread(gc, 46, 62)
        gf = o.get("akf", 13 if ex else 99)
        dspec = o.get("ad", "G0,G1,,G7,D0,D1,,D2,D3.D4,D5,D6" if ex else "G0,G1,,G4,G5.G6,G7,D0,D1,,D2,D3").split(",")
        rspec = o.get("ar", ",,,,,,R0.R1,R2.R3" if ex else ",,,,,,,").split(",")
        def pre(g, p):
            sg, s = g // 4, g % 4
            if g == 32:
                self.stamp(p, "job1")
                if ex:
                    if o.get("x_nowr"): e0.l = [i for i in e0.l if not i.op.startswith("ds_write")]
                    if o.get("x_nopk"): e0.l = [i for i in e0.l if not i.op.startswith("v_pk")]
                    if o.get("x_noexp"): e0.l = [i for i in e0.l if not i.op.startswith("v_exp")]
                    self.seg(p, e0, o.get("a0", "G2.G3.G4.T"))
                    self.stamp(p, "ksm0")
                    self.poll_check(p, "init")
                    p("@wait lg:all vm:slab%d\ns_barrier" % bars[0]); self.stamp(p, "ksm")
                    for c in rd(32): p.ext(c)
                else: self.fq += self.zones(e0.l)
            if not ex and g == gx:
                self.flush(p); self.poll_check(p, "init")
            if not ex and g == ga + 2: self.fq += self.zones(gc.l)
            if g >= 32 and s == 0: self.spread(self.w2(rspec[sg - 8]), g, g + 3)
            if s == 3 and (sg < 8 or sg in bars):
                cov = sg + 1 if sg < 7 else min([k for k in bars if k > sg] + [15])
                p("@wait lg:all%s%s%s\ns_barrier" % (" vm:slab%d" % cov if sg != 15 and not (ex and sg == 7) else "", " vm:zst" if sg == 1 else "", " vm:kvat" if sg == gf else ""))
                if sg == gf: self.flag(p, sF2); self.stamp(p, "kvflag")
                if g == gx: self.stamp(p, "ksm")
        rel = {}
        for sg in range(16):
            def f(sg=sg):
                r = []
                if sg < 5: r += self.xdma(sg + 3) + kvdma(sg + 3) + self.touches("s%d" % (sg + 3))
                if sg == 0: r += [self.wphi_load()]
                if sg >= 5: r += self.w2(dspec[sg - 5])
                return r
            rel[4 * sg + 3] = f
        self.extra = {"T": t2l}
        rel[32] = lambda: self.w2(o.get("a1", "G5.G6" if ex else "G2.G3"))
        rel.setdefault(ga, lambda: [])
        self.engine(p, 64, mfmas, lambda g: [] if ex and g == 31 else rd(g + 1), pre, rel, dq, lambda g: o.get("afr", 0) if g < o.get("afrg", 31) else 0, lambda g: o.get("abud", 24))
        self.stamp(p, "gemm")
        e = P(); e.ext(gst)
        for k, (b, tb) in enumerate(items):
            e.ext(self.gelu(acc(1, b, tb), 2, sHs + b, 1024 * self.hs * tb))
            if gf == 99 and k == o.get("akf2", 1):
                e("@wait vm:kvat\ns_barrier"); self.flag(e, sF2); self.stamp(e, "kvflag")
        self.seg(p, e, o.get("a2", "D7.D8.D9.D10" if ex else "D4.D5"))
        e = P(); self.p2pre(e); self.seg(p, e, o.get("a3", "D11.R4.R5.R6.D12" if ex else "D6.R0.R1.R2"))
        self.stamp(p, "gelu")
        if o.get("ahf", -1) < 0:
            p("@wait vm:hst\ns_barrier"); self.flag(p, sF1)
            self.stamp(p, "hflag")
        self.seg(p, P(), o.get("a4", "Ph.D13.R7.R8.D14.R9.R10.R11.R12.R13.R14" if ex else "D7.D8.D9.D10.D11.R3.D12.R4.D13.R5.D14.Ph.R6.R7.R8.R9.R10.R11.R12.R13.R14"))
        self.poll_check(p, "h")
        p("@wait lg:all%s\ns_barrier" % (" vm:hst" if o.get("ahf", -1) == 0 else ""))
        if o.get("ahf", -1) == 0: self.flag(p, sF1)
        self.stamp(p, "hseen")
        for st in range(o["pf"]): p.ext(self.hload(st))
        self.phase2(p, B)
        return p
    def pathB(self):
        o = self.o; p = P(); B = self.B = True; self.side = {}
        vXa = 29; vWa = 37; vQa = 41
        self.w2_init([XS[0], B_W, XS[1], B_W + 16384, B_W + 32768] * 3, [0, 65536], {XS[0]: 27, B_W: 27, XS[1]: 31, B_W + 16384: 31, B_W + 32768: 31})
        for i in range(8): self.avail["Q%d" % i] = 0 if i < 3 else 23
        ex = o.get("bexp", 1)
        p("s_mul_i32 s%d, s%d, 7" % (sFfn, sU))
        p("s_mul_i32 s%d, s%d, %d\ns_lshl_b32 s3, s%d, 5\ns_add_u32 s%d, s%d, s3" % (sWa, sC, 32 * 2752, sFfn, sWa, sWa))
        p("s_mul_i32 s%d, s%d, 7168\ns_lshr_b32 s3, s%d, 1\ns_mul_i32 s3, s3, 14464\ns_add_u32 s%d, s%d, s3" % (sMw, sC, sWave, sMw, sMw))
        gudma = lambda sg: self.group(7, sMw, B_W + B_SW * (sg % 3), vWo, sW, sWa, 64 * 2752, "slab%d" % sg)
        qdma = lambda c: self.group(2, sMq, B_Q[c], vWo + 7, sQ, sWb, 64 * 3072, "q%d" % c)
        self.other = qdma
        g0 = gudma(0)
        for j in range(7):
            r = vWo + j
            p("v_add_u32 v6, %d, v1\nv_mul_u32_u24 v8, 4682, v6\nv_lshrrev_b32 v8, 16, v8" % (64 * j))
            p("v_mul_u32_u24 v8, %d, v8\nv_lshl_add_u32 v%d, v6, 4, v8" % (2752 - 224, r))
            if j & 3: p("v_subrev_u32 v%d, %d, v%d" % (r, 1024 * (j & 3), r))
            p.ext(g0[j])
        for c in self.touches("s0"): p.ext(c)
        self.stamp(p, "issued0")
        p("s_branch LbodyB\n@cut\nLbodyB:")
        dq = self.xdma(1) + gudma(1)
        npre = o.get("bpre", 6)
        p("s_mul_i32 s%d, s%d, %d\ns_lshl_b32 s3, s%d, 7\ns_add_u32 s%d, s%d, s3\ns_lshl_b32 s%d, s%d, 11" % (sWb, sWave, 16 * 3072, sU, sWb, sWb, sMq, sWave))
        self.common2(p, B)
        p("v_add_u32 v%d, s%d, v6" % (vXa, sMx))
        for s in range(1, 4): p("v_xor_b32 v%d, %d, v%d" % (vXa + s, s << 5, vXa))
        for s in range(4): p("v_xor_b32 v%d, 0x1000, v%d" % (vXa + 4 + s, vXa + s))
        p("s_lshl_b32 s3, s%d, 1\nv_lshl_or_b32 v9, v9, 1, v5\nv_xor_b32 v9, s3, v9\nv_lshl_add_u32 v9, v9, 5, v7\nv_lshl_add_u32 v9, v8, 7, v9" % sC)
        p("v_add_u32 v%d, %d, v9\nv_add_u32 v%d, %d, v9" % (vQa, B_Q[3], vQa + 1, B_Q[6]))
        p("v_mul_u32_u24 v9, 224, v8\nv_add_u32 v9, v9, v7\nv_mul_u32_u24 v8, 14464, v5\nv_add_u32 v9, v9, v8\ns_mul_i32 s3, s%d, 96" % sC)
        for k in range(2): p("v_add_u32 v%d, %d, v9\nv_add_u32 v%d, s3, v%d\nv_add_u32 v%d, 192, v%d" % (vWa + 2 * k + 1, B_W + 2 * k * B_SW, vWa + 2 * k, vWa + 2 * k + 1, vWa + 2 * k + 1, vWa + 2 * k + 1))
        for c in dq[:npre]: p.ext(c)
        dq = dq[npre:] + self.touches("s1") + self.xdma(2) + gudma(2) + self.touches("s2")
        p("@wait vm:slab0\ns_barrier")
        self.stamp(p, "slab0")
        fw = lambda g, b: vFr + 16 * (g & 1) + 4 * b
        fq = lambda g: vFr + 4 * (g % 4)
        acc = lambda b, tb: 144 + 32 * b + 16 * tb
        aq = lambda tb: 112 + 16 * tb
        LA = 2
        def rd(g):
            r = []
            if g >= 64: return r
            sg, s = g // 4, g % 4
            if g < 32:
                sl = sg % 3
                def w(b):
                    for half in range(2):
                        va = vWa + 2 * (sl >> 1) + (1 if b == 3 else 0); off = (sl & 1) * B_SW + s * 3584 + half * 896 + (b * 32 if b < 3 else 0)
                        r.append([Ins("ds_read_b64_tr_b16 %s, v%d offset:%d" % (vr(fw(g, b) + 2 * half, 2), va, off), "fr%d" % g)])
                def x(tb): r.append([Ins("ds_read_b128 %s, v%d offset:%d" % (self.xf(g, tb), vXa + 4 * tb + s, XS[sl]), "fr%d" % g)])
                x(0); w(0); x(1); w(1); w(2); w(3)
            else:
                c = sg - 8; k = 1 if c >= 6 else 0
                for half in range(2): r.append([Ins("ds_read_b64_tr_b16 %s, v%d offset:%d" % (vr(fq(g) + 2 * half, 2), vQa + k, B_Q[c] - B_Q[6 if k else 3] + s * 2048 + half * 512))])
            return r
        for c in rd(0): p.ext(c)
        def reads(g):
            if g < 31: return rd(g + 1)
            if g == 31: return [] if ex else sum((rd(32 + k) for k in range(LA)), [])
            return rd(g + LA)
        def mfmas(g):
            if g < 32:
                return ["%s %s, %s, %s, %s" % (MF, vr(acc(b, tb), 16), vr(fw(g, b)), self.xf(g, tb), "0" if g == 0 else vr(acc(b, tb), 16)) for b, tb in [(0, 0), (0, 1), (1, 0), (1, 1), (2, 0), (2, 1), (3, 0)]]
            return ["%s %s, %s, %s, %s" % (MF, vr(aq(tb), 16), vr(fq(g)), self.xf(g, tb), "0" if g == 32 else vr(aq(tb), 16)) for tb in range(2)]
        w1, w2_ = self.wphi_read()
        gl, gc, gst = self.gate_job(96, 100, 101, "ost")
        t2a, t2l = self.touch2()
        if o["aux"] == "A": gl, gc, gst, t2a, t2l = [], P(), P(), P(), []
        self.extra = {"T": t2l, "X": gl[1:]}
        self.addside(11, gl[:1])
        sHs = [32, 33, 34, 35, sMw, sWa, sXo]
        e = P(); e.ext(t2a); e.ext(self.w2_addr()); e.ext(w1); self.spread(e, 12, 19)
        e = P(); e.ext(w2_); self.scalars(e, B); self.spread(e, 19, 23)
        z = P(); self.poll_issue(z, "init"); self.addside(24, [z.l])
        e = P()
        e("s_lshl_b32 s3, s%d, 1\ns_lshr_b32 s%d, s%d, 1\ns_add_u32 s3, s3, s%d\ns_mul_i32 s%d, s3, %d" % (sT, sTmp, sWave, sTmp, sHo, 245760 * self.hs))
        e("s_lshl_b32 s3, s%d, %d\ns_add_u32 s%d, s%d, s3" % (sC, 9 + self.hs, sHo, sHo))
        e("s_mul_i32 s%d, s%d, 3\ns_add_u32 s%d, s%d, s%d" % (sTmp, sC, sTmp, sTmp, sFfn))
        for b in range(4):
            if b == 3: e("s_add_u32 s%d, s%d, 6" % (sTmp, sFfn))
            self.hpos(e, sHs[2 * b], sTmp)
            if b < 3: e("s_xor_b32 s%d, s%d, %d\ns_add_u32 s%d, s%d, 1" % (sHs[2 * b + 1], sHs[2 * b], 1024 * self.hs, sTmp, sTmp))
        e("s_mul_i32 s3, s%d, 60\ns_add_u32 s3, s3, s%d\ns_add_u32 s3, s3, 22\ns_lshl_b32 s3, s3, %d\ns_add_u32 s%d, s3, s%d" % (sC, sU, 10 + self.hs, sOs, sHo))
        e("s_xor_b32 s%d, s%d, %d\ns_add_u32 s%d, s%d, %d\ns_add_u32 s%d, s%d, %d" % (sOs + 1, sOs, 1024 * self.hs, sOs + 2, sOs, 61440 * self.hs, sOs + 3, sOs + 1, 61440 * self.hs))
        bD = [23, 24, 25]; bR = [16, 17, 18, 19]
        e("v_lshrrev_b32 v2, 3, v1\nv_and_b32 v3, 7, v1\nv_lshrrev_b32 v4, 4, v1\nv_xor_b32 v3, v3, v4\nv_lshlrev_b32 v3, 4, v3\nv_lshl_add_u32 v23, v2, 7, v3\nv_xor_b32 v24, 64, v23")
        e("v_lshl_or_b32 v25, v2, 24, v23")
        e("v_and_b32 v2, 31, v1\nv_min_u32 v2, 16, v2\nv_lshrrev_b32 v3, 5, v1\nv_lshlrev_b32 v3, 2, v3\nv_bfe_u32 v4, v2, 1, 3\nv_xor_b32 v3, v3, v4\nv_lshlrev_b32 v3, 4, v3\nv_lshl_add_u32 v3, v2, 7, v3")
        e("s_lshl_b32 s3, s%d, 13\ns_add_u32 s3, s3, %d\nv_add_u32 v16, s3, v3\nv_xor_b32 v17, 16, v16\nv_xor_b32 v18, 32, v16\nv_xor_b32 v19, 48, v16" % (sC, B_KZ))
        e("s_lshl_b32 s3, s%d, 2\ns_add_u32 s3, s3, s%d\ns_mul_i32 s%d, s3, %d" % (sTT, sWave, sHo, 61440 * self.hs))
        self.spread(e, 23, 31)
        e = P()
        npk = o.get("bpk", 7 if ex else 0)
        e0 = P()
        for k in range(7): (e0 if k < npk else e).ext(self.gelu(acc(k >> 1, k & 1), 2, sHs[k], 0, pk=k < npk + o.get("bhy", 7)))
        self.stamp(e0 if npk == 7 else e, "gelu")
        e1 = e
        gh = o.get("bhf", 40 if ex else 99)
        dspec = o.get("bd", "T,Q0.Q1.Q2.Q3,,D2,D3,D4,D5,D6,D7,Pkv.D8,D9" if ex else "Q0.Q1.Q2.Q3.Q4.Q5.Q6.Q7,D0.D1,D2,D3.D4,,D5,D6,D7,D8,D9,D10").split(",")
        rspec = o.get("br", ",,R0,R1,R2,R3,R4,R5").split(",")
        def pre(g, p):
            sg, s = g // 4, g % 4
            if g == 32:
                self.stamp(p, "job1"); self.seg(p, e0, o.get("b0", "Q4.Q5.Q6.Q7.X.D0.D1" if ex else ""))
                if ex:
                    p("@wait vm:q7\ns_barrier")
                    for k in range(LA):
                        for c in rd(32 + k): p.ext(c)
                self.fq += self.zones(e1.l)
            if g >= 32 and s == 0: self.spread(self.w2(rspec[sg - 8]), g, g + 4)
            if g < 32:
                if s == 3:
                    if sg == 7: self.poll_check(p, "init")
                    p("@wait lg:all%s\ns_barrier" % (" vm:slab%d" % (sg + 1) if sg < 7 else ("" if ex else " vm:q7")))
                else: p("@wait lg:fr%d" % g)
            if g == o.get("bgc", 42): self.fq += self.zones(gc.l)
            if g == gh:
                self.flush(p)
                p("@wait vm:hst\ns_barrier"); self.flag(p, sF1); self.stamp(p, "hflag")
        rel = {}
        for sg in range(8):
            def f(sg=sg):
                r = []
                if sg < 5: r += self.xdma(sg + 3) + gudma(sg + 3) + self.touches("s%d" % (sg + 3))
                if sg == 0: r += [self.wphi_load()]
                if sg >= 5: r += self.w2(dspec[sg - 5])
                return r
            rel[4 * sg + 3] = f
        for k in range(8): rel[32 + 4 * k] = (lambda k=k: self.w2(dspec[3 + k]))
        self.engine(p, 64, mfmas, reads, pre, rel, dq, lambda g: o.get("bfr", 0) if g < o.get("bfrg", 31) else 0, lambda g: o.get("bbud", 24))
        self.stamp(p, "gemm")
        items = [(b, tb) for b in range(2) for tb in range(2)]
        vKf = 96; vKz = 208; vPh = 224
        pa = lambda k: 144 + 16 * k
        e = P(); self.p2pre(e)
        for k in (0, 2, 1, 3):
            b, tb = items[k]; a = aq(tb) + 8 * b
            for i in range(4): e("v_cvt_pk_bf16_f32 v%d, v%d, v%d" % (vKf + 4 * k + i, a + 2 * i, a + 2 * i + 1))
            e("%s %s, %s, %s, 0" % (MF, vr(pa(k), 16), vr(vWp + 4 * b), vr(vKf + 4 * k)))
        h0 = o.get("bh0", 0)
        sm = [self.softmax(pa(k), 2, vPh + 8 * k).l for k in range(4)]
        for k in range(h0): e.ext(sm[k])
        self.seg(p, e, o.get("b2", ""))
        self.poll_check(p, "kv")
        p("%ss_add_u32 m0, s%d, %d\ns_barrier" % ("@wait vm:hst\n" if gh == 99 else "", sMx, B_KZ))
        if gh == 99: self.flag(p, sF1); self.stamp(p, "hflag")
        self.stamp(p, "kvseen")
        for j in range(3): p("buffer_load_dwordx4 v%d, %s, s%d offen offset:%d sc1 lds" % (bD[j], sr(sH), sKv, 1024 * j), tag="kvz")
        e = P()
        for k in range(h0, 2): e.ext(sm[k])
        self.seg(p, e, o.get("b3", "D10.R6.D11.R7.D12"))
        p("@wait vm:kvz\ns_barrier")
        kz = 112; PF = o["pf"]
        def omm(e, k):
            b = k >> 1
            e("%s %s, %s, %s, 0" % (MF, vr(pa(k), 16), vr(vKz + 8 * b), vr(vPh + 8 * k)))
            e("%s %s, %s, %s, %s" % (MF, vr(pa(k), 16), vr(vKz + 8 * b + 4), vr(vPh + 8 * k + 4), vr(pa(k), 16)))
        def ofin(e, k):
            a = pa(k)
            e("v_add_f32 v%d, 0x%x, v%d\nv_rcp_f32 v%d, v%d" % (a + 8, f2u(1e-6), a + 8, a + 8, a + 8))
            for i in range(4): e("v_pk_mul_f32 %s, %s, %s op_sel_hi:[1,0]" % (vr(a + 2 * i, 2), vr(a + 2 * i, 2), vr(a + 8, 2)))
            for i in range(4): e("v_cvt_pk_bf16_f32 v%d, v%d, v%d" % (a + 12 + i, a + 2 * i, a + 2 * i + 1))
        def ost(e, k): e("buffer_store_dwordx4 %s, v%d, %s, s%d offen sc1" % (vr(pa(k) + 12), vL16, sr(sH), sOs + k), tag="ost")
        e = P()
        for b in range(2):
            for q4 in range(4): e("ds_read_b128 %s, v%d offset:%d" % (vr(kz + 16 * b + 4 * q4), bR[q4], 4096 * b))
        e.ext(sm[2][:17])
        for b in range(2):
            for i in range(8): e("v_cvt_pk_bf16_f32 v%d, v%d, v%d" % (vKz + 8 * b + i, kz + 16 * b + 2 * i, kz + 16 * b + 2 * i + 1))
        z = P(); omm(z, 0); omm(z, 1)
        e.ext(merge(sm[2][17:33], [[i] for i in z.l], 3)); e.ext(sm[2][33:])
        e.ext(sm[3][:17])
        z = P(); omm(z, 2)
        e.ext(merge(sm[3][17:33], [[i] for i in z.l], 3)); e.ext(sm[3][33:])
        omm(e, 3)
        self.seg(p, e, o.get("b4", "Ph.R8.D13.R9.D14.R10.R11"))
        self.stamp(p, "qsm")
        e = P()
        for k in range(4): ofin(e, k)
        self.seg(p, e, o.get("b5", "R12.R13.R14"))
        early = o.get("bearly", 0)
        def stores():
            for k in range(4): ost(p, k)
            p.ext(gst)
        if not early: stores()
        self.poll_check(p, "h"); p("@wait lg:all\ns_barrier"); self.stamp(p, "hseen")
        for st in range(PF):
            p.ext(self.hload(st))
            if early and st == early - 1: stores()
        self.phase2(p, B)
        return p
    vDm, vGo, vG, vG1 = 29, 30, 4, 32
    hf = staticmethod(lambda st, tb: 40 + 8 * (st % 11) + 4 * tb)
    def p2pre(self, e):
        e("s_lshr_b32 s3, s%d, 1\ns_lshl_b32 s3, s3, 30\nv_add_u32 v%d, s3, v%d\nv_and_b32 v%d, 31, v1\nv_lshlrev_b32 v%d, 2, v%d" % (sWave, self.vDm, vL16, self.vGo, self.vGo, self.vGo))
        if self.hs == 2: e("v_add_u32 v31, 4096, v%d" % vL16)
    def hload(self, st):
        q = P()
        if self.hs == 2:
            for tb in range(2):
                q("buffer_load_dwordx4 %s, v%d, %s, s%d offen offset:%d sc1" % (vr(self.hf(st, tb)), self.vDm if st == 13 else vL16, sr(sH), sHo, tb * 2048))
            q("s_add_u32 s%d, s%d, 4096" % (sHo, sHo))
            return q
        for tb in range(2):
            q("buffer_load_dwordx4 %s, v%d, %s, s%d offen offset:%d sc1" % (vr(self.hf(st, tb)), self.vDm if st == 13 else vL16, sr(sH), sHo, (st & 1) * 2048 + tb * 1024))
        if st & 1: q("s_add_u32 s%d, s%d, 4096" % (sHo, sHo))
        return q
    def phase2(self, p, B):
        o = self.o; PF = o["pf"]; hf = self.hf; vG, vG1, vGo = self.vG, self.vG1, self.vGo
        assert len(self.used) == 38, sorted(set("%s%d" % (k, i) for k in "RD" for i in range(15)) - set(self.used))
        a2 = lambda part, cb, tb: 128 + 64 * part + 32 * cb + 16 * tb
        wa = [16, 17, 18, 19]; ra = [20, 21]; oa = 22
        ad = P()
        ad("v_and_b32 v2, 31, v1\nv_lshrrev_b32 v3, 5, v1\nv_and_b32 v8, 7, v1\nv_xor_b32 v3, v3, v8\nv_lshlrev_b32 v3, 4, v3\nv_lshl_add_u32 v3, v2, 8, v3")
        ad("s_lshl_b32 s3, s%d, 14\nv_add_u32 v16, s3, v3\nv_xor_b32 v17, 32, v16\nv_xor_b32 v18, 64, v16\nv_xor_b32 v19, 0x60, v16" % sWave)
        ad("v_lshrrev_b32 v2, 3, v0\nv_and_b32 v3, 7, v2\nv_lshlrev_b32 v9, 1, v8\nv_xor_b32 v3, v3, v9\nv_lshlrev_b32 v3, 4, v3\nv_lshl_add_u32 v20, v2, 8, v3\nv_xor_b32 v21, 16, v20")
        ad("v_lshlrev_b32 v8, 4, v8\nv_lshl_add_u32 v22, v2, 10, v8")
        oreg = lambda j, tb: hf(22 + (tb * 8 + j) // 2, (tb * 8 + j) & 1)
        def oload(n):
            q = P()
            for k in (2 * n, 2 * n + 1):
                tb, j = k // 8, k % 8
                if self.hs == 2: q("buffer_load_dwordx4 %s, v%d, %s, s%d offen offset:%d sc1" % (vr(oreg(j, tb)), 31 if j & 1 else vL16, sr(sH), sHo, tb * 2048))
                else: q("buffer_load_dwordx4 %s, v%d, %s, s%d offen offset:%d sc1" % (vr(oreg(j, tb)), vL16, sr(sH), sHo, (j & 1) * 2048 + tb * 1024))
            if n == 3: q("s_sub_u32 s%d, s%d, %d" % (sHo, sHo, 3 * 4096 * self.hs))
            elif n < 7: q("s_add_u32 s%d, s%d, %d" % (sHo, sHo, 4096 * self.hs))
            return q
        def scale(tb):
            q = P()
            q("v_sub_f32 v%d, 1.0, v%d" % (vG1 + 2 * tb, vG + 2 * tb))
            for cb in range(2):
                for i in range(16): q("v_mul_f32 v%d, v%d, v%d" % (a2(0, cb, tb) + i, a2(0, cb, tb) + i, vG1 + 2 * tb))
            return q
        def comb(tb):
            q = P()
            for cb in range(2):
                a = a2(0, cb, tb); b_ = a2(1, cb, tb)
                for j in range(4):
                    if tb == 0:
                        for i in range(4 * j, 4 * j + 4): q("v_fmac_f32 v%d, v%d, v%d" % (a + i, b_ + i, vG))
                    else:
                      for i in (2 * j, 2 * j + 1): q("v_pk_fma_f32 %s, %s, %s, %s op_sel_hi:[1,0,1]" % (vr(a + 2 * i, 2), vr(b_ + 2 * i, 2), vr(vG + 2 * tb, 2), vr(a + 2 * i, 2)))
                    q("ds_write_b128 v%d, %s offset:%d" % (wa[j], vr(a + 4 * j), tb * 8192 + cb * 128))
            return q
        fill = []
        for st in range(30):
            nx = st + PF
            if B and st == o.get("oflag_at", 1):
                p("@wait vm:ost\ns_barrier"); self.flag(p, sF2); self.stamp(p, "oflag")
            if nx == 14 - o.get("opoll", 2): self.poll_issue(p, "a")
            if nx == 14:
                self.poll_check(p, "a"); p("s_barrier"); self.stamp(p, "aseen")
            if nx == 22 - o.get("opoll", 2): self.poll_issue(p, "o")
            if nx == 22:
                self.poll_check(p, "o"); p("s_barrier"); self.stamp(p, "oseen")
                p("buffer_load_dword v%d, v%d, %s, s%d offen sc1\nbuffer_load_dword v%d, v%d, %s, s%d offen offset:128 sc1" % (vG, vGo, sr(sH), sGo, vG + 2, vGo, sr(sH), sGo))
            ld = self.hload(nx).l if nx < 22 else (oload(nx - 22).l if nx < 30 else [])
            if st == 8: fill = ad.l
            if st == 23: fill = scale(0).l + scale(1).l
            if st == 27: fill += comb(0).l
            for g_ in range(4):
                if st < 22:
                    cb, tb = g_ >> 1, g_ & 1; a = a2(0, cb, tb)
                    p("%s %s, %s, %s, %s" % (MF, vr(a, 16), ar(8 * st + 4 * cb), vr(hf(st, tb)), "0" if st == 0 else vr(a, 16)))
                else:
                    k = 2 * (st - 22) + (g_ >> 1); tb, j = k // 8, k % 8; cb = g_ & 1; a = a2(1, cb, tb)
                    p("%s %s, %s, %s, %s" % (MF, vr(a, 16), ar(8 * (22 + j) + 4 * cb), vr(oreg(j, tb)), "0" if j == 0 else vr(a, 16)))
                if ld: p.ext([ld.pop(0)])
                p.ext(fill[:4]); fill = fill[4:]
            assert not ld
        p.ext(fill)
        self.stamp(p, "p2mfma")
        p.ext(comb(1))
        p("@wait lg:all\ns_barrier")
        for hh in range(2):
            for w in range(4):
                for i in range(2): p("ds_read_b128 %s, v%d offset:%d" % (vr(40 + 32 * hh + 8 * w + 4 * i), ra[i], w * 16384 + hh * 8192))
        for hh in range(2):
            b0 = 40 + 32 * hh
            for i in range(4): p("v_pk_add_f32 %s, %s, %s" % (vr(b0 + 2 * i, 2), vr(b0 + 2 * i, 2), vr(b0 + 8 + 2 * i, 2)))
            for i in range(4): p("v_pk_add_f32 %s, %s, %s" % (vr(b0 + 16 + 2 * i, 2), vr(b0 + 16 + 2 * i, 2), vr(b0 + 24 + 2 * i, 2)))
            for i in range(4): p("v_pk_add_f32 %s, %s, %s" % (vr(b0 + 2 * i, 2), vr(b0 + 2 * i, 2), vr(b0 + 16 + 2 * i, 2)))
            for i in range(4): p("v_cvt_pk_bf16_f32 v%d, v%d, v%d" % (b0 + 8 + i, b0 + 2 * i, b0 + 2 * i + 1))
            p("buffer_store_dwordx4 %s, v%d, %s, s%d offen %s" % (vr(b0 + 8), oa, sr(sOut), sOb if hh else sOa, o["outfl"].replace("_", " ")))
        nm = "B" if B else "A"
        if o["stamps"]:
            p("@wait vm:all"); self.stamp(p, "end")
            p("s_waitcnt lgkmcnt(0)", raw=True)
            p("s_lshl_b32 s3, s2, 2\ns_add_u32 s3, s3, s%d\ns_lshl_b32 s3, s3, 6\ns_add_u32 s3, s3, 0x%x" % (sWave, WS_ST))
            p("v_mov_b32 v16, s94")
            for k in range(self.nst): p("v_mov_b32 v%d, s%d" % (17 + k, sStamp + 2 * k))
            p("v_lshlrev_b32 v2, 24, v1")
            for k in range(4): p("buffer_store_dwordx4 %s, v2, %s, s3 offen offset:%d" % (vr(16 + 4 * k), sr(sH), 16 * k))
        if o.get("calib"):
            p("Lcal%s:\ns_memrealtime s[96:97]\ns_waitcnt lgkmcnt(0)\ns_sub_u32 s3, s96, s94\ns_cmp_lt_u32 s3, %d\ns_cbranch_scc1 Lcal%s" % (nm, o["calib"], nm), raw=True)
        p("s_endpgm")
    def build(self):
        st = State(); stats = {}
        out = process(self.prologue().l, st, stats)
        stB = st.copy(); n0 = self.ntouch; s0 = set(self.started)
        oa = process(self.pathA().l, st, stats); self.namesA = list(self.stnames)
        self.started = s0; self.ntouch = n0; self.nst = 0; self.stnames = []
        ob = process(self.pathB().l, stB, stats); self.namesB = list(self.stnames)
        k = ob.index("@cut")
        out += ob[:k] + oa + ob[k + 1:]
        out.append("Lend:\ns_endpgm")
        self.stats = stats
        hdr = "; @launch grid=(256,1,1) block=(256,1,1) lds=163840\n"
        hdr += '.amdgcn_target "amdgcn-amd-amdhsa--gfx950"\n.text\n.globl %s\n.p2align 8\n.type %s,@function\n%s:\n' % (KNAME, KNAME, KNAME)
        tail = """
.section .rodata,"a"
.p2align 6
.amdhsa_kernel %s
  .amdhsa_next_free_vgpr 512
  .amdhsa_next_free_sgpr 102
  .amdhsa_accum_offset 256
  .amdhsa_group_segment_fixed_size 0
  .amdhsa_kernarg_size 96
  .amdhsa_user_sgpr_count 2
  .amdhsa_user_sgpr_kernarg_segment_ptr 1
  .amdhsa_system_sgpr_workgroup_id_x 1
  .amdhsa_float_denorm_mode_32 3
.end_amdhsa_kernel
""" % KNAME
        return hdr + "\n".join(out) + tail
if __name__ == "__main__":
    opts = {}
    for a in sys.argv[2:]:
        k, v = a.split("="); opts[k] = int(v) if v.lstrip("-").isdigit() else v
    g = Gen(**opts)
    open(sys.argv[1], "w").write(g.build())
    print("nops", g.stats)
```

```python
import sys, math, struct
from asmpass import Ins, State, process
KNAME = "gated_mix__linear_kernel_hedgehog__glu_gated_geglu__prompt_kernel"
def f2u(x): return struct.unpack("<I", struct.pack("<f", x))[0]
L2E = math.log2(math.e)
K1 = -2.0 * math.sqrt(2.0 / math.pi) * L2E
K2 = K1 * 0.044715
XS = [0, 16384, 32768]
A_KV = 49152; A_J2 = 98304; A_PHI = 49152; A_V = 81920
B_W = 49152; B_SW = 28928; B_Q = [135936, 144128, 152320, 107008, 115200, 123392, 32768, 40960]; B_KZ = 107008
MISC = 160512
WS_FL = 0xFC0000; FKV, FHD, FOD = 0, 128, 384
WS_G = 0xF80000; WS_KV = 0xF90000; WS_ST = 0xFE0000; WS_SIZE = 0x1000000
OOB = 0x40000000
sX, sW, sQ, sD, sO, sH, sG, sOut, sM, sM2 = 28, 32, 36, 40, 44, 48, 52, 56, 60, 64
(sWave, sT, sU, sFfn, sTT, sCT, sXo, sWa, sWb, sC, sMx, sMw, sMq, sW2o, sKv, sTmp, sTmp2, sExp, sHo, sE8) = range(68, 88)
sL2E = 88; sK2 = 90; sPC = 92; sTc = 96
sHs = 28
sOs = 96
sF1, sF2, sPk, sPh, sPo, sGo, sOa, sOb = range(60, 68)
sStamp = 4
def sr(b, n=4): return "s[%d:%d]" % (b, b + n - 1)
def vr(b, n=4): return "v[%d:%d]" % (b, b + n - 1)
def ar(b, n=4): return "a[%d:%d]" % (b, b + n - 1)
vFlag, vPoll, vOne, vPr, vL16, vPoll8 = 10, 11, 12, 13, 14, 15
vXo = 16; vWo = 20
v2o = 44; v2a = 48
vK1 = 54
vSign, vTa, vDum = 56, 57, 58
vWp = 60; vGt = 68; vFr = 80
MF = "v_mfma_f32_32x32x16_bf16"
class P:
    def __init__(self, l=None): self.l = list(l) if l else []
    def __call__(self, s, tag=None, raw=False):
        for x in s.split("\n"):
            if x.strip(): self.l.append(Ins(x, tag, raw))
    def ext(self, o): self.l += o.l if isinstance(o, P) else o
def merge(main, side, every):
    out = []; k = 0
    for i, x in enumerate(main):
        out.append(x)
        if i % every == every - 1 and k < len(side): out += side[k]; k += 1
    for c in side[k:]: out += c
    return out

class Gen:
    def __init__(self, **o):
        self.o = dict(stamps=False, p2map="chk84", pf=5, touch="L@pre,H@s1,U@s4", codepf=True, outfl="sc1", aux="B")
        self.o.update(o); self.hs = 2 if self.o.get("heven", 1) else 1; self.B = None; self.started = set(); self.ntouch = 0; self.nst = 0; self.nlab = 0; self.stnames = []
    def stamp(self, p, name):
        if self.o.get("calat") == name: p("s_memrealtime s[94:95]", raw=True)
        if self.o["stamps"] and name not in self.o.get("nostamp", "").split(".") and self.o.get("only", name) == name:
            p("%s s[%d:%d]" % ("s_memtime" if self.o.get("cyc") else "s_memrealtime", sStamp + 2 * self.nst, sStamp + 2 * self.nst + 1), raw=True)
            self.nst += 1; self.stnames.append(name); assert self.nst <= 12, self.stnames
    def srd(self, p, d, ptr, size):
        p("s_mov_b32 s%d, s%d\ns_mov_b32 s%d, s%d\ns_mov_b32 s%d, 0x%x\ns_mov_b32 s%d, 0x20000" % (d, ptr, d + 1, ptr + 1, d + 2, size, d + 3))
    def touch(self, g):
        p = P(); d = 75 + self.ntouch; assert self.ntouch < 4; self.ntouch += 2 if g in "wc" else 1
        if g == "c":
            p("s_lshr_b32 s%d, s2, 3\ns_mul_i32 s3, s%d, %d\nv_lshlrev_b32 v2, 10, v0\nv_subrev_u32 v2, %d, v2\nv_mov_b32 v3, 0x%x\nv_cmp_gt_u32 vcc, %d, v2\nv_cndmask_b32 v4, v3, v2, vcc" % (sTmp, sTmp, 43 * 1024, 128 * 1024, OOB, 43 * 1024))
            p("buffer_load_dword v%d, v4, %s, s3 offen offset:384" % (d, sr(sD)))
            p("s_lshl_b32 s3, s%d, 14\nv_subrev_u32 v2, 65536, v2\nv_cmp_gt_u32 vcc, 16384, v2\nv_cndmask_b32 v4, v3, v2, vcc" % sTmp)
            p("buffer_load_dword v%d, v4, %s, s3 offen offset:384" % (d + 1, sr(sO)))
        elif g == "w":
            p("s_mul_i32 s3, s2, %d\nv_lshlrev_b32 v2, 7, v0\nv_mov_b32 v3, 0x%x\nv_cmp_gt_u32 vcc, 43, v0\nv_cndmask_b32 v4, v3, v2, vcc" % (43 * 128, OOB))
            p("buffer_load_dword v%d, v4, %s, s3 offen" % (d, sr(sD)))
            p("s_lshl_b32 s3, s2, 11\nv_subrev_u32 v2, 8192, v2\nv_cmp_gt_u32 vcc, 2048, v2\nv_cndmask_b32 v4, v3, v2, vcc")
            p("buffer_load_dword v%d, v4, %s, s3 offen" % (d + 1, sr(sO)))
        elif g in ("L", "H", "U", "M"):
            if g == "L": p("s_mov_b32 exec_lo, 0xffff0000")
            p("buffer_load_dword v%d, v%d, %s, %s offen" % (d, vTa, sr(sTc), "s%d" % sPC if g == "H" else "0"))
            if g == "L": p("s_mov_b32 exec_lo, -1")
        else:
            m = sum(1 << k for k in range(int(g[0]), int(g[1]) + 1)) * 0x01010101
            p("s_mov_b32 exec_lo, 0x%x\ns_mov_b32 exec_hi, 0x%x" % (m, m))
            p("buffer_load_dword v%d, v%d, %s, 0 offen" % (d, vTa, sr(sTc)))
            p("s_mov_b64 exec, -1")
        return p.l
    def touch2(self):
        a = P(); t = vGt + 4
        a("s_lshr_b32 s%d, s2, 4\ns_lshl_b32 s3, s%d, 3\ns_and_b32 s%d, s2, 7\ns_add_u32 s3, s3, s%d" % (sTmp, sTmp, sTmp2, sTmp2))
        a("v_mov_b32 v2, s3\nv_mov_b32 v3, s%d\nv_cmp_gt_u32 vcc, 128, v0\nv_cndmask_b32 v2, v3, v2, vcc\nv_cndmask_b32 v3, 10, 7, vcc" % sTmp)
        a("v_and_b32 v4, 127, v0\nv_lshrrev_b32 v5, 7, v0\nv_mul_u32_u24 v5, 384, v5\nv_mov_b32 v6, 0x%x" % OOB)
        for k, n in enumerate((86, 32)):
            a("v_mul_u32_u24 v7, %d, v2\nv_add_u32 v7, v7, v4\nv_lshlrev_b32 v7, v3, v7\nv_add_u32 v7, v7, v5\nv_cmp_gt_u32 vcc, %d, v%d\nv_cndmask_b32 v%d, v6, v7, vcc" % (n, n, 4 if self.o.get("tc", 1) else 0, t + k))
        return a, [[Ins("buffer_load_dword v%d, v%d, %s, 0 offen" % (t + k, t + k, sr(d)))] for k, d in enumerate((sD, sO))]
    def touches(self, pos):
        skip = {None: "", False: "U", True: "LHM"}[self.B]
        return [self.touch(t.split("@")[0]) for t in self.o["touch"].split(",") if t and t.split("@")[1] == pos and t[0] not in skip]
    def prologue(self):
        p = P(); o = self.o
        if o["stamps"] or o.get("calib"): p("%s s[94:95]" % ("s_memtime" if o.get("cyc") else "s_memrealtime"), raw=True)
        p("s_load_dwordx16 s[4:19], s[0:1], 0\ns_load_dwordx8 s[20:27], s[0:1], 64")
        p("s_cmp_ge_u32 s2, 256\ns_cbranch_scc1 Lend")
        if o["codepf"]:
            p("s_getpc_b64 s[%d:%d]" % (sPC, sPC + 1))
            p("Lpc:")
            n = o.get("cpn", 20)
            p("s_bitcmp1_b32 s2, 3\ns_cselect_b32 s3, LbodyB-Lpc, 0")
            if n < 160: p("s_bfe_u32 s%d, s2, 0x%x\ns_mul_i32 s%d, s%d, %d\ns_add_u32 s3, s3, s%d" % (sTmp, 4 + ((160 // n).bit_length() - 1 << 16), sTmp, sTmp, n * 128, sTmp))
            p("v_lshl_add_u32 v2, v0, 7, s3\nv_cmp_gt_u32 vcc, %d, v0" % n + "\nv_cndmask_b32 v2, 0, v2, vcc\nv_min_u32 v2, Lend-Lpc, v2")
            p("global_load_dword v%d, v2, s[%d:%d]" % (vDum, sPC, sPC + 1))
        p("v_and_b32 v1, 63, v0\nv_lshrrev_b32 v2, 6, v0\nv_readfirstlane_b32 s%d, v2" % sWave)
        p("s_and_b32 s%d, s2, 7\ns_lshr_b32 s%d, s2, 3" % (sTmp, sTmp2))
        p("s_lshr_b32 s%d, s%d, 2\ns_lshl_b32 s%d, s%d, 3\ns_lshr_b32 s3, s%d, 2\ns_add_u32 s%d, s%d, s3" % (sT, sTmp, sT, sT, sTmp2, sT, sT))
        p("s_lshl_b32 s%d, s%d, 17\ns_lshl_b32 s3, s%d, 15\ns_add_u32 s%d, s%d, s3" % (sXo, sT, sWave, sXo, sXo))
        p("s_lshl_b32 s%d, s%d, 12\ns_and_b32 s%d, s%d, 1" % (sMx, sWave, sC, sWave))
        p("v_lshrrev_b32 v2, 3, v1\nv_and_b32 v3, 7, v1\nv_lshrrev_b32 v4, 4, v1\nv_and_b32 v5, 1, v4")
        p("v_xor_b32 v6, v3, v4\nv_lshlrev_b32 v6, 4, v6\nv_lshl_add_u32 v%d, v2, 10, v6" % vXo)
        p("v_xor_b32 v6, 64, v%d\nv_add_u32 v%d, 7168, v6\nv_add_u32 v%d, 14336, v%d\nv_add_u32 v%d, 21504, v6" % (vXo, vXo + 1, vXo + 2, vXo, vXo + 3))
        tw = any(t and t[0] not in "wc" for t in o["touch"].split(","))
        t2 = any(t and t[0] in "LHUM" for t in o["touch"].split(","))
        if t2:
            r16, r128, b0, s1, s2_, s3_, nj = sKv, sW2o, sWa, sWb, sMw, sMq, sHo
            p("s_lshr_b32 s%d, s2, 4\ns_lshl_b32 s%d, s%d, 3\ns_add_u32 s%d, s%d, s%d" % (r16, r128, r16, r128, r128, sTmp))
            p("s_mov_b32 s3, 0x%x\ns_cmp_eq_u32 s%d, 1\ns_cselect_b32 s%d, 0x%x, s3\ns_cmp_eq_u32 s%d, 0\ns_cselect_b32 s%d, 0x200000, s%d" % (512 * 2752, sWave, sTc + 2, 512 * 3072, sWave, sTc + 2, sTc + 2))
            z = """s_movk_i32 s{s3}, 128
s_movk_i32 s{s2}, 512
s_bitcmp1_b32 s2, 3
s_cbranch_scc1 LtB
s_lshr_b32 s{s1}, s{sz}, 3
s_mov_b32 s{nj}, 4
s_cmp_eq_u32 s{w}, 1
s_cbranch_scc1 LtA1
s_cmp_eq_u32 s{w}, 0
s_cbranch_scc1 LtA0
s_mul_i32 s{b0}, s{r16}, 11008
s_and_b32 s3, s2, 3
s_mul_i32 s3, s3, 448
s_add_u32 s{b0}, s{b0}, s3
s_movk_i32 s{s2}, 2752
s_branch LtE
LtA0:
s_lshl_b32 s{b0}, s{r128}, 14
s_movk_i32 s{s1}, 128
s_movk_i32 s{s2}, 4096
s_movk_i32 s{s3}, 1024
s_branch LtE
LtA1:
s_lshr_b32 s3, s{r128}, 1
s_add_u32 s{b0}, s{r128}, s3
s_add_u32 s{b0}, s{b0}, 1
s_lshl_b32 s{b0}, s{b0}, 10
s_mov_b32 s{nj}, 2
s_branch LtE
LtB:
s_lshr_b32 s{s1}, s{sz}, 9
s_mul_i32 s{b0}, s{r128}, s{s1}
s_lshl_b32 s{b0}, s{b0}, 2
s_cmp_ge_u32 s{w}, 2
s_cselect_b32 s3, 1728, 0
s_add_u32 s{b0}, s{b0}, s3
s_cmp_eq_u32 s{w}, 0
s_cselect_b32 s{nj}, 0, 2
LtE:""".format(s1=s1, s2=s2_, s3=s3_, b0=b0, nj=nj, r16=r16, r128=r128, w=sWave, sz=sTc + 2)
            p(z, raw=True)
            p("v_bfe_u32 v7, v1, 2, 2\nv_and_b32 v8, 3, v1\nv_mov_b32 v6, s%d\nv_mad_u32_u24 v6, v4, s%d, v6\nv_mad_u32_u24 v6, v7, s%d, v6\nv_mad_u32_u24 v6, v8, s%d, v6" % (b0, s1, s2_, s3_))
            p("v_mov_b32 v8, 0x%x\nv_cmp_gt_u32 vcc, s%d, v7\nv_cndmask_b32 v%d, v8, v6, vcc\ns_mov_b32 s%d, 0x20000\ns_lshl_b32 s%d, s%d, 2" % (OOB, nj, vTa, sTc + 3, sPC, s1))
        elif tw:
            p("s_mov_b32 s3, 176128\ns_cmp_eq_u32 s%d, 1\ns_cselect_b32 s%d, 196608, s3\ns_lshl_b32 s%d, s%d, 3" % (sWave, sWa, sTc + 2, sWa))
            p("s_cmp_eq_u32 s%d, 0\ns_cselect_b32 s%d, 128, s%d\ns_cselect_b32 s%d, 8, 6\ns_cselect_b32 s%d, 10, 7\ns_cselect_b32 s%d, 0x200000, s%d" % (sWave, sWa, sWa, sWb, sMw, sTc + 2, sTc + 2))
            p("s_mul_i32 s3, s2, s%d\nv_add_u32 v6, s3, v2\nv_lshlrev_b32 v6, s%d, v6\nv_mad_u32_u24 v6, v3, s%d, v6" % (sWb, sMw, sWa))
            p("v_mov_b32 v7, 0x%x\nv_cmp_gt_u32 vcc, s%d, v2\nv_cndmask_b32 v%d, v7, v6, vcc\ns_mov_b32 s%d, 0x20000" % (OOB, sWb, vTa, sTc + 3))
        p("s_and_b32 s3, s%d, 3\ns_lshl_b32 s%d, s3, 1\ns_bfe_u32 s3, s%d, 0x10001\ns_add_u32 s%d, s%d, s3" % (sTmp, sU, sTmp2, sU, sU))
        if o["p2map"] == "chk":
            p("s_lshl_b32 s%d, s%d, 2\ns_lshr_b32 s3, s%d, 3\ns_add_u32 s%d, s%d, s3\ns_and_b32 s3, s3, 1\ns_xor_b32 s3, s3, s%d\ns_and_b32 s%d, s3, 7" % (sTT, sTmp, sTmp2, sTT, sTT, sTmp2, sCT))
        elif o["p2map"] == "row":
            p("s_lshl_b32 s%d, s%d, 1\ns_lshr_b32 s3, s%d, 4\ns_add_u32 s%d, s%d, s3\ns_lshl_b32 s%d, s%d, 1\ns_and_b32 s3, s%d, 1\ns_add_u32 s%d, s%d, s3\ns_bfe_u32 s%d, s%d, 0x30001" % (sTT, sTmp, sTmp2, sTT, sTT, sTT, sTT, sTmp2, sTT, sTT, sCT, sTmp2))
        elif o["p2map"] == "chk84":
            p("s_lshr_b32 s%d, s%d, 1\ns_lshl_b32 s%d, s%d, 3\ns_lshr_b32 s3, s%d, 2\ns_add_u32 s%d, s%d, s3" % (sTT, sTmp, sTT, sTT, sTmp2, sTT, sTT))
            p("s_and_b32 s3, s3, 1\ns_xor_b32 s3, s3, s%d\ns_and_b32 s3, s3, 3\ns_and_b32 s%d, s%d, 1\ns_lshl_b32 s%d, s%d, 2\ns_add_u32 s%d, s%d, s3" % (sTmp2, sCT, sTmp, sCT, sCT, sCT, sCT))
        elif o["p2map"] == "4x8":
            p("s_lshl_b32 s%d, s%d, 2\ns_lshr_b32 s3, s%d, 3\ns_add_u32 s%d, s%d, s3\ns_and_b32 s%d, s%d, 7" % (sTT, sTmp, sTmp2, sTT, sTT, sCT, sTmp2))
        else:
            p("s_lshr_b32 s%d, s%d, 1\ns_lshl_b32 s%d, s%d, 3\ns_lshr_b32 s3, s%d, 2\ns_add_u32 s%d, s%d, s3" % (sTT, sTmp, sTT, sTT, sTmp2, sTT, sTT))
            p("s_and_b32 s%d, s%d, 1\ns_lshl_b32 s%d, s%d, 2\ns_and_b32 s3, s%d, 3\ns_add_u32 s%d, s%d, s3" % (sCT, sTmp, sCT, sCT, sTmp2, sCT, sCT))
        self.srd(p, sX, 4, 2048 * 1024)
        if tw:
            p("s_bitcmp1_b32 s%d, 0\ns_cselect_b64 s[%d:%d], s[6:7], s[4:5]\ns_cselect_b64 s[100:101], s[16:17], s[14:15]" % (sWave, sTc, sTc + 1))
            p("s_cmp_lt_u32 s%d, 2\ns_cselect_b64 s[%d:%d], s[%d:%d], s[100:101]" % (sWave, sTc, sTc + 1, sTc, sTc + 1))
        for c in self.touches("pre"):
            if t2:
                p("s_bitcmp%d_b32 s2, 3\ns_cselect_b32 s3, 0x%x, 0" % (0 if "U@pre" in o["touch"] else 1, OOB))
                for i in c: p(i.text.replace(", 0 offen", ", s3 offen"))
            else: p.ext(c)
        for c in self.xdma(0): p.ext(c)
        for c in self.touches("x0"): p.ext(c)
        p("s_cmp_lt_u32 s%d, 2\ns_cselect_b64 s[%d:%d], s[14:15], s[16:17]" % (sWave, sW, sW + 1))
        p("s_mov_b32 s%d, 0x%x\ns_mov_b32 s%d, 0x20000" % (sW + 2, 512 * 2752, sW + 3))
        self.srd(p, sQ, 6, 512 * 3072)
        p("s_bitcmp0_b32 s2, 3\ns_cbranch_scc1 LpathA")
        return p
    def dma(self, pre, v, srd, so, imm, post, tag):
        p = P()
        if pre: p(pre)
        p("buffer_load_dwordx4 v%d, %s, s%d offen offset:%d lds" % (v, sr(srd), so, imm), tag=tag)
        if post: p(post)
        return p.l
    def group(self, n, m0reg, m0off, v, srd, so, step, tag):
        first = so not in self.started; self.started.add(so)
        def pre(j):
            if j % 4: return ""
            t = "s_add_u32 m0, s%d, %d" % (m0reg, m0off + 1024 * j)
            if j == 0 and not first: t += "\ns_%s_u32 s%d, s%d, %d" % ("add" if step > 0 else "sub", so, so, abs(step))
            return t
        return [self.dma(pre(j), v + j, srd, so, 1024 * (j % 4), "", tag) for j in range(n)]
    def xdma(self, sg): return self.group(4, sMx, XS[sg % 3], vXo, sX, sXo, 128, "slab%d" % sg)
    def common2(self, q, B):
        q("v_lshlrev_b32 v6, 2, v5\nv_xor_b32 v6, v3, v6\nv_lshlrev_b32 v7, 4, v6")
        q("v_lshl_add_u32 v%d, v2, 10, v7\nv_add_u32 v%d, 7168, v%d\nv_add_u32 v%d, %d, v%d\nv_add_u32 v%d, %d, v%d" % (v2o, v2o + 1, v2o, v2o + 2, 65536 - 2048, v2o, v2o + 3, 65536 - 2048, v2o + 1))
        if B: q("v_mul_u32_u24 v6, 3072, v2\nv_add_u32 v%d, v6, v7\nv_add_u32 v%d, %d, v%d" % (vWo + 7, vWo + 8, 8 * 3072 - 1024, vWo + 7))
        self.srd(q, sD, 18, 1376 * 1024); self.srd(q, sO, 10, 512 * 1024); self.srd(q, sH, 26, WS_SIZE)
        self.srd(q, sG, 24, 256); self.srd(q, sOut, 22, 2048 * 1024); self.srd(q, sM, 8, 16384); self.srd(q, sM2, 20, 1024)
        if self.o.get("spins"): q("s_mov_b32 s26, 0")
        q("v_lshlrev_b32 v%d, 4, v1" % vL16)
        q("v_mov_b32 v%d, 1\nv_mov_b32 v6, 0x%x\nv_cmp_eq_u32 vcc, 0, v0\nv_cndmask_b32 v%d, v6, 0, vcc" % (vOne, OOB, vFlag))
        q("v_lshlrev_b32 v7, 7, v0\nv_cmp_gt_u32 vcc, 16, v0\nv_cndmask_b32 v%d, v6, v7, vcc\nv_cmp_gt_u32 vcc, 8, v0\nv_cndmask_b32 v%d, v6, v7, vcc" % (vPoll, vPoll8))
        q("s_mov_b32 s%d, 0x%x\ns_mov_b32 s%d, 0x%x\ns_mov_b32 s%d, 0x%x\ns_mov_b32 s%d, 0x%x\nv_mov_b32 v%d, 0x%x" % (sL2E, f2u(L2E), sL2E + 1, f2u(L2E), sK2, f2u(K2), sK2 + 1, f2u(K2), vK1, f2u(K1)))
        q("s_cmp_eq_u32 s%d, 0\ns_cselect_b32 s%d, 0xffff, 0\ns_cselect_b32 s%d, 0xff, 0" % (sWave, sExp, sE8))
        q("s_lshl_b32 s%d, s%d, 14\ns_lshl_b32 s3, s%d, 7\ns_add_u32 s%d, s%d, s3" % (sW2o, sWave, sCT, sW2o, sW2o))
        q("s_lshl_b32 s3, s%d, 2\ns_add_u32 s3, s3, s%d\ns_lshl_b32 s3, s3, 12\ns_add_u32 s%d, s3, 0x%x" % (sU, sWave, sKv, WS_KV))
        q("v_and_b32 v2, 31, v1\nv_lshrrev_b32 v3, 5, v1\nv_bfe_u32 v6, v2, 1, 3\nv_xor_b32 v6, v3, v6\nv_lshlrev_b32 v6, 4, v6\nv_lshl_add_u32 v6, v2, 7, v6")
        q("v_bfe_u32 v4, v1, 2, 2\nv_lshrrev_b32 v9, 1, v4\nv_and_b32 v7, 3, v1\nv_lshlrev_b32 v7, 3, v7\nv_lshl_add_u32 v8, v3, 3, v4")
    def w2_init(self, loc, bases, avail):
        self.loc = loc; self.bases = bases; self.used = []; self.avail = avail; self.g = 0; self.nh = 0
    def w2(self, spec):
        r = []
        for t in spec.split("."):
            if not t: continue
            if t in ("T", "X", "Z"): r += self.extra[t]; continue
            if t[0] == "H":
                assert int(t[1:]) == self.nh; self.nh += 1
                l = self.hload(int(t[1:])).l; r += [l[:1], l[1:]]; continue
            if t[0] == "P":
                z = P(); self.poll_issue(z, t[1:]); r.append(z.l); continue
            i = int(t[1:]); assert t not in self.used, t
            self.used.append(t)
            if t[0] in "GQ":
                assert i == 0 or "%s%d" % (t[0], i - 1) in self.used
                assert self.g >= self.avail[t], (t, self.g)
                r += self.other(i)
            elif t[0] == "D":
                assert i == 0 or "D%d" % (i - 1) in self.used
                assert self.g >= self.avail[self.loc[i]], (t, self.g)
                prev = [k for k in range(i) if self.loc[k] == self.loc[i]]
                g = self.group(4, sMx, self.loc[i], v2o, sD if i < 11 else sO, sW2o, -10 * 131072 + 32768 if i == 11 else 131072 - 32768 if i == 7 else 131072, "w2d%d" % i)
                if prev: g[0] = [Ins("@wait lg:w2r%d" % prev[-1])] + g[0]
                r += g
            else:
                assert self.g >= 34 + 2 * i, (t, self.g)
                rs = max(k for k, b in enumerate(self.bases) if b <= self.loc[i]); off = self.loc[i] - self.bases[rs]
                assert off + 4096 <= 65536
                for st in range(2):
                    for cb in range(2):
                        for half in range(2):
                            p = P()
                            if st == cb == half == 0: p("@wait vm:w2d%d" % i)
                            p("ds_read_b64_tr_b16 %s, v%d offset:%d" % (ar(8 * (2 * i + st) + 4 * cb + 2 * half, 2), v2a + 2 * rs + cb, off + st * 2048 + half * 1024), tag="w2r%d" % i)
                            r.append(p.l)
        return r
    def w2_addr(self):
        p = P(); va = v2a
        p("v_bfe_u32 v2, v1, 2, 2\nv_lshrrev_b32 v3, 5, v1\nv_lshl_add_u32 v3, v3, 2, v2\nv_and_b32 v2, 2, v2\nv_bfe_u32 v4, v1, 4, 1\nv_or_b32 v2, v2, v4")
        p("v_and_b32 v4, 3, v1\nv_lshlrev_b32 v4, 3, v4\nv_lshl_add_u32 v4, v2, 5, v4\nv_lshl_add_u32 v4, v3, 7, v4\nv_add_u32 v%d, s%d, v4\nv_xor_b32 v%d, 64, v%d" % (va, sMx, va + 1, va))
        assert self.bases[0] == 0
        for k in range(1, len(self.bases)): p("v_add_u32 v%d, %d, v%d\nv_add_u32 v%d, %d, v%d" % (va + 2 * k, self.bases[k], va, va + 2 * k + 1, self.bases[k], va + 1))
        return p
    def flag_off(self, p, kind, B, d):
        if kind == "kv": p("s_lshl_b32 s%d, s%d, 4\ns_add_u32 s%d, s%d, s%d\ns_lshl_b32 s%d, s%d, 7" % (d, sU, d, d, sT, d, d)); base = FKV
        elif kind == "h": p("s_lshl_b32 s%d, s%d, 4\ns_add_u32 s%d, s%d, s%d\ns_lshl_b32 s%d, s%d, 7" % (d, sT, d, d, sU, d, d)); base = FHD + (0 if B else 8)
        else: p("s_lshl_b32 s%d, s%d, 3\ns_add_u32 s%d, s%d, s%d\ns_lshl_b32 s%d, s%d, 7" % (d, sT, d, d, sU, d, d)); base = FOD
        p("s_add_u32 s%d, s%d, 0x%x" % (d, d, WS_FL + base * 128))
    def flag(self, p, d):
        p("buffer_store_dword v%d, v%d, %s, s%d offen sc1" % (vOne, vFlag, sr(sH), d))
    def poll_off(self, p, kind):
        d = {"kv": sPk, "h": sPh, "o": sPo}[kind]
        if kind == "kv": p("s_lshl_b32 s%d, s%d, 11\ns_add_u32 s%d, s%d, 0x%x" % (d, sU, d, d, WS_FL + FKV * 128))
        elif kind == "h": p("s_lshr_b32 s%d, s%d, 1\ns_lshl_b32 s%d, s%d, 11\ns_add_u32 s%d, s%d, 0x%x" % (d, sTT, d, d, d, d, WS_FL + FHD * 128))
        else: p("s_lshr_b32 s%d, s%d, 1\ns_lshl_b32 s%d, s%d, 10\ns_add_u32 s%d, s%d, 0x%x" % (d, sTT, d, d, d, d, WS_FL + FOD * 128))
    def poll_ins(self, kind, first=False):
        if kind == "init": return "buffer_load_dword v%d, v%d, %s, 0 offen sc1" % (vPr, vDum + 1, sr(sG))
        if self.o.get("apoll", 0) > (1 if first else 0):
            return "v_mov_b32 v%d, 0\nbuffer_atomic_or v%d, v%d, %s, s%d offen offset:%d sc0" % (vPr, vPr, vPoll if kind == "kv" else vPoll8, sr(sH), {"kv": sPk, "h": sPh, "a": sPh, "o": sPo}[kind], 1024 if kind == "a" else 0)
        return "buffer_load_dword v%d, v%d, %s, s%d offen offset:%d sc1" % (vPr, vPoll if kind == "kv" else vPoll8, sr(sH), {"kv": sPk, "h": sPh, "a": sPh, "o": sPo}[kind], 1024 if kind == "a" else 0)
    def poll_issue(self, p, kind):
        if kind == "init": p("v_lshrrev_b32 v%d, 5, v%d" % (vDum + 1, vPoll8))
        p(self.poll_ins(kind, True))
    def poll_check(self, p, kind):
        k = self.nlab; self.nlab += 1
        e = sExp if kind == "kv" else sE8
        p("v_cmp_eq_u32 vcc, 1, v%d\ns_nop 1\ns_and_b32 s%d, vcc_lo, s%d\ns_cmp_eq_u32 s%d, s%d\ns_cbranch_scc1 Lok%d" % (vPr, sPC, e, sPC, e, k))
        p("s_mov_b32 s%d, 0\nLsp%d:\ns_sleep %d\n%s\ns_waitcnt vmcnt(0)" % (sPC + 1, k, self.o.get("sleep", 0), self.poll_ins(kind)), raw=True)
        if self.o.get("spins"): p("s_add_u32 s26, s26, %d" % (1 << 6 * ["init", "kv", "h", "a", "o"].index(kind)), raw=True)
        p("v_cmp_eq_u32 vcc, 1, v%d\ns_add_u32 s%d, s%d, 1\ns_nop 0\ns_and_b32 s%d, vcc_lo, s%d\ns_cmp_eq_u32 s%d, s%d\ns_cbranch_scc1 Lok%d\ns_cmp_lt_u32 s%d, 0x8000\ns_cbranch_scc1 Lsp%d\nLok%d:" % (vPr, sPC + 1, sPC + 1, sPC, e, sPC, e, k, sPC + 1, k, k), raw=True)
    def gate_job(self, g=112, sA=sMw, sB=sMq, tag="hst"):
        ld = P(); c = P(); gw = vGt; vA = vGt + 6
        ld("s_lshl_b32 s3, s%d, 3\ns_add_u32 s3, s3, s%d\ns_lshl_b32 s3, s3, 2\ns_add_u32 s3, s3, s%d" % (sT, sU, sWave))
        ld("s_lshl_b32 s%d, s3, 4\ns_add_u32 s%d, s%d, 0x%x\ns_lshl_b32 s%d, s3, 12\nv_lshlrev_b32 v%d, 4, v1" % (sA, sA, sA, WS_G, sB, vA))
        lds = [ld.l + [Ins("buffer_load_dwordx4 %s, v%d, %s, 0 offen" % (vr(gw), vA, sr(sM2)))]]
        for k in range(4): lds.append([Ins("buffer_load_dwordx4 %s, v%d, %s, s%d offen offset:%d" % (vr(g + 4 * k), vA, sr(sX), sB, 1024 * k))])
        for i in range(4):
            c("v_lshlrev_b32 v6, 16, v%d\nv_and_b32 v7, 0xffff0000, v%d" % (gw + i, gw + i))
            for k in range(4):
                c("v_lshlrev_b32 v8, 16, v%d\nv_and_b32 v9, 0xffff0000, v%d" % (g + 4 * k + i, g + 4 * k + i))
                c("%s v%d, v8, v6\nv_fmac_f32 v%d, v9, v7" % ("v_mul_f32" if i == 0 else "v_fmac_f32", 2 + k, 2 + k))
        c("v_and_b32 v6, 15, v1\nv_lshlrev_b32 v6, 25, v6")
        c("v_permlane32_swap_b32 v2, v4\nv_permlane32_swap_b32 v3, v5\nv_add_f32 v2, v2, v4\nv_add_f32 v3, v3, v5")
        c("v_lshrrev_b32 v7, 2, v1\nv_or_b32 v6, v6, v7")
        c("v_permlane16_swap_b32 v2, v3\nv_add_f32 v2, v2, v3")
        for r in (8, 4, 2, 1): c("v_add_f32_dpp v2, v2, v2 row_ror:%d row_mask:0xf bank_mask:0xf" % r)
        c("v_mul_f32 v2, 0x%x, v2\nv_exp_f32 v2, v2\nv_add_f32 v2, 1.0, v2\nv_rcp_f32 v%d, v2\nv_mov_b32 v%d, v6" % (f2u(-L2E), 20, 21))
        st = P(); st("buffer_store_dword v%d, v%d, %s, s%d offen sc1" % (20, 21, sr(sH), sA), tag=tag)
        return lds, c, st
    def wphi_load(self):
        p = P()
        p("s_lshl_b32 s3, s%d, 10\ns_add_u32 m0, s3, %d\ns_lshl_b32 s%d, s%d, 11\ns_add_u32 s3, s3, s%d" % (sC, MISC, sTmp, sU, sTmp))
        p("buffer_load_dwordx4 v%d, %s, s3 offen lds" % (vL16, sr(sM)), tag="wphi")
        return p.l
    def wphi_read(self):
        p = P()
        p("v_bfe_u32 v2, v1, 2, 2\nv_lshrrev_b32 v3, 5, v1\nv_lshl_add_u32 v3, v3, 2, v2\nv_bfe_u32 v2, v1, 1, 1\nv_and_b32 v4, 16, v1\nv_lshl_add_u32 v4, v2, 3, v4\nv_lshl_add_u32 v4, v3, 5, v4")
        p("s_lshl_b32 s3, s%d, 10\ns_add_u32 s3, s3, %d\nv_add_u32 v4, s3, v4" % (sC, MISC))
        p("@wait vm:wphi")
        for b in range(2):
            for half in range(2): p("ds_read_b64_tr_b16 %s, v4 offset:%d" % (vr(vWp + 4 * b + 2 * half, 2), b * 512 + half * 256))
        p("v_bfe_u32 v6, v1, 2, 1\nv_mul_u32_u24 v6, 0x8000, v6\nv_lshl_or_b32 v%d, v6, 16, v6" % vSign)
        q = P()
        for i in range(8): q("v_xor_b32 v%d, v%d, v%d" % (vWp + i, vWp + i, vSign))
        return p, q
    def softmax(self, Pr, T, out, pk=True):
        p = P()
        if not pk:
            for k in range(5): p("v_max3_f32 v%d, v%d, v%d, v%d" % (T + k, Pr + 3 * k, Pr + 3 * k + 1, Pr + 3 * k + 2))
            p("v_max3_f32 v%d, v%d, v%d, v%d\nv_max3_f32 v%d, v%d, v%d, v%d\nv_max_f32 v%d, v%d, v%d" % (T, T, T + 1, Pr + 15, T + 2, T + 2, T + 3, T + 4, T, T, T + 2))
            p("v_mul_f32 v%d, 0x%x, v%d" % (T, f2u(-L2E), T))
            for k in range(2): p("v_fma_f32 v%d, v%d, s%d, v%d" % (Pr + k, Pr + k, sL2E, T))
            for k in range(16):
                p("v_exp_f32 v%d, v%d" % (Pr + k, Pr + k))
                if k < 14: p("v_fma_f32 v%d, v%d, s%d, v%d" % (Pr + k + 2, Pr + k + 2, sL2E, T))
                if k == 3: p("v_add_f32 v%d, v%d, v%d" % (T + 1, Pr, Pr + 1))
                if k > 3: p("v_add_f32 v%d, v%d, v%d" % (T + 1, T + 1, Pr + k - 2))
            p("v_add_f32 v%d, v%d, v%d\nv_add_f32 v%d, v%d, v%d\nv_rcp_f32 v%d, v%d" % (T + 1, T + 1, Pr + 14, T + 1, T + 1, Pr + 15, T, T + 1))
            for k in range(8):
                p("v_mul_f32 v%d, v%d, v%d\nv_mul_f32 v%d, v%d, v%d" % (Pr + 2 * k, Pr + 2 * k, T, Pr + 2 * k + 1, Pr + 2 * k + 1, T))
                if k: p("v_cvt_pk_bf16_f32 v%d, v%d, v%d" % (out + k - 1, Pr + 2 * k - 2, Pr + 2 * k - 1))
            p("v_cvt_pk_bf16_f32 v%d, v%d, v%d" % (out + 7, Pr + 14, Pr + 15))
            return p
        for k in range(5): p("v_max3_f32 v%d, v%d, v%d, v%d" % (T + k, Pr + 3 * k, Pr + 3 * k + 1, Pr + 3 * k + 2))
        p("v_max3_f32 v%d, v%d, v%d, v%d\nv_max3_f32 v%d, v%d, v%d, v%d\nv_max_f32 v%d, v%d, v%d" % (T, T, T + 1, Pr + 15, T + 2, T + 2, T + 3, T + 4, T, T, T + 2))
        p("v_mul_f32 v%d, 0x%x, v%d" % (T, f2u(-L2E), T))
        for k in range(8): p("v_pk_fma_f32 %s, %s, %s, %s op_sel_hi:[1,0,0]" % (vr(Pr + 2 * k, 2), vr(Pr + 2 * k, 2), sr(sL2E, 2), vr(T, 2)))
        for k in range(16): p("v_exp_f32 v%d, v%d" % (Pr + k, Pr + k))
        for k in range(4): p("v_pk_add_f32 %s, %s, %s" % (vr(T + 2 * k, 2), vr(Pr + 4 * k, 2), vr(Pr + 4 * k + 2, 2)))
        p("v_pk_add_f32 %s, %s, %s\nv_pk_add_f32 %s, %s, %s\nv_pk_add_f32 %s, %s, %s" % (vr(T, 2), vr(T, 2), vr(T + 2, 2), vr(T + 4, 2), vr(T + 4, 2), vr(T + 6, 2), vr(T, 2), vr(T, 2), vr(T + 4, 2)))
        p("v_add_f32 v%d, v%d, v%d\nv_rcp_f32 v%d, v%d" % (T, T, T + 1, T, T))
        for k in range(8): p("v_pk_mul_f32 %s, %s, %s op_sel_hi:[1,0]" % (vr(Pr + 2 * k, 2), vr(Pr + 2 * k, 2), vr(T, 2)))
        for k in range(8): p("v_cvt_pk_bf16_f32 v%d, v%d, v%d" % (out + k, Pr + 2 * k, Pr + 2 * k + 1))
        return p
    def gelu(self, a, T, soff, imm, pk=True):
        p = P()
        if not pk:
            for k in range(8): p("v_mul_f32 v%d, v%d, v%d" % (T + k, a + k, a + k))
            for k in range(8): p("v_fma_f32 v%d, v%d, s%d, v%d" % (T + k, T + k, sK2, vK1))
            for k in range(2): p("v_mul_f32 v%d, v%d, v%d" % (T + k, T + k, a + k))
            for k in range(8):
                p("v_exp_f32 v%d, v%d" % (T + k, T + k))
                if k < 6: p("v_mul_f32 v%d, v%d, v%d" % (T + k + 2, T + k + 2, a + k + 2))
                p("v_mul_f32 v%d, v%d, v%d" % (a + k, a + k, a + 8 + k))
            for k in range(2): p("v_add_f32 v%d, 1.0, v%d" % (T + k, T + k))
            for k in range(8):
                p("v_rcp_f32 v%d, v%d" % (T + k, T + k))
                if k < 6: p("v_add_f32 v%d, 1.0, v%d" % (T + k + 2, T + k + 2))
                if k >= 1: p("v_mul_f32 v%d, v%d, v%d" % (a + k - 1, a + k - 1, T + k - 1))
            p("v_cvt_pk_bf16_f32 v%d, v%d, v%d\nv_mul_f32 v%d, v%d, v%d" % (a + 8, a, a + 1, a + 7, a + 7, T + 7))
            for k in range(1, 4): p("v_cvt_pk_bf16_f32 v%d, v%d, v%d" % (a + 8 + k, a + 2 * k, a + 2 * k + 1))
            p("buffer_store_dwordx4 %s, v%d, %s, s%d offen offset:%d sc1" % (vr(a + 8), vL16, sr(sH), soff, imm), tag="hst")
            return p
        for k in range(4): p("v_pk_mul_f32 %s, %s, %s" % (vr(T + 2 * k, 2), vr(a + 2 * k, 2), vr(a + 2 * k, 2)))
        for k in range(4): p("v_pk_fma_f32 %s, %s, %s, %s op_sel_hi:[1,0,0]" % (vr(T + 2 * k, 2), vr(T + 2 * k, 2), sr(sK2, 2), vr(vK1, 2)))
        for k in range(4): p("v_pk_mul_f32 %s, %s, %s" % (vr(T + 2 * k, 2), vr(T + 2 * k, 2), vr(a + 2 * k, 2)))
        for k in range(8): p("v_exp_f32 v%d, v%d" % (T + k, T + k))
        for k in range(4): p("v_pk_mul_f32 %s, %s, %s" % (vr(a + 2 * k, 2), vr(a + 2 * k, 2), vr(a + 8 + 2 * k, 2)))
        for k in range(4): p("v_pk_add_f32 %s, %s, 1.0 op_sel_hi:[1,0]" % (vr(T + 2 * k, 2), vr(T + 2 * k, 2)))
        for k in range(8): p("v_rcp_f32 v%d, v%d" % (T + k, T + k))
        for k in range(4): p("v_pk_mul_f32 %s, %s, %s" % (vr(a + 2 * k, 2), vr(a + 2 * k, 2), vr(T + 2 * k, 2)))
        for k in range(4): p("v_cvt_pk_bf16_f32 v%d, v%d, v%d" % (a + 8 + k, a + 2 * k, a + 2 * k + 1))
        p("buffer_store_dwordx4 %s, v%d, %s, s%d offen offset:%d sc1" % (vr(a + 8), vL16, sr(sH), soff, imm), tag="hst")
        return p
    def hpos(self, p, dst, ksreg):
        p("s_and_b32 s3, s%d, 3\ns_mul_i32 s3, s3, 30\ns_lshr_b32 s%d, s%d, 2\ns_add_u32 s3, s3, s%d" % (ksreg, dst, ksreg, dst))
        p("s_lshl_b32 s3, s3, %d\ns_add_u32 s%d, s3, s%d" % (10 + self.hs, dst, sHo))
    def scalars(self, e, B):
        if self.hs == 2: e("v_lshrrev_b32 v2, 3, v1\nv_lshl_add_u32 v%d, v2, 7, v%d" % (vL16, vL16))
        self.flag_off(e, "h", B, sF1); self.flag_off(e, "o" if B else "kv", B, sF2)
        self.poll_off(e, "h"); self.poll_off(e, "o")
        if B: self.poll_off(e, "kv")
        e("s_lshl_b32 s%d, s%d, 8\ns_add_u32 s%d, s%d, 0x%x" % (sGo, sTT, sGo, sGo, WS_G))
        e("s_lshl_b32 s%d, s%d, 16\ns_lshl_b32 s3, s%d, 7\ns_add_u32 s%d, s%d, s3\ns_add_u32 s%d, s%d, 32768" % (sOa, sTT, sCT, sOa, sOa, sOb, sOa))
    @staticmethod
    def cost(c):
        t = 0
        for i in c:
            if i.raw or i.op.startswith("@cut"): continue
            t += 8 if i.op.startswith(("v_exp", "v_rcp")) else 40 if i.op == "ds_write_b128" else 20 if i.cls == "vmem" else 32 if i.cls == "mfma" else 4
        return t
    @staticmethod
    def zones(l):
        out = []; pk = [i.op.startswith("v_pk") for i in l]; k = 0
        while k < len(l):
            if not pk[k]: out.append([l[k]]); k += 1; continue
            e = k
            while any(pk[e + 1:e + 4]): e += 1
            out.append(l[k:e + 1]); k = e + 1
        return out
    def flush(self, p):
        self.nflush = len(self.fq)
        for c in self.fq: p.ext(c)
        self.fq = []
    def engine(self, p, nsteps, mfmas, reads, pre, rel, dq, front, budget=lambda g: 24):
        self.fq = []; debt = 0
        for g in range(nsteps):
            self.g = g
            pre(g, p)
            if g in rel: dq += rel[g]()
            nxt = min([k for k in rel if k > g] + [nsteps])
            nq = -(-len(dq) // (nxt - g))
            mm = mfmas(g); rd = reads(g); ex = list(self.side.get(g, []))
            fr = front(g)
            if fr: nq = max(nq, min(len(dq), fr * len(mm)))
            rper = max(2, -(-len(rd) // max(1, len(mm) - 1)))
            if self.fq and len(rd) <= len(mm) and (g % 4 != 2 or len(mm) == 2): rper = 1
            for gi, m in enumerate(mm):
                xm = self.o.get("x_j1", 0) if g < 31 else 0
                if not xm & 1: p(m)
                n0 = len(p.l)
                for _ in range(rper):
                    if rd:
                        c = rd.pop(0)
                        if not xm & 2 or len(rd) == 0: p.ext(c)
                rem = len(mm) - gi
                k = max(nq // rem, min(nq, fr))
                for _ in range(k):
                    c = dq.pop(0); nq -= 1
                    if xm & 4 and c[-1].cls == "vmem" and len(dq) > 0: c = c[:-1]
                    p.ext(c)
                k = -(-len(ex) // rem)
                for _ in range(k): p.ext(ex.pop(0))
                used = self.cost(p.l[n0:])
                while self.fq:
                    c = self.fq[0]; z = c[0].op.startswith("v_pk"); cc = self.cost(c)
                    if not z and used + min(cc, 16) > budget(g): break
                    p.ext(self.fq.pop(0)); used += cc
                    if c[0].cls == "mfma": used = 0
                    if z: break
            assert not rd and not ex and nq == 0
        assert not dq
        self.g = nsteps
        self.flush(p)
    def addside(self, g, chunks): self.side.setdefault(g, []); self.side[g] += chunks
    def spread(self, chunks, g0, g1):
        if isinstance(chunks, P): chunks = [[i] for i in chunks.l]
        n = len(chunks)
        for g in range(g0, g1): self.addside(g, chunks[(g - g0) * n // (g1 - g0):(g - g0 + 1) * n // (g1 - g0)])
    def seg(self, p, e, spec):
        ch = self.w2(spec)
        p.ext(merge(e.l, ch, max(1, len(e.l) // (len(ch) + 1))))
    xf = staticmethod(lambda g, tb: ar(8 * (g % 32) + 4 * tb))
    def pathA(self):
        o = self.o; p = P(); B = self.B = False; self.side = {}
        vWo2 = 24; vXa = 28; vWa1 = 32; vWa2 = 34
        aPw, aPw2, aVw, aPr, aVr, aKeep, aOnes, aAt = range(36, 44)
        J = [A_J2 + 16384 * i for i in range(4)]
        K = [A_KV + 16384 * i for i in range(3)]
        ex = o.get("aexp", 1); sHs = 36
        gx = 32 if ex else 4 * o.get("axb", 12) + 3; gk = gx + o.get("akv", 3 if ex else 4)
        GL = J + XS + [J[0]]
        bars = [int(x) for x in str(o.get("abar", "8.11.12.13.15" if ex else "8.9.10.11.12.13.15")).split(".")]
        fb = lambda n: 4 * min(k for k in bars if k >= n) + 3
        av = {}
        for m in range(8): av[GL[m]] = fb(8 + m)
        for i in range(3): av[K[i]] = fb(gk // 4)
        for i in range(8): av["G%d" % i] = [23, 23, 23, 23, 27, 31, 23, fb(8)][i]
        self.w2_init(K + J[1:] + XS + [J[0]] + K + J[1:3] if ex else J[1:] + XS[:1] + K + XS[1:] + J + XS[:1] + K[:1], [0, 65536, 131072], av)
        p("LpathA:")
        p("s_lshr_b32 s%d, s%d, 1\ns_lshl_b32 s3, s%d, 2" % (sTmp, sWave, sTmp))
        p("v_lshlrev_b32 v6, 1, v5\nv_xor_b32 v6, v3, v6\nv_xor_b32 v6, s3, v6\nv_lshlrev_b32 v6, 4, v6")
        p("v_mul_u32_u24 v7, 3072, v2\nv_add_u32 v%d, v6, v7" % vWo)
        for j in range(1, 4): p("v_add_u32 v%d, %d, v%d" % (vWo + j, j * (8 * 3072 - 1024), vWo))
        p("s_lshl_b32 s%d, s%d, 10\ns_lshl_b32 s3, s%d, 7\ns_add_u32 s%d, s%d, s3\ns_mul_i32 s3, s%d, %d\ns_add_u32 s%d, s%d, s3\ns_add_u32 s%d, s%d, 1024" % (sWa, sTmp, sU, sWa, sWa, sC, 32 * 3072, sWa, sWa, sWa, sWa))
        kvdma = lambda sg: self.group(4, sMx, A_KV + 16384 * (sg % 3), vWo, sQ, sWa, 64 * 3072, "slab%d" % sg)
        gudma = lambda m: self.group(4, sMx, GL[m], vWo2, sW, sWb, 64 * 2752, "slab%d" % (8 + m))
        self.other = gudma
        for c in kvdma(0) + self.touches("s0"): p.ext(c)
        self.stamp(p, "issued0")
        dq = self.xdma(1) + kvdma(1)
        npre = o.get("apre", 8)
        for c in dq[:npre]: p.ext(c)
        dq = dq[npre:]
        p("v_mul_u32_u24 v7, 2752, v2\nv_add_u32 v%d, v6, v7" % vWo2)
        for j in range(1, 4): p("v_add_u32 v%d, %d, v%d" % (vWo2 + j, j * (8 * 2752 - 1024), vWo2))
        p("s_lshl_b32 s3, s%d, 2\ns_add_u32 s%d, s3, 54" % (sU, sFfn))
        p("s_lshl_b32 s%d, s%d, 5\ns_mul_i32 s3, s%d, %d\ns_add_u32 s%d, s%d, s3" % (sWb, sFfn, sC, 32 * 2752, sWb, sWb))
        self.common2(p, B)
        p("s_lshr_b32 s3, s%d, 1\ns_lshl_b32 s3, s3, 13\nv_add_u32 v%d, s3, v6" % (sWave, vXa))
        for s in range(1, 4): p("v_xor_b32 v%d, %d, v%d" % (vXa + s, s << 5, vXa))
        p("s_lshl_b32 s3, s%d, 1\nv_lshl_or_b32 v9, v5, 1, v9\nv_xor_b32 v9, s3, v9\nv_lshl_add_u32 v9, v9, 5, v7\nv_lshl_add_u32 v9, v8, 7, v9\nv_lshl_add_u32 v9, v5, 13, v9" % sC)
        p("v_add_u32 v%d, %d, v9\nv_xor_b32 v%d, 32, v%d\nv_add_u32 v%d, %d, v9\nv_xor_b32 v%d, 32, v%d" % (vWa1, A_KV, vWa1 + 1, vWa1, vWa2, A_J2, vWa2 + 1, vWa2))
        p("s_cmp_eq_u32 s%d, 0\ns_cselect_b32 s%d, 0, 0x%x\ns_add_u32 s3, s%d, s%d" % (sT, sTmp, OOB, sKv, sTmp))
        for k in range(4): p("v_mov_b32 v%d, 0" % (96 + k))
        for k in range(3): p("buffer_store_dwordx4 %s, v%d, %s, s3 offen offset:%d sc1" % (vr(96), vL16, sr(sH), 1024 * k), tag="zst")
        p("s_lshl_b32 s3, s%d, 13\ns_add_u32 s3, s3, s%d\ns_add_u32 s3, s3, 0x%x\ns_lshl_b32 s%d, s%d, 26\ns_add_u32 s3, s3, s%d\nv_lshlrev_b32 v2, 7, v1" % (sU, sTmp, WS_FL, sTmp, sWave, sTmp))
        p("buffer_store_dword v96, v2, %s, s3 offen sc1" % sr(sH), tag="zst")
        dq += self.touches("s1") + self.xdma(2) + kvdma(2) + self.touches("s2")
        p("@wait vm:slab0\ns_barrier")
        self.stamp(p, "slab0")
        fw = lambda g, b: vFr + 8 * (g & 1) + 4 * b
        acc = lambda job, b, tb: 128 + 64 * job + 32 * b + 16 * tb
        def rd(g):
            r = []
            if g >= 64: return r
            sg, s = g // 4, g % 4
            def w(b):
                for half in range(2):
                    if g < 32: va, off = vWa1 + b, 16384 * (sg % 3)
                    elif GL[sg - 8] >= A_J2: va, off = vWa2 + b, GL[sg - 8] - A_J2
                    else: va, off = vWa1 + b, GL[sg - 8]
                    r.append([Ins("ds_read_b64_tr_b16 %s, v%d offset:%d" % (vr(fw(g, b) + 2 * half, 2), va, off + s * 2048 + half * 512))])
            def x(tb):
                if g < 32: r.append([Ins("ds_read_b128 %s, v%d offset:%d" % (self.xf(g, tb), vXa + s, XS[sg % 3] + 4096 * tb))])
            x(0); w(0); x(1); w(1)
            return r
        for c in rd(0): p.ext(c)
        def mfmas(g):
            return ["%s %s, %s, %s, %s" % (MF, vr(acc(g // 32, b, tb), 16), vr(fw(g, b)), self.xf(g, tb), "0" if g % 32 == 0 else vr(acc(g // 32, b, tb), 16)) for b in range(2) for tb in range(2)]
        gl, gc, gst = self.gate_job()
        t2a, t2l = self.touch2()
        if o["aux"] == "B": gl, gc, gst, t2a, t2l = [], P(), P(), P(), []
        self.addside(8, gl[:1])
        z = P(); z("s_cmp_eq_u32 s%d, 0\ns_cselect_b32 s%d, 0, 0x%x\ns_lshl_b32 s3, s%d, 2\ns_add_u32 s3, s3, s%d" % (sT, sTmp, OOB, sU, sTmp))
        z("buffer_store_dword v%d, v%d, %s, s3 offen sc1" % (vOne, vFlag, sr(sG)))
        self.addside(7, [z.l])
        e = P()
        e("v_and_b32 v2, 31, v1\nv_lshrrev_b32 v3, 5, v1\nv_bfe_u32 v4, v1, 1, 2\nv_lshlrev_b32 v5, 1, v3\nv_xor_b32 v4, v4, v5\nv_lshlrev_b32 v4, 4, v4\nv_lshl_add_u32 v4, v2, 6, v4")
        e("s_lshl_b32 s3, s%d, 2\ns_lshr_b32 s%d, s%d, 1\ns_add_u32 s%d, s%d, s3" % (sC, sTmp, sWave, sTmp, sTmp))
        e("s_lshl_b32 s3, s%d, 12\ns_add_u32 s3, s3, %d\nv_add_u32 v%d, s3, v4\nv_xor_b32 v%d, 16, v%d" % (sTmp, A_PHI, aPw, aPw2, aPw))
        e("v_bfe_u32 v4, v1, 2, 1\nv_xor_b32 v4, v4, v3\nv_lshlrev_b32 v4, 4, v4\nv_lshl_add_u32 v4, v2, 5, v4")
        e("s_lshl_b32 s3, s%d, 11\ns_add_u32 s3, s3, %d\nv_add_u32 v%d, s3, v4" % (sTmp, A_V, aVw))
        e("v_lshlrev_b32 v%d, 2, v2\nv_lshl_add_u32 v%d, v3, 9, v%d" % (aAt, aAt, aAt))
        e("v_bfe_u32 v4, v1, 2, 2\nv_lshl_add_u32 v5, v3, 2, v4")
        e("v_bfe_u32 v6, v1, 1, 1\nv_bfe_u32 v7, v1, 4, 1\nv_lshl_or_b32 v8, v7, 1, v6\nv_lshrrev_b32 v9, 1, v5\nv_xor_b32 v8, v8, v9\nv_lshlrev_b32 v8, 4, v8")
        e("v_and_b32 v9, 1, v1\nv_lshl_add_u32 v8, v9, 3, v8\nv_lshl_add_u32 v8, v5, 6, v8\ns_lshl_b32 s3, s%d, 13\ns_add_u32 s3, s3, %d\nv_add_u32 v%d, s3, v8" % (sWave, A_PHI, aPr))
        e("v_xor_b32 v9, v9, v3\nv_lshlrev_b32 v9, 4, v9\nv_lshl_add_u32 v9, v6, 3, v9\nv_lshl_add_u32 v9, v5, 5, v9\ns_add_u32 s3, s%d, %d\nv_add_u32 v%d, s3, v9" % (sMx, A_V, aVr))
        e("v_add_u32 v%d, -1, v7\nv_mul_u32_u24 v%d, 0x3f80, v7\nv_lshl_or_b32 v%d, v%d, 16, v%d" % (aKeep, aOnes, aOnes, aOnes, aOnes))
        w1, w2_ = self.wphi_read()
        e.ext(self.w2_addr()); e.ext(t2a); e.ext(w1)
        self.spread(e, 11, 23)
        e = P(); e.ext(w2_); self.scalars(e, B)
        e("s_lshl_b32 s3, s%d, 1\ns_lshr_b32 s%d, s%d, 1\ns_add_u32 s3, s3, s%d\ns_mul_i32 s%d, s3, %d" % (sT, sTmp, sWave, sTmp, sHo, 245760 * self.hs))
        e("s_lshl_b32 s%d, s%d, 1\ns_add_u32 s%d, s%d, s%d\ns_add_u32 s%d, s%d, 2" % (sTmp, sC, sTmp, sTmp, sFfn, sTmp, sTmp)); self.hpos(e, sHs, sTmp)
        e("s_add_u32 s%d, s%d, 1" % (sTmp, sTmp)); self.hpos(e, sHs + 1, sTmp)
        e("s_lshl_b32 s3, s%d, 2\ns_add_u32 s3, s3, s%d\ns_mul_i32 s%d, s3, %d" % (sTT, sWave, sHo, 61440 * self.hs))
        self.spread(e, 24, 32)
        items = [(b, tb) for b in range(2) for tb in range(2)]
        vKf, vV, vPh = 96, 104, 112
        e = P()
        def prep(k):
            b, tb = items[k]; a = acc(0, b, tb); kf = vKf + 4 * (k & 1); vv = vV + 4 * (k & 1)
            for i in range(4): e("v_cvt_pk_bf16_f32 v%d, v%d, v%d" % (kf + i, a + 2 * i, a + 2 * i + 1))
            for i in range(4): e("v_cvt_pk_bf16_f32 v%d, v%d, v%d" % (vv + i, a + 8 + 2 * i, a + 9 + 2 * i))
            e("ds_write_b128 v%d, %s offset:%d" % (aVw, vr(vv), b * 4096 + tb * 1024))
            e("%s %s, %s, %s, 0" % (MF, vr(a, 16), vr(vWp + 4 * b), vr(kf)))
        e("v_subrev_u32 v%d, %d, v%d\nv_subrev_u32 v%d, %d, v%d" % (vWa1, A_KV, vWa1, vWa1 + 1, A_KV, vWa1 + 1))
        prep(0); prep(1)
        for k, (b, tb) in enumerate(items):
            ph = vPh + 8 * (k & 1)
            sm = self.softmax(acc(0, b, tb), 2, ph, pk=bool(o.get("apk", 1))).l
            e.ext(sm[:17])
            if k < 2: prep(k + 2)
            k4 = -4 if o.get("apk", 1) else -8
            e.ext(sm[17:k4])
            e("ds_write_b128 v%d, %s offset:%d" % (aPw, vr(ph), b * 8192 + tb * 2048))
            e.ext(sm[k4:])
            e("ds_write_b128 v%d, %s offset:%d" % (aPw2, vr(ph + 4), b * 8192 + tb * 2048))
        e0 = e
        z = P(); self.poll_issue(z, "init"); self.addside(29, [z.l])
        kv = 96; fa = lambda s: 128 + 8 * s
        e = P()
        for s in range(11):
            if s < 8:
                for half in range(2): e("ds_read_b64_tr_b16 %s, v%d offset:%d" % (vr(fa(s) + 2 * half, 2), aVr, s * 512 + half * 256))
                for half in range(2): e("ds_read_b64_tr_b16 %s, v%d offset:%d" % (vr(fa(s) + 4 + 2 * half, 2), aPr, s * 1024 + half * 512))
            if 2 <= s < 10:
                for i in range(4): e("v_and_or_b32 v%d, v%d, v%d, v%d" % (fa(s - 2) + i, fa(s - 2) + i, aKeep, aOnes))
            if s >= 3: e("%s %s, %s, %s, %s" % (MF, vr(kv, 16), vr(fa(s - 3)), vr(fa(s - 3) + 4), "0" if s == 3 else vr(kv, 16)))
        self.spread(e, gx, gk)
        ch = [[Ins("buffer_atomic_add_f32 v%d, v%d, %s, s%d offen offset:%d" % (kv + i, aAt, sr(sH), sKv, (8 * (i >> 2) + (i & 3)) * 128), "kvat")] for i in range(8)]
        z = P(); z("s_mov_b32 exec_hi, 0\nbuffer_atomic_add_f32 v%d, v%d, %s, s%d offen offset:2048" % (kv + 8, aAt, sr(sH), sKv), tag="kvat"); z("s_mov_b32 exec_hi, -1")
        self.stamp(z, "atom")
        ga = o.get("aat", gk + 2 if ex else gk + 1)
        self.spread(ch + [z.l] + (t2l if o.get("atz") else []), ga, ga + o.get("aan", 2))
        gg = o.get("agl", gx + 1)
        self.spread(gl[1:], gg, gg + 2)
        if ex: self.spread(gc, 46, 62)
        gf = o.get("akf", 12 if ex else 99)
        dspec = o.get("ad", "G0,G1,,G7,D0,D1,,D2,D3.D4,D5,D6" if ex else "G0,G1,,G4,G5.G6,G7,D0,D1,,D2,D3").split(",")
        rspec = o.get("ar", ",,,,,,R0.R1,R2.R3" if ex else ",,,,,,,").split(",")
        def pre(g, p):
            sg, s = g // 4, g % 4
            if g == 32:
                self.stamp(p, "job1")
                if ex:
                    if o.get("x_nowr"): e0.l = [i for i in e0.l if not i.op.startswith("ds_write")]
                    if o.get("x_nopk"): e0.l = [i for i in e0.l if not i.op.startswith("v_pk")]
                    if o.get("x_noexp"): e0.l = [i for i in e0.l if not i.op.startswith("v_exp")]
                    self.seg(p, e0, o.get("a0", "G2.G3.G4.T"))
                    self.stamp(p, "ksm0")
                    self.poll_check(p, "init")
                    p("@wait lg:all vm:slab%d\ns_barrier" % bars[0]); self.stamp(p, "ksm")
                    for c in rd(32): p.ext(c)
                else: self.fq += self.zones(e0.l)
            if not ex and g == gx:
                self.flush(p); self.poll_check(p, "init")
            if not ex and g == ga + 2: self.fq += self.zones(gc.l)
            if g >= 32 and s == 0: self.spread(self.w2(rspec[sg - 8]), g, g + 3)
            if s == 3 and (sg < 8 or sg in bars):
                cov = sg + 1 if sg < 7 else min([k for k in bars if k > sg] + [15])
                p("@wait lg:all%s%s%s\ns_barrier" % (" vm:slab%d" % cov if sg != 15 and not (ex and sg == 7) else "", " vm:zst" if sg == 1 else "", " vm:kvat" if sg == gf else ""))
                if sg == gf: self.flag(p, sF2); self.stamp(p, "kvflag")
                if g == gx: self.stamp(p, "ksm")
        rel = {}
        for sg in range(16):
            def f(sg=sg):
                r = []
                if sg < 5: r += self.xdma(sg + 3) + kvdma(sg + 3) + self.touches("s%d" % (sg + 3))
                if sg == 0: r += [self.wphi_load()]
                if sg >= 5: r += self.w2(dspec[sg - 5])
                return r
            rel[4 * sg + 3] = f
        self.extra = {"T": t2l}
        rel[32] = lambda: self.w2(o.get("a1", "G5.G6" if ex else "G2.G3"))
        rel.setdefault(ga, lambda: [])
        self.engine(p, 64, mfmas, lambda g: [] if ex and g == 31 else rd(g + 1), pre, rel, dq, lambda g: o.get("afr", 0) if g < o.get("afrg", 31) else 0, lambda g: o.get("abud", 24))
        self.stamp(p, "gemm")
        e = P(); e.ext(gst)
        for k, (b, tb) in enumerate(items):
            e.ext(self.gelu(acc(1, b, tb), 2, sHs + b, 1024 * self.hs * tb))
            if gf == 99 and k == o.get("akf2", 1):
                e("@wait vm:kvat\ns_barrier"); self.flag(e, sF2); self.stamp(e, "kvflag")
        self.p2pre(e)
        self.seg(p, e, o.get("a2", "D7.D8.Ph"))
        self.stamp(p, "gelu")
        self.seg(p, P(), o.get("a3", ""))
        if gf == 100:
            p("@wait vm:kvat\ns_barrier"); self.flag(p, sF2); self.stamp(p, "kvflag")
        self.poll_check(p, "h")
        p("s_barrier")
        self.stamp(p, "hseen")
        self.phase2(p, B, o.get("a4", "R4.D9,,R5.D10,,R6,,R7,Pa.D11,R8.D12,R9,,R10,,R11,R12,Po.D13,D14,,,,R13,R14"), o.get("ahf", 0))
        return p
    def pathB(self):
        o = self.o; p = P(); B = self.B = True; self.side = {}
        vXa = 29; vWa = 37; vQa = 41
        self.w2_init([XS[0], B_W, XS[1], B_W + 16384, B_W + 32768] * 3, [0, 65536], {XS[0]: 27, B_W: 27, XS[1]: 31, B_W + 16384: 31, B_W + 32768: 31})
        for i in range(8): self.avail["Q%d" % i] = 0 if i < 3 else 23
        ex = o.get("bexp", 1)
        p("s_mul_i32 s%d, s%d, 7" % (sFfn, sU))
        p("s_mul_i32 s%d, s%d, %d\ns_lshl_b32 s3, s%d, 5\ns_add_u32 s%d, s%d, s3" % (sWa, sC, 32 * 2752, sFfn, sWa, sWa))
        p("s_mul_i32 s%d, s%d, 7168\ns_lshr_b32 s3, s%d, 1\ns_mul_i32 s3, s3, 14464\ns_add_u32 s%d, s%d, s3" % (sMw, sC, sWave, sMw, sMw))
        gudma = lambda sg: self.group(7, sMw, B_W + B_SW * (sg % 3), vWo, sW, sWa, 64 * 2752, "slab%d" % sg)
        qdma = lambda c: self.group(2, sMq, B_Q[c], vWo + 7, sQ, sWb, 64 * 3072, "q%d" % c)
        self.other = qdma
        g0 = gudma(0)
        for j in range(7):
            r = vWo + j
            p("v_add_u32 v6, %d, v1\nv_mul_u32_u24 v8, 4682, v6\nv_lshrrev_b32 v8, 16, v8" % (64 * j))
            p("v_mul_u32_u24 v8, %d, v8\nv_lshl_add_u32 v%d, v6, 4, v8" % (2752 - 224, r))
            if j & 3: p("v_subrev_u32 v%d, %d, v%d" % (r, 1024 * (j & 3), r))
            p.ext(g0[j])
        for c in self.touches("s0"): p.ext(c)
        self.stamp(p, "issued0")
        p("s_branch LbodyB\n@cut\nLbodyB:")
        dq = self.xdma(1) + gudma(1)
        npre = o.get("bpre", 6)
        p("s_mul_i32 s%d, s%d, %d\ns_lshl_b32 s3, s%d, 7\ns_add_u32 s%d, s%d, s3\ns_lshl_b32 s%d, s%d, 11" % (sWb, sWave, 16 * 3072, sU, sWb, sWb, sMq, sWave))
        self.common2(p, B)
        p("v_add_u32 v%d, s%d, v6" % (vXa, sMx))
        for s in range(1, 4): p("v_xor_b32 v%d, %d, v%d" % (vXa + s, s << 5, vXa))
        for s in range(4): p("v_xor_b32 v%d, 0x1000, v%d" % (vXa + 4 + s, vXa + s))
        p("s_lshl_b32 s3, s%d, 1\nv_lshl_or_b32 v9, v9, 1, v5\nv_xor_b32 v9, s3, v9\nv_lshl_add_u32 v9, v9, 5, v7\nv_lshl_add_u32 v9, v8, 7, v9" % sC)
        p("v_add_u32 v%d, %d, v9\nv_add_u32 v%d, %d, v9" % (vQa, B_Q[3], vQa + 1, B_Q[6]))
        p("v_mul_u32_u24 v9, 224, v8\nv_add_u32 v9, v9, v7\nv_mul_u32_u24 v8, 14464, v5\nv_add_u32 v9, v9, v8\ns_mul_i32 s3, s%d, 96" % sC)
        for k in range(2): p("v_add_u32 v%d, %d, v9\nv_add_u32 v%d, s3, v%d\nv_add_u32 v%d, 192, v%d" % (vWa + 2 * k + 1, B_W + 2 * k * B_SW, vWa + 2 * k, vWa + 2 * k + 1, vWa + 2 * k + 1, vWa + 2 * k + 1))
        for c in dq[:npre]: p.ext(c)
        dq = dq[npre:] + self.touches("s1") + self.xdma(2) + gudma(2) + self.touches("s2")
        p("@wait vm:slab0\ns_barrier")
        self.stamp(p, "slab0")
        fw = lambda g, b: vFr + 16 * (g & 1) + 4 * b
        fq = lambda g: vFr + 4 * (g % 4)
        acc = lambda b, tb: 144 + 32 * b + 16 * tb
        aq = lambda tb: 112 + 16 * tb
        LA = 2
        def rd(g):
            r = []
            if g >= 64: return r
            sg, s = g // 4, g % 4
            if g < 32:
                sl = sg % 3
                def w(b):
                    for half in range(2):
                        va = vWa + 2 * (sl >> 1) + (1 if b == 3 else 0); off = (sl & 1) * B_SW + s * 3584 + half * 896 + (b * 32 if b < 3 else 0)
                        r.append([Ins("ds_read_b64_tr_b16 %s, v%d offset:%d" % (vr(fw(g, b) + 2 * half, 2), va, off), "fr%d" % g)])
                def x(tb): r.append([Ins("ds_read_b128 %s, v%d offset:%d" % (self.xf(g, tb), vXa + 4 * tb + s, XS[sl]), "fr%d" % g)])
                x(0); w(0); x(1); w(1); w(2); w(3)
            else:
                c = sg - 8; k = 1 if c >= 6 else 0
                for half in range(2): r.append([Ins("ds_read_b64_tr_b16 %s, v%d offset:%d" % (vr(fq(g) + 2 * half, 2), vQa + k, B_Q[c] - B_Q[6 if k else 3] + s * 2048 + half * 512))])
            return r
        for c in rd(0): p.ext(c)
        def reads(g):
            if g < 31: return rd(g + 1)
            if g == 31: return [] if ex else sum((rd(32 + k) for k in range(LA)), [])
            return rd(g + LA)
        def mfmas(g):
            if g < 32:
                return ["%s %s, %s, %s, %s" % (MF, vr(acc(b, tb), 16), vr(fw(g, b)), self.xf(g, tb), "0" if g == 0 else vr(acc(b, tb), 16)) for b, tb in [(0, 0), (0, 1), (1, 0), (1, 1), (2, 0), (2, 1), (3, 0)]]
            return ["%s %s, %s, %s, %s" % (MF, vr(aq(tb), 16), vr(fq(g)), self.xf(g, tb), "0" if g == 32 else vr(aq(tb), 16)) for tb in range(2)]
        w1, w2_ = self.wphi_read()
        gl, gc, gst = self.gate_job(96, 100, 101, "ost")
        t2a, t2l = self.touch2()
        if o["aux"] == "A": gl, gc, gst, t2a, t2l = [], P(), P(), P(), []
        self.extra = {"T": t2l, "X": gl[1:]}
        self.addside(11, gl[:1])
        sHs = [32, 33, 34, 35, sMw, sWa, sXo]
        e = P(); e.ext(t2a); e.ext(self.w2_addr()); e.ext(w1); self.spread(e, 12, 19)
        e = P(); e.ext(w2_); self.scalars(e, B); self.spread(e, 19, 23)
        z = P(); self.poll_issue(z, "init"); self.addside(24, [z.l])
        e = P()
        e("s_lshl_b32 s3, s%d, 1\ns_lshr_b32 s%d, s%d, 1\ns_add_u32 s3, s3, s%d\ns_mul_i32 s%d, s3, %d" % (sT, sTmp, sWave, sTmp, sHo, 245760 * self.hs))
        e("s_lshl_b32 s3, s%d, %d\ns_add_u32 s%d, s%d, s3" % (sC, 9 + self.hs, sHo, sHo))
        e("s_mul_i32 s%d, s%d, 3\ns_add_u32 s%d, s%d, s%d" % (sTmp, sC, sTmp, sTmp, sFfn))
        for b in range(4):
            if b == 3: e("s_add_u32 s%d, s%d, 6" % (sTmp, sFfn))
            self.hpos(e, sHs[2 * b], sTmp)
            if b < 3: e("s_xor_b32 s%d, s%d, %d\ns_add_u32 s%d, s%d, 1" % (sHs[2 * b + 1], sHs[2 * b], 1024 * self.hs, sTmp, sTmp))
        e("s_mul_i32 s3, s%d, 60\ns_add_u32 s3, s3, s%d\ns_add_u32 s3, s3, 22\ns_lshl_b32 s3, s3, %d\ns_add_u32 s%d, s3, s%d" % (sC, sU, 10 + self.hs, sOs, sHo))
        e("s_xor_b32 s%d, s%d, %d\ns_add_u32 s%d, s%d, %d\ns_add_u32 s%d, s%d, %d" % (sOs + 1, sOs, 1024 * self.hs, sOs + 2, sOs, 61440 * self.hs, sOs + 3, sOs + 1, 61440 * self.hs))
        bD = [23, 24, 25]; bR = [16, 17, 18, 19]
        e("v_lshrrev_b32 v2, 3, v1\nv_and_b32 v3, 7, v1\nv_lshrrev_b32 v4, 4, v1\nv_xor_b32 v3, v3, v4\nv_lshlrev_b32 v3, 4, v3\nv_lshl_add_u32 v23, v2, 7, v3\nv_xor_b32 v24, 64, v23")
        e("v_lshl_or_b32 v25, v2, 24, v23")
        e("v_and_b32 v2, 31, v1\nv_min_u32 v2, 16, v2\nv_lshrrev_b32 v3, 5, v1\nv_lshlrev_b32 v3, 2, v3\nv_bfe_u32 v4, v2, 1, 3\nv_xor_b32 v3, v3, v4\nv_lshlrev_b32 v3, 4, v3\nv_lshl_add_u32 v3, v2, 7, v3")
        e("s_lshl_b32 s3, s%d, 13\ns_add_u32 s3, s3, %d\nv_add_u32 v16, s3, v3\nv_xor_b32 v17, 16, v16\nv_xor_b32 v18, 32, v16\nv_xor_b32 v19, 48, v16" % (sC, B_KZ))
        e("s_lshl_b32 s3, s%d, 2\ns_add_u32 s3, s3, s%d\ns_mul_i32 s%d, s3, %d" % (sTT, sWave, sHo, 61440 * self.hs))
        self.spread(e, 23, 31)
        e = P()
        npk = o.get("bpk", 7 if ex else 0)
        e0 = P()
        for k in range(7): (e0 if k < npk else e).ext(self.gelu(acc(k >> 1, k & 1), 2, sHs[k], 0, pk=k < npk + o.get("bhy", 7)))
        self.stamp(e0 if npk == 7 else e, "gelu")
        e1 = e
        gh = o.get("bhf", 40 if ex else 99)
        dspec = o.get("bd", "T,Q0.Q1.Q2.Q3,,D2,D3,D4,D5,D6,D7,Pkv.D8,D9" if ex else "Q0.Q1.Q2.Q3.Q4.Q5.Q6.Q7,D0.D1,D2,D3.D4,,D5,D6,D7,D8,D9,D10").split(",")
        rspec = o.get("br", ",,R0,R1,R2,R3,R4,R5").split(",")
        def pre(g, p):
            sg, s = g // 4, g % 4
            if g == 32:
                self.stamp(p, "job1"); self.seg(p, e0, o.get("b0", "Q4.Q5.Q6.Q7.X.D0.D1" if ex else ""))
                if ex:
                    p("@wait vm:q7\ns_barrier")
                    for k in range(LA):
                        for c in rd(32 + k): p.ext(c)
                self.fq += self.zones(e1.l)
            if g >= 32 and s == 0: self.spread(self.w2(rspec[sg - 8]), g, g + 4)
            if g < 32:
                if s == 3:
                    if sg == 7: self.poll_check(p, "init")
                    p("@wait lg:all%s\ns_barrier" % (" vm:slab%d" % (sg + 1) if sg < 7 else ("" if ex else " vm:q7")))
                else: p("@wait lg:fr%d" % g)
            if g == o.get("bgc", 42): self.fq += self.zones(gc.l)
            if g == gh:
                self.flush(p)
                p("@wait vm:hst\ns_barrier"); self.flag(p, sF1); self.stamp(p, "hflag")
        rel = {}
        for sg in range(8):
            def f(sg=sg):
                r = []
                if sg < 5: r += self.xdma(sg + 3) + gudma(sg + 3) + self.touches("s%d" % (sg + 3))
                if sg == 0: r += [self.wphi_load()]
                if sg >= 5: r += self.w2(dspec[sg - 5])
                return r
            rel[4 * sg + 3] = f
        for k in range(8): rel[32 + 4 * k] = (lambda k=k: self.w2(dspec[3 + k]))
        self.engine(p, 64, mfmas, reads, pre, rel, dq, lambda g: o.get("bfr", 0) if g < o.get("bfrg", 31) else 0, lambda g: o.get("bbud", 24))
        self.stamp(p, "gemm")
        items = [(b, tb) for b in range(2) for tb in range(2)]
        vKf = 96; vKz = 208; vPh = 224
        pa = lambda k: 144 + 16 * k
        e = P(); self.p2pre(e)
        for k in (0, 2, 1, 3):
            b, tb = items[k]; a = aq(tb) + 8 * b
            for i in range(4): e("v_cvt_pk_bf16_f32 v%d, v%d, v%d" % (vKf + 4 * k + i, a + 2 * i, a + 2 * i + 1))
            e("%s %s, %s, %s, 0" % (MF, vr(pa(k), 16), vr(vWp + 4 * b), vr(vKf + 4 * k)))
        h0 = o.get("bh0", 0)
        sm = [self.softmax(pa(k), 2, vPh + 8 * k).l for k in range(4)]
        for k in range(h0): e.ext(sm[k])
        self.seg(p, e, o.get("b2", ""))
        self.poll_check(p, "kv")
        p("%ss_add_u32 m0, s%d, %d\ns_barrier" % ("@wait vm:hst\n" if gh == 99 else "", sMx, B_KZ))
        if gh == 99: self.flag(p, sF1); self.stamp(p, "hflag")
        self.stamp(p, "kvseen")
        for j in range(3): p("buffer_load_dwordx4 v%d, %s, s%d offen offset:%d sc1 lds" % (bD[j], sr(sH), sKv, 1024 * j), tag="kvz")
        e = P()
        for k in range(h0, 2): e.ext(sm[k])
        self.seg(p, e, o.get("b3", "Ph.D10.R6"))
        self.poll_check(p, "h")
        p("@wait vm:kvz\ns_barrier"); self.stamp(p, "hseen")
        kz = 112; PF = o["pf"]
        def omm(e, k):
            b = k >> 1
            e("%s %s, %s, %s, 0" % (MF, vr(pa(k), 16), vr(vKz + 8 * b), vr(vPh + 8 * k)))
            e("%s %s, %s, %s, %s" % (MF, vr(pa(k), 16), vr(vKz + 8 * b + 4), vr(vPh + 8 * k + 4), vr(pa(k), 16)))
        def ofin(e, k):
            a = pa(k)
            e("v_add_f32 v%d, 0x%x, v%d\nv_rcp_f32 v%d, v%d" % (a + 8, f2u(1e-6), a + 8, a + 8, a + 8))
            for i in range(4): e("v_pk_mul_f32 %s, %s, %s op_sel_hi:[1,0]" % (vr(a + 2 * i, 2), vr(a + 2 * i, 2), vr(a + 8, 2)))
            for i in range(4): e("v_cvt_pk_bf16_f32 v%d, v%d, v%d" % (a + 12 + i, a + 2 * i, a + 2 * i + 1))
        def ost(e, k): e("buffer_store_dwordx4 %s, v%d, %s, s%d offen sc1" % (vr(pa(k) + 12), vL16, sr(sH), sOs + k), tag="ost")
        e = P()
        for b in range(2):
            for q4 in range(4): e("ds_read_b128 %s, v%d offset:%d" % (vr(kz + 16 * b + 4 * q4), bR[q4], 4096 * b))
        e.ext(sm[2][:17])
        for b in range(2):
            for i in range(8): e("v_cvt_pk_bf16_f32 v%d, v%d, v%d" % (vKz + 8 * b + i, kz + 16 * b + 2 * i, kz + 16 * b + 2 * i + 1))
        z = P(); omm(z, 0); omm(z, 1)
        e.ext(merge(sm[2][17:33], [[i] for i in z.l], 3)); e.ext(sm[2][33:])
        e.ext(sm[3][:17])
        z = P(); omm(z, 2)
        e.ext(merge(sm[3][17:33], [[i] for i in z.l], 3)); e.ext(sm[3][33:])
        omm(e, 3)
        self.seg(p, e, o.get("b4", "H0.H1.H2.H3.H4"))
        self.stamp(p, "qsm")
        e = P()
        for k in range(4):
            ofin(e, k)
            if o.get('x_nogate', 0) < 3: ost(e, k)
        if o.get('x_nogate', 0) < 3: e.ext(gst)
        self.seg(p, e, o.get("b5", ""))
        self.phase2(p, B, o.get("b6", ",R7,,R8,,R9,,Pa.D11,D12,R10,,,,R11,R12,Po.D13,D14,,,,R13,R14"), o.get("bof", 4))
        return p
    vDm, vGo, vG, vG1 = 29, 30, 4, 32
    hf = staticmethod(lambda st, tb: 56 + 8 * (st % 9) + 4 * tb)
    def p2pre(self, e):
        e("s_lshr_b32 s3, s%d, 1\ns_lshl_b32 s3, s3, 30\nv_add_u32 v%d, s3, v%d\nv_and_b32 v%d, 31, v1\nv_lshlrev_b32 v%d, 2, v%d" % (sWave, self.vDm, vL16, self.vGo, self.vGo, self.vGo))
        if self.hs == 2: e("v_add_u32 v31, 4096, v%d" % vL16)
    def hload(self, st):
        q = P()
        if self.hs == 2:
            for tb in range(2):
                q("buffer_load_dwordx4 %s, v%d, %s, s%d offen offset:%d sc1" % (vr(self.hf(st, tb)), self.vDm if st == 13 else vL16, sr(sH), sHo, tb * 2048))
            q("s_add_u32 s%d, s%d, 4096" % (sHo, sHo))
            return q
        for tb in range(2):
            q("buffer_load_dwordx4 %s, v%d, %s, s%d offen offset:%d sc1" % (vr(self.hf(st, tb)), self.vDm if st == 13 else vL16, sr(sH), sHo, (st & 1) * 2048 + tb * 1024))
        if st & 1: q("s_add_u32 s%d, s%d, 4096" % (sHo, sHo))
        return q
    def phase2(self, p, B, spec, fat):
        o = self.o; PF = o["pf"]; hf = self.hf; vG, vG1, vGo = self.vG, self.vG1, self.vGo
        auto = "Pa" not in spec; spec = spec.split(","); wp = o.get("wpoll", 0)
        if wp: p("v_lshrrev_b32 v2, 3, v1\nv_lshlrev_b32 v3, 7, v1\nv_lshl_or_b32 v%d, v2, 24, v3\ns_movk_i32 s%d, 0xff" % (vPoll8, sE8))
        assert self.nh <= PF
        for st in range(self.nh, PF): p.ext(self.hload(st))
        a2 = lambda part, cb, tb: 128 + 64 * part + 32 * cb + 16 * tb
        wa = [16, 17, 18, 19]; ra = [20, 21]; oa = 22
        ad = P()
        ad("v_and_b32 v2, 15, v1\nv_lshrrev_b32 v3, 5, v1\nv_and_b32 v8, 7, v1\nv_xor_b32 v3, v3, v8\nv_lshlrev_b32 v3, 4, v3\nv_lshl_add_u32 v3, v2, 8, v3\nv_bfe_u32 v2, v1, 4, 1\nv_lshl_add_u32 v3, v2, 14, v3")
        ad("v_add_u32 v16, s%d, v3\nv_xor_b32 v17, 32, v16\nv_xor_b32 v18, 64, v16\nv_xor_b32 v19, 0x60, v16" % sMx)
        ad("v_lshrrev_b32 v2, 3, v0\nv_and_b32 v3, 7, v2\nv_lshlrev_b32 v9, 1, v8\nv_xor_b32 v3, v3, v9\nv_lshlrev_b32 v3, 4, v3\nv_and_b32 v9, 15, v2\nv_lshl_add_u32 v3, v9, 8, v3\nv_lshrrev_b32 v9, 7, v0\nv_lshl_add_u32 v20, v9, 14, v3\nv_xor_b32 v21, 16, v20")
        ad("v_lshlrev_b32 v8, 4, v8\nv_lshl_add_u32 v22, v2, 10, v8")
        oreg = lambda j, tb: hf(22 + (tb * 8 + j) // 2, (tb * 8 + j) & 1)
        def oload(n):
            q = P()
            for k in (2 * n, 2 * n + 1):
                tb, j = k // 8, k % 8
                if self.hs == 2: q("buffer_load_dwordx4 %s, v%d, %s, s%d offen offset:%d sc1" % (vr(oreg(j, tb)), 31 if j & 1 else vL16, sr(sH), sHo, tb * 2048))
                else: q("buffer_load_dwordx4 %s, v%d, %s, s%d offen offset:%d sc1" % (vr(oreg(j, tb)), vL16, sr(sH), sHo, (j & 1) * 2048 + tb * 1024))
            if n == 3: q("s_sub_u32 s%d, s%d, %d" % (sHo, sHo, 3 * 4096 * self.hs))
            elif n < 7: q("s_add_u32 s%d, s%d, %d" % (sHo, sHo, 4096 * self.hs))
            return q
        def scale(tb):
            q = P()
            q("v_sub_f32 v%d, 1.0, v%d" % (vG1 + 2 * tb, vG + 2 * tb))
            for cb in range(2):
                for i in range(16): q("v_mul_f32 v%d, v%d, v%d" % (a2(0, cb, tb) + i, a2(0, cb, tb) + i, vG1 + 2 * tb))
            return q
        def comb(tb):
            q = P()
            for cb in range(2):
                a = a2(0, cb, tb); b_ = a2(1, cb, tb)
                for j in range(4):
                    if tb == 0:
                        for i in range(4 * j, 4 * j + 4): q("v_fmac_f32 v%d, v%d, v%d" % (a + i, b_ + i, vG))
                    else:
                      for i in (2 * j, 2 * j + 1): q("v_pk_fma_f32 %s, %s, %s, %s op_sel_hi:[1,0,1]" % (vr(a + 2 * i, 2), vr(b_ + 2 * i, 2), vr(vG + 2 * tb, 2), vr(a + 2 * i, 2)))
                    q("ds_write_b128 v%d, %s offset:%d" % (wa[j], vr(a + 4 * j), tb * 32768 + cb * 128))
            return q
        def trd(hh):
            q = P()
            for w in range(4):
                for i in range(2): q("ds_read_b128 %s, v%d offset:%d" % (vr(tr0(hh) + 8 * w + 4 * i), ra[i], w * 4096 + hh * 32768))
            return q
        def fin(hh):
            q = P(); b0 = tr0(hh)
            for i in range(4): q("v_pk_add_f32 %s, %s, %s" % (vr(b0 + 2 * i, 2), vr(b0 + 2 * i, 2), vr(b0 + 8 + 2 * i, 2)))
            for i in range(4): q("v_pk_add_f32 %s, %s, %s" % (vr(b0 + 16 + 2 * i, 2), vr(b0 + 16 + 2 * i, 2), vr(b0 + 24 + 2 * i, 2)))
            for i in range(4): q("v_pk_add_f32 %s, %s, %s" % (vr(b0 + 2 * i, 2), vr(b0 + 2 * i, 2), vr(b0 + 16 + 2 * i, 2)))
            for i in range(4): q("v_cvt_pk_bf16_f32 v%d, v%d, v%d" % (b0 + 8 + i, b0 + 2 * i, b0 + 2 * i + 1))
            q("buffer_store_dwordx4 %s, v%d, %s, s%d offen %s" % (vr(b0 + 8), oa, sr(sOut), sOb if hh else sOa, o["outfl"].replace("_", " ")))
            return q
        tr0 = lambda hh: 88 if hh == 0 else 56
        fill = []
        for st in range(30):
            nx = st + PF
            if o.get("tsplit", 0) and st == 29:
                p.ext(fill); p("@wait lg:all\ns_barrier"); fill = trd(0).l
            if st == fat and o.get("x_nogate", 0) < 2:
                p("@wait vm:%s\ns_barrier" % ("ost" if B else "hst")); self.flag(p, sF2 if B else sF1); self.stamp(p, "oflag" if B else "hflag")
            assert "R%d" % (st // 2 if st < 22 else min(14, st - 11)) in self.used
            ng = o.get("x_nogate", 0)
            if auto and nx == 14 - o.get("opoll", 2) and not ng: self.poll_issue(p, "a")
            if nx == 14:
                if not ng: self.poll_check(p, "a"); p("" if wp else "s_barrier")
                self.stamp(p, "aseen")
            if auto and nx == 22 - o.get("opoll", 2) and not ng: self.poll_issue(p, "o")
            if nx == 22:
                if not ng: self.poll_check(p, "o"); p("" if wp else "s_barrier")
                self.stamp(p, "oseen")
                p("buffer_load_dword v%d, v%d, %s, s%d offen sc1\nbuffer_load_dword v%d, v%d, %s, s%d offen offset:128 sc1" % (vG, vGo, sr(sH), sGo, vG + 2, vGo, sr(sH), sGo))
            ld = self.hload(nx).l if nx < 22 else (oload(nx - 22).l if nx < 30 else [])
            wq = self.w2(spec[st]) if st < len(spec) else []
            if st == 18: fill = ad.l
            if st == 22: fill = [Ins("s_nop 0")] * 0 + scale(0).l + scale(1).l
            if st == 26: fill += comb(0).l
            for g_ in range(4):
                if st < 22:
                    cb, tb = g_ >> 1, g_ & 1; a = a2(0, cb, tb)
                    p("%s %s, %s, %s, %s" % (MF, vr(a, 16), ar(8 * st + 4 * cb), vr(hf(st, tb)), "0" if st == 0 else vr(a, 16)))
                else:
                    k = 2 * (st - 22) + (g_ >> 1); tb, j = k // 8, k % 8; cb = g_ & 1; a = a2(1, cb, tb)
                    p("%s %s, %s, %s, %s" % (MF, vr(a, 16), ar(8 * (22 + j) + 4 * cb), vr(oreg(j, tb)), "0" if j == 0 else vr(a, 16)))
                if ld: p.ext([ld.pop(0)])
                for _ in range(-(-len(wq) // (4 - g_))): p.ext(wq.pop(0))
                p.ext(fill[:4]); fill = fill[4:]
            assert not ld
        p.ext(fill)
        self.stamp(p, "p2mfma")
        assert len(self.used) == 38, sorted(set("%s%d" % (k, i) for k in "RD" for i in range(15)) - set(self.used))
        if o.get("tsplit", 0):
            f = fin(0).l
            p.ext(comb(1)); p.ext(f[:8])
            p("@wait lg:all\ns_barrier"); p.ext(trd(1)); p.ext(f[8:]); p.ext(fin(1))
        else:
            p.ext(comb(1))
            p("@wait lg:all\ns_barrier")
            p.ext(trd(0)); p.ext(trd(1)); p.ext(fin(0)); p.ext(fin(1))
        nm = "B" if B else "A"
        if o["stamps"]:
            p("@wait vm:all"); self.stamp(p, "end")
            p("s_waitcnt lgkmcnt(0)", raw=True)
            p("s_lshl_b32 s3, s2, 2\ns_add_u32 s3, s3, s%d\ns_lshl_b32 s3, s3, 6\ns_add_u32 s3, s3, 0x%x" % (sWave, WS_ST))
            p("v_mov_b32 v16, s94")
            for k in range(self.nst): p("v_mov_b32 v%d, s%d" % (17 + k, sStamp + 2 * k))
            if o.get("spins"):
                assert self.nst <= 11
                p("v_mov_b32 v31, s26")
            p("v_lshlrev_b32 v2, 24, v1")
            for k in range(4): p("buffer_store_dwordx4 %s, v2, %s, s3 offen offset:%d" % (vr(16 + 4 * k), sr(sH), 16 * k))
        if o.get("calib"):
            p("Lcal%s:\ns_memrealtime s[96:97]\ns_waitcnt lgkmcnt(0)\ns_sub_u32 s3, s96, s94\ns_cmp_lt_u32 s3, %d\ns_cbranch_scc1 Lcal%s" % (nm, o["calib"], nm), raw=True)
        p("s_endpgm")
    def build(self):
        st = State(); stats = {}
        out = process(self.prologue().l, st, stats)
        stB = st.copy(); n0 = self.ntouch; s0 = set(self.started)
        def flt(l):
            dr = [d for d in self.o.get("x_drop", "").split(".") if d]
            if not dr: return l
            r = []
            for i in l:
                if i.op == "@wait": i = Ins(" ".join(t + ("?" if ":" in t and not t.endswith(("?", "all")) else "") for t in i.text.split()))
                t = i.text
                kill = (("w2d" in dr and (i.tag or "").startswith("w2d")) or ("w2r" in dr and (i.tag or "").startswith("w2r"))
                    or ("hld" in dr and i.op == "buffer_load_dwordx4" and "sc1" in t and " lds" not in t)
                    or ("at" in dr and i.op == "buffer_atomic_add_f32") or ("st" in dr and i.op == "buffer_store_dwordx4" and i.tag in ("hst", "ost"))
                    or ("trans" in dr and i.op in ("v_exp_f32", "v_rcp_f32")) or ("pk" in dr and i.op.startswith("v_pk"))
                    or ("m2" in dr and i.cls == "mfma" and i.ops[1].startswith("a[")) or ("m1" in dr and i.cls == "mfma" and i.ops[2].startswith("a["))
                    or ("dw" in dr and i.op == "ds_write_b128") or ("p1d" in dr and (i.tag or "").startswith(("slab", "q")))
                    or ("out" in dr and i.op == "buffer_store_dwordx4" and not i.tag and "s[56:59]" in t))
                if not kill: r.append(i)
            return r
        oa = process(flt(self.pathA().l), st, stats); self.namesA = list(self.stnames)
        self.started = s0; self.ntouch = n0; self.nst = 0; self.stnames = []
        ob = process(flt(self.pathB().l), stB, stats); self.namesB = list(self.stnames)
        k = ob.index("@cut")
        out += ob[:k] + oa + ob[k + 1:]
        out.append("Lend:\ns_endpgm")
        self.stats = stats
        hdr = "; @launch grid=(256,1,1) block=(256,1,1) lds=163840\n"
        hdr += '.amdgcn_target "amdgcn-amd-amdhsa--gfx950"\n.text\n.globl %s\n.p2align 8\n.type %s,@function\n%s:\n' % (KNAME, KNAME, KNAME)
        tail = """
.section .rodata,"a"
.p2align 6
.amdhsa_kernel %s
  .amdhsa_next_free_vgpr 512
  .amdhsa_next_free_sgpr 102
  .amdhsa_accum_offset 256
  .amdhsa_group_segment_fixed_size 0
  .amdhsa_kernarg_size 96
  .amdhsa_user_sgpr_count 2
  .amdhsa_user_sgpr_kernarg_segment_ptr 1
  .amdhsa_system_sgpr_workgroup_id_x 1
  .amdhsa_float_denorm_mode_32 3
.end_amdhsa_kernel
""" % KNAME
        return hdr + "\n".join(out) + tail
if __name__ == "__main__":
    opts = {}
    for a in sys.argv[2:]:
        k, v = a.split("="); opts[k] = int(v) if v.lstrip("-").isdigit() else v
    g = Gen(**opts)
    open(sys.argv[1], "w").write(g.build())
    print("nops", g.stats)
```

```python
import re, copy
REG = re.compile(r'\b([vas])(\d+)\b|\b([vas])\[(\d+):(\d+)\]|\b(vcc|exec|m0)\b')
TRANS = ("v_exp_f32", "v_log_f32", "v_rcp_f32", "v_rsq_f32", "v_sqrt_f32", "v_sin_f32", "v_cos_f32")
def regs(tok):
    out = []
    for m in REG.finditer(tok):
        if m.group(1): out.append(m.group(1) + m.group(2))
        elif m.group(3): out += [m.group(3) + str(i) for i in range(int(m.group(4)), int(m.group(5)) + 1)]
        else: out.append(m.group(6))
    return out
def split_ops(s):
    out, depth, cur = [], 0, ""
    for ch in s:
        if ch == "[": depth += 1
        if ch == "]": depth -= 1
        if ch == "," and depth == 0: out.append(cur.strip()); cur = ""
        else: cur += ch
    if cur.strip(): out.append(cur.strip())
    return out
class Ins:
    def __init__(self, text, tag=None, raw=False):
        self.text = text; self.tag = tag; self.raw = raw
        t = text.split(";")[0].strip()
        self.op = t.split()[0] if t else ""
        rest = t[len(self.op):].strip()
        self.ops = split_ops(rest)
        op = self.op
        self.cls = "other"; self.w = []; self.r = []; self.srcc = []; self.ab = []; self.data = []
        R = [regs(o) for o in self.ops]
        flat = lambda l: [x for y in l for x in y]
        if op.endswith(":") or op.startswith(".") or op == "" or op.startswith("@"): self.cls = "meta"
        elif op.startswith("v_mfma"):
            self.cls = "mfma"; self.w = R[0]; self.ab = R[1] + R[2]; self.srcc = R[3]; self.r = self.ab + self.srcc
            self.passes = 8 if "32x32" in op else 4
        elif op.startswith("v_"):
            self.cls = "valu"; self.w = list(R[0]); self.r = flat(R[1:])
            if op.startswith("v_permlane") and "swap" in op: self.w = R[0] + R[1]; self.r = R[0] + R[1]
            if op.startswith(("v_fmac", "v_dot2c", "v_writelane")) or "dpp" in op: self.r += R[0]
            if "_co_" in op: self.w = R[0] + R[1]; self.r = flat(R[2:])
        elif op.startswith("ds_"):
            self.cls = "ds"
            if op.startswith(("ds_read", "ds_bpermute", "ds_swizzle")): self.w = R[0]; self.r = flat(R[1:])
            else: self.r = flat(R)
        elif op.startswith(("buffer_", "global_")):
            self.cls = "vmem"
            lds = re.search(r'\blds\b', t) or "load_lds" in op
            if "load" in op and not lds: self.w = R[0]; self.r = flat(R[1:])
            elif "atomic" in op and re.search(r'\bsc0\b', t): self.w = R[0]; self.r = flat(R)
            else:
                self.r = flat(R)
                if lds: self.r.append("m0"); self.lds = True
                if "store" in op and ("x4" in op or "x3" in op): self.data = R[0] if op.startswith("buffer") else R[1]
        elif op.startswith(("s_load", "s_buffer_load", "s_memtime", "s_memrealtime")):
            self.cls = "smem"; self.w = R[0]; self.r = flat(R[1:])
        elif op.startswith("s_"):
            self.cls = "salu"
            if op.startswith(("s_cmp", "s_bitcmp", "s_cbranch", "s_branch", "s_waitcnt", "s_barrier", "s_nop", "s_sleep", "s_setprio", "s_endpgm")): self.r = flat(R)
            else:
                self.w = list(R[0]) if R else []; self.r = flat(R[1:])
                if "saveexec" in op: self.w.append("exec")
        self.ws = set(self.w); self.rs = set(self.r)
    def states(self):
        if self.cls == "meta": return 0
        if self.op == "s_nop": return int(self.ops[0]) + 1
        return 1
def need(p, c):
    n = 0
    isv = lambda s: {x for x in s if x[0] in "va" and x != "vcc"}
    iss = lambda s: {x for x in s if x[0] == "s" or x == "vcc"}
    if p.cls == "valu":
        raw = p.ws & c.rs
        if isv(raw):
            if c.cls == "mfma": n = max(n, 2)
            if c.op.startswith(("v_readfirstlane", "v_readlane")): n = max(n, 1)
            if c.op.startswith("v_permlane") or "dpp" in c.op: n = max(n, 2)
            if p.op.replace("_e32", "").replace("_e64", "") in TRANS: n = max(n, 1)
        if p.op.startswith("v_dot") and c.op != p.op and isv(p.ws & (c.rs | c.ws)): n = max(n, 3)
        if iss(raw):
            if c.cls == "valu": n = max(n, 4 if c.op.startswith(("v_readlane", "v_writelane")) else 2)
            if c.cls == "vmem": n = max(n, 5)
            if c.cls in ("salu", "smem"): n = max(n, 2)
    if p.cls == "mfma":
        big = 12 if p.passes == 8 else 8
        if c.cls == "mfma":
            if p.ws & set(c.ab): n = max(n, big)
            ov = p.ws & set(c.srcc)
            if ov and not (c.srcc == p.w and c.passes == p.passes): n = max(n, big - 2)
            if (p.ws & c.ws) and not ov and not (c.w == p.w and c.passes == p.passes): n = max(n, big)
        elif c.cls in ("valu", "vmem", "ds"):
            if p.ws & (c.rs | c.ws): n = max(n, big)
            if c.cls == "valu" and set(p.srcc) & c.ws: n = max(n, 7 if p.passes == 8 else 3)
    if p.cls == "salu" and "m0" in p.ws and "m0" in c.rs and c.cls == "vmem": n = max(n, 1)
    if p.cls == "vmem" and p.data and set(p.data) & c.ws: n = max(n, 2)
    return n
DUMMY = "v12, v14"
class State:
    def __init__(self):
        self.vm = []; self.lg = []; self.hist = []; self.smem = []; self.seen = set(); self.waited = set(); self.asy = 0; self.asyn = 0
    def copy(self):
        s = State(); s.vm = list(self.vm); s.lg = list(self.lg); s.hist = list(self.hist); s.smem = list(self.smem); s.seen = set(self.seen); s.waited = set(self.waited); s.asy = self.asy; s.asyn = self.asyn; return s
def process(ins, st, stats=None):
    out = []
    def emit(i):
        if i.cls != "meta":
            d = 0; req = 0
            for p in reversed(st.hist):
                req = max(req, need(p, i) - d)
                d += p.states()
                if d >= 20: break
            if req > 0:
                nop = Ins("s_nop %d" % (req - 1)); out.append(nop.text); st.hist.append(nop)
                if stats is not None: stats["nop"] = stats.get("nop", 0) + req
            st.hist.append(i); st.hist = st.hist[-24:]
        out.append(i.text)
    def wait(vm=None, lg=None):
        parts = []
        if vm is not None:
            vm = min(vm, 62)
            if len(st.vm) > vm: parts.append("vmcnt(%d)" % vm); st.vm = st.vm[len(st.vm) - vm:] if vm else []
        if lg is not None:
            if st.smem: lg = 0
            lg = min(lg, 14)
            if st.asy and not st.smem and len(st.lg) > lg:
                while lg < st.asy:
                    d = Ins("ds_read_b32 %s" % DUMMY); emit(d); d.ws = set(); st.lg.append(d); lg += 1
            if len(st.lg) > lg or st.smem: parts.append("lgkmcnt(%d)" % lg); st.lg = st.lg[len(st.lg) - lg:] if lg else []; st.smem = []
        if parts: emit(Ins("s_waitcnt " + " ".join(parts)))
    def younger(q, pred):
        for k in range(len(q) - 1, -1, -1):
            if pred(q[k]): return len(q) - 1 - k
        return None
    for i in ins:
        if i.raw:
            out.append(i.text); continue
        if i.op == "@async": st.asy += 1; st.asyn = 0; continue
        if i.op == "@sync": st.asy = 0; st.lg = []; continue
        if st.asy:
            st.asyn += 32 if i.cls == "mfma" else 0
            if st.asyn > 1500: st.asy = 0
        if i.op == "@wait":
            vm = lg = None
            for o in i.text.split()[1:]:
                k, tag = o.split(":")
                if tag.endswith("?"): tag = tag[:-1]
                elif tag != "all" and tag not in st.seen: raise Exception("wait on unseen tag " + tag)
                st.waited.add(tag)
                if k == "vm":
                    y = 0 if tag == "all" else younger(st.vm, lambda x: x.tag == tag)
                    if y is not None: vm = y if vm is None else min(vm, y)
                else:
                    y = 0 if tag == "all" else younger(st.lg, lambda x: x.tag == tag)
                    if y is not None: lg = y if lg is None else min(lg, y)
            wait(vm, lg); continue
        if i.op == "s_waitcnt": raise Exception("use @wait")
        touch = i.rs | i.ws
        vm = younger(st.vm, lambda x: x.ws & touch)
        lg = younger(st.lg, lambda x: x.ws & touch)
        if any(x.ws & touch for x in st.smem): lg = 0
        wait(vm, lg)
        emit(i)
        if i.tag:
            if i.tag in st.waited and i.cls in ("vmem", "ds"): raise Exception("op issued after its tag was waited for: " + i.tag)
            st.seen.add(i.tag)
        if i.cls == "vmem": st.vm.append(i)
        elif i.cls == "ds": st.lg.append(i)
        elif i.cls == "smem": st.smem.append(i)
    return out
```

```python
import sys, math, struct
from asmpass import Ins, State, process
KNAME = "gated_mix__linear_kernel_hedgehog__glu_gated_geglu__prompt_kernel"
def f2u(x): return struct.unpack("<I", struct.pack("<f", x))[0]
L2E = math.log2(math.e)
K1 = -2.0 * math.sqrt(2.0 / math.pi) * L2E
K2 = K1 * 0.044715
XS = [0, 16384, 32768]
A_KV = 49152; A_J2 = 98304; A_PHI = 49152; A_V = 81920
B_W = 49152; B_SW = 28928; B_Q = [135936, 144128, 152320, 107008, 115200, 123392, 32768, 40960]; B_KZ = 107008
MISC = 160512
WS_FL = 0xFC0000; FKV, FHD, FOD = 0, 128, 384
WS_G = 0xF80000; WS_KV = 0xF90000; WS_ST = 0xFE0000; WS_SIZE = 0x1000000
OOB = 0x40000000
sX, sW, sQ, sD, sO, sH, sG, sOut, sM, sM2 = 28, 32, 36, 40, 44, 48, 52, 56, 60, 64
(sWave, sT, sU, sFfn, sTT, sCT, sXo, sWa, sWb, sC, sMx, sMw, sMq, sW2o, sKv, sTmp, sTmp2, sExp, sHo, sE8) = range(68, 88)
sL2E = 88; sK2 = 90; sPC = 92; sTc = 96
sHs = 28
sOs = 96
sF1, sF2, sPk, sPh, sPo, sGo, sOa, sOb = range(60, 68)
sStamp = 4
def sr(b, n=4): return "s[%d:%d]" % (b, b + n - 1)
def vr(b, n=4): return "v[%d:%d]" % (b, b + n - 1)
def ar(b, n=4): return "a[%d:%d]" % (b, b + n - 1)
vFlag, vPoll, vOne, vPr, vL16, vPoll8 = 10, 11, 12, 13, 14, 15
vXo = 16; vWo = 20
v2o = 44; v2a = 48
vK1 = 54
vSign, vTa, vDum = 56, 57, 58
vWp = 60; vGt = 68; vFr = 80
MF = "v_mfma_f32_32x32x16_bf16"
class P:
    def __init__(self, l=None): self.l = list(l) if l else []
    def __call__(self, s, tag=None, raw=False):
        for x in s.split("\n"):
            if x.strip(): self.l.append(Ins(x, tag, raw))
    def ext(self, o): self.l += o.l if isinstance(o, P) else o
def merge(main, side, every):
    out = []; k = 0
    for i, x in enumerate(main):
        out.append(x)
        if i % every == every - 1 and k < len(side): out += side[k]; k += 1
    for c in side[k:]: out += c
    return out

class Gen:
    def __init__(self, **o):
        self.o = dict(stamps=False, p2map="chk84", pf=5, touch="L@pre,H@s1,U@s4", codepf=True, outfl="sc1", aux="B", gate="L")
        self.o.update(o); self.hs = 2 if self.o.get("heven", 1) else 1; self.sc = self.o.get("sc", 1); self.B = None; self.started = set(); self.ntouch = 0; self.nst = 0; self.nlab = 0; self.stnames = []
    def stamp(self, p, name):
        if self.o.get("calat") == name: p("s_memrealtime s[94:95]", raw=True)
        if self.o["stamps"] and name not in self.o.get("nostamp", "").split(".") and self.o.get("only", name) == name:
            p("%s s[%d:%d]" % ("s_memtime" if self.o.get("cyc") else "s_memrealtime", sStamp + 2 * self.nst, sStamp + 2 * self.nst + 1), raw=True)
            self.nst += 1; self.stnames.append(name); assert self.nst <= 12, self.stnames
    def srd(self, p, d, ptr, size):
        p("s_mov_b32 s%d, s%d\ns_mov_b32 s%d, s%d\ns_mov_b32 s%d, 0x%x\ns_mov_b32 s%d, 0x20000" % (d, ptr, d + 1, ptr + 1, d + 2, size, d + 3))
    def touch(self, g):
        p = P(); d = [75, 76, 77, 70, 71][self.ntouch]; self.ntouch += 2 if g in "wc" else 1
        if g == "c":
            p("s_lshr_b32 s%d, s2, 3\ns_mul_i32 s3, s%d, %d\nv_lshlrev_b32 v2, 10, v0\nv_subrev_u32 v2, %d, v2\nv_mov_b32 v3, 0x%x\nv_cmp_gt_u32 vcc, %d, v2\nv_cndmask_b32 v4, v3, v2, vcc" % (sTmp, sTmp, 43 * 1024, 128 * 1024, OOB, 43 * 1024))
            p("buffer_load_dword v%d, v4, %s, s3 offen offset:384" % (d, sr(sD)))
            p("s_lshl_b32 s3, s%d, 14\nv_subrev_u32 v2, 65536, v2\nv_cmp_gt_u32 vcc, 16384, v2\nv_cndmask_b32 v4, v3, v2, vcc" % sTmp)
            p("buffer_load_dword v%d, v4, %s, s3 offen offset:384" % (d + 1, sr(sO)))
        elif g == "w":
            p("s_mul_i32 s3, s2, %d\nv_lshlrev_b32 v2, 7, v0\nv_mov_b32 v3, 0x%x\nv_cmp_gt_u32 vcc, 43, v0\nv_cndmask_b32 v4, v3, v2, vcc" % (43 * 128, OOB))
            p("buffer_load_dword v%d, v4, %s, s3 offen" % (d, sr(sD)))
            p("s_lshl_b32 s3, s2, 11\nv_subrev_u32 v2, 8192, v2\nv_cmp_gt_u32 vcc, 2048, v2\nv_cndmask_b32 v4, v3, v2, vcc")
            p("buffer_load_dword v%d, v4, %s, s3 offen" % (d + 1, sr(sO)))
        elif g[0] in "LHUM":
            so = "s%d" % sPC if g[0] == "H" else "0"
            if self.B is None:
                p("s_bitcmp%d_b32 s2, 3\ns_cselect_b32 s%d, %s, 0x20000000" % (1 if g[1] == "B" else 0, sPC + 1, so)); so = "s%d" % (sPC + 1)
            if len(g) == 3:
                p("s_cmp_%s_u32 s%d, 2\ns_cselect_b32 s%d, %s, 0x20000000" % ("lt" if g[2] == "a" else "ge", sWave, sPC + 1, so)); so = "s%d" % (sPC + 1)
            if g[0] == "L": p("s_mov_b32 exec_lo, 0xffff0000")
            p("buffer_load_dword v%d, v%d, %s, %s offen" % (d, vSign if g[0] == "U" else vTa, sr(sTc), so))
            if g[0] == "L": p("s_mov_b32 exec_lo, -1")
        else:
            m = sum(1 << k for k in range(int(g[0]), int(g[1]) + 1)) * 0x01010101
            p("s_mov_b32 exec_lo, 0x%x\ns_mov_b32 exec_hi, 0x%x" % (m, m))
            so = "0"
            if len(g) == 3:
                p("s_cmp_%s_u32 s%d, 2\ns_cselect_b32 s%d, 0, 0x20000000" % ("lt" if g[2] == "a" else "ge", sWave, sPC)); so = "s%d" % sPC
            p("buffer_load_dword v%d, v%d, %s, %s offen" % (d, vTa, sr(sTc), so))
            p("s_mov_b64 exec, -1")
        return p.l
    def touch2(self):
        a = P(); t = vGt + 4
        a("s_lshr_b32 s%d, s2, 4\ns_lshl_b32 s3, s%d, 3\ns_and_b32 s%d, s2, 7\ns_add_u32 s3, s3, s%d" % (sTmp, sTmp, sTmp2, sTmp2))
        a("v_mov_b32 v2, s3\nv_mov_b32 v3, s%d\nv_cmp_gt_u32 vcc, 128, v0\nv_cndmask_b32 v2, v3, v2, vcc\nv_cndmask_b32 v3, 10, 7, vcc" % sTmp)
        a("v_and_b32 v4, 127, v0\nv_lshrrev_b32 v5, 7, v0\nv_mul_u32_u24 v5, 384, v5\nv_mov_b32 v6, 0x%x" % OOB)
        for k, n in enumerate((86, 32)):
            a("v_mul_u32_u24 v7, %d, v2\nv_add_u32 v7, v7, v4\nv_lshlrev_b32 v7, v3, v7\nv_add_u32 v7, v7, v5\nv_cmp_gt_u32 vcc, %d, v%d\nv_cndmask_b32 v%d, v6, v7, vcc" % (n, n, 4 if self.o.get("tc", 1) else 0, t + k))
        return a, [[Ins("buffer_load_dword v%d, v%d, %s, 0 offen" % (t + k, t + k, sr(d)))] for k, d in enumerate((sD, sO))]
    def tlist(self):
        r = []
        for t in self.o["touch"].split(","):
            if not t: continue
            g, pos = t.split("@")
            if g in "LHM": g += "A"
            if g == "U": g += "B"
            r.append((g, pos))
        return r
    def touches(self, pos):
        skip = {None: "", False: "B", True: "A"}[self.B]
        return [self.touch(g) for g, ps in self.tlist() if ps == pos and not (g[0] in "LHUM" and g[1] == skip)]
    def utable(self, p):
        if not any(g[0] == "U" and g[1] == "AB"[self.B] for g, _ in self.tlist()): return
        p("s_lshr_b32 s3, s2, 4\ns_lshl_b32 s3, s3, 3\ns_and_b32 s%d, s2, 7\ns_add_u32 s3, s3, s%d\ns_lshr_b32 s%d, s%d, 9\ns_mul_i32 s3, s3, s%d\ns_lshl_b32 s3, s3, 2" % (sTmp, sTmp, sTmp, sTc + 2, sTmp))
        p("s_cmp_ge_u32 s%d, 2\ns_cselect_b32 s%d, 1728, 0\ns_add_u32 s3, s3, s%d\ns_cmp_lt_u32 s%d, %d\ns_cselect_b32 s3, 0x%x, s3" % (sWave, sTmp2, sTmp2, sWave, 2 if self.o.get("bq", 0) == 2 else 1, OOB // 2))
        p("v_lshrrev_b32 v8, 4, v1\nv_and_b32 v9, 7, v1\nv_lshlrev_b32 v9, 7, v9\nv_mad_u32_u24 v8, v8, s%d, v9\nv_add_u32 v8, s3, v8\nv_bfe_u32 v9, v1, 3, 1\nv_lshl_or_b32 v%d, v9, 30, v8" % (sTmp, vSign))
    def prologue(self):
        p = P(); o = self.o
        if o["stamps"] or o.get("calib"): p("%s s[94:95]" % ("s_memtime" if o.get("cyc") else "s_memrealtime"), raw=True)
        p("s_load_dwordx16 s[4:19], s[0:1], 0\ns_load_dwordx8 s[20:27], s[0:1], 64")
        p("s_cmp_ge_u32 s2, 256\ns_cbranch_scc1 Lend")
        if o["codepf"]:
            p("s_getpc_b64 s[%d:%d]" % (sPC, sPC + 1))
            p("Lpc:")
            n = o.get("cpn", 160)
            p("s_bitcmp1_b32 s2, 3\ns_cselect_b32 s3, LbodyB-Lpc, 0")
            if n < 160: p("s_bfe_u32 s%d, s2, 0x%x\ns_mul_i32 s%d, s%d, %d\ns_add_u32 s3, s3, s%d" % (sTmp, 4 + ((160 // n).bit_length() - 1 << 16), sTmp, sTmp, n * 128, sTmp))
            p("v_lshl_add_u32 v2, v0, 7, s3\nv_cmp_gt_u32 vcc, %d, v0" % n + "\nv_cndmask_b32 v2, 0, v2, vcc\nv_min_u32 v2, Lend-Lpc, v2")
            p("global_load_dword v%d, v2, s[%d:%d]" % (vDum, sPC, sPC + 1))
        p("v_and_b32 v1, 63, v0\nv_lshrrev_b32 v2, 6, v0\nv_readfirstlane_b32 s%d, v2" % sWave)
        p("s_and_b32 s%d, s2, 7\ns_lshr_b32 s%d, s2, 3" % (sTmp, sTmp2))
        p("s_lshr_b32 s%d, s%d, 2\ns_lshl_b32 s%d, s%d, 3\ns_lshr_b32 s3, s%d, 2\ns_add_u32 s%d, s%d, s3" % (sT, sTmp, sT, sT, sTmp2, sT, sT))
        p("s_lshl_b32 s%d, s%d, 17\ns_lshl_b32 s3, s%d, 15\ns_add_u32 s%d, s%d, s3" % (sXo, sT, sWave, sXo, sXo))
        p("s_lshl_b32 s%d, s%d, 12\ns_and_b32 s%d, s%d, 1" % (sMx, sWave, sC, sWave))
        p("v_lshrrev_b32 v2, 3, v1\nv_and_b32 v3, 7, v1\nv_lshrrev_b32 v4, 4, v1\nv_and_b32 v5, 1, v4")
        p("v_xor_b32 v6, v3, v4\nv_lshlrev_b32 v6, 4, v6\nv_lshl_add_u32 v%d, v2, 10, v6" % vXo)
        p("v_xor_b32 v6, 64, v%d\nv_add_u32 v%d, 7168, v6\nv_add_u32 v%d, 14336, v%d\nv_add_u32 v%d, 21504, v6" % (vXo, vXo + 1, vXo + 2, vXo, vXo + 3))
        tw = any(t and t[0] not in "wc" for t in o["touch"].split(","))
        t2 = any(t and t[0] in "LHUM" for t in o["touch"].split(","))
        if t2:
            r16, r128, b0, s1, s2_, s3_, nj = sKv, sW2o, sWa, sWb, sMw, sMq, sHo
            p("s_lshr_b32 s%d, s2, 4\ns_lshl_b32 s%d, s%d, 3\ns_add_u32 s%d, s%d, s%d" % (r16, r128, r16, r128, r128, sTmp))
            p("s_mov_b32 s3, 0x%x\ns_cmp_eq_u32 s%d, 1\ns_cselect_b32 s%d, 0x%x, s3\ns_cmp_eq_u32 s%d, 0\ns_cselect_b32 s%d, 0x200000, s%d" % (512 * 2752, sWave, sTc + 2, 512 * 3072, sWave, sTc + 2, sTc + 2))
            z = """s_movk_i32 s{s3}, 128
s_movk_i32 s{s2}, 512
s_lshr_b32 s{s1}, s{sz}, 3
s_mov_b32 s{nj}, 4
s_cmp_eq_u32 s{w}, 1
s_cbranch_scc1 LtA1
s_cmp_eq_u32 s{w}, 0
s_cbranch_scc1 LtA0
s_mul_i32 s{b0}, s{r16}, 11008
s_and_b32 s3, s2, 3
s_mul_i32 s3, s3, 448
s_add_u32 s{b0}, s{b0}, s3
s_movk_i32 s{s2}, 2752
s_branch LtE
LtA0:
s_lshl_b32 s{b0}, s{r128}, 14
s_movk_i32 s{s1}, 128
s_movk_i32 s{s2}, 4096
s_movk_i32 s{s3}, 1024
s_branch LtE
LtA1:
{a1}
LtE:""".replace("{a1}", "s_mul_i32 s{b0}, s{r128}, 1536\ns_mov_b32 s{nj}, 3" if o.get("bq", 0) == 2 else
                "s_lshr_b32 s3, s{r128}, 1\ns_add_u32 s{b0}, s{r128}, s3\ns_add_u32 s{b0}, s{b0}, 1\ns_lshl_b32 s{b0}, s{b0}, 10\ns_mov_b32 s{nj}, 2").format(bw=2 if o.get("bq", 0) == 2 else 1, s1=s1, s2=s2_, s3=s3_, b0=b0, nj=nj, r16=r16, r128=r128, w=sWave, sz=sTc + 2)
            p(z, raw=True)
            p("v_bfe_u32 v7, v1, 2, 2\nv_and_b32 v8, 3, v1\nv_mov_b32 v6, s%d\nv_mad_u32_u24 v6, v4, s%d, v6\nv_mad_u32_u24 v6, v7, s%d, v6\nv_mad_u32_u24 v6, v8, s%d, v6" % (b0, s1, s2_, s3_))
            p("v_mov_b32 v8, 0x%x\nv_cmp_gt_u32 vcc, s%d, v7\nv_cndmask_b32 v%d, v8, v6, vcc\ns_mov_b32 s%d, 0x20000\ns_lshl_b32 s%d, s%d, 2" % (OOB, nj, vTa, sTc + 3, sPC, s1))
        elif tw:
            p("s_mov_b32 s3, 176128\ns_cmp_eq_u32 s%d, 1\ns_cselect_b32 s%d, 196608, s3\ns_lshl_b32 s%d, s%d, 3" % (sWave, sWa, sTc + 2, sWa))
            p("s_cmp_eq_u32 s%d, 0\ns_cselect_b32 s%d, 128, s%d\ns_cselect_b32 s%d, 8, 6\ns_cselect_b32 s%d, 10, 7\ns_cselect_b32 s%d, 0x200000, s%d" % (sWave, sWa, sWa, sWb, sMw, sTc + 2, sTc + 2))
            p("s_mul_i32 s3, s2, s%d\nv_add_u32 v6, s3, v2\nv_lshlrev_b32 v6, s%d, v6\nv_mad_u32_u24 v6, v3, s%d, v6" % (sWb, sMw, sWa))
            p("v_mov_b32 v7, 0x%x\nv_cmp_gt_u32 vcc, s%d, v2\nv_cndmask_b32 v%d, v7, v6, vcc\ns_mov_b32 s%d, 0x20000" % (OOB, sWb, vTa, sTc + 3))
        p("s_and_b32 s3, s%d, 3\ns_lshl_b32 s%d, s3, 1\ns_bfe_u32 s3, s%d, 0x10001\ns_add_u32 s%d, s%d, s3" % (sTmp, sU, sTmp2, sU, sU))
        if o["p2map"] == "chk":
            p("s_lshl_b32 s%d, s%d, 2\ns_lshr_b32 s3, s%d, 3\ns_add_u32 s%d, s%d, s3\ns_and_b32 s3, s3, 1\ns_xor_b32 s3, s3, s%d\ns_and_b32 s%d, s3, 7" % (sTT, sTmp, sTmp2, sTT, sTT, sTmp2, sCT))
        elif o["p2map"] == "row":
            p("s_lshl_b32 s%d, s%d, 1\ns_lshr_b32 s3, s%d, 4\ns_add_u32 s%d, s%d, s3\ns_lshl_b32 s%d, s%d, 1\ns_and_b32 s3, s%d, 1\ns_add_u32 s%d, s%d, s3\ns_bfe_u32 s%d, s%d, 0x30001" % (sTT, sTmp, sTmp2, sTT, sTT, sTT, sTT, sTmp2, sTT, sTT, sCT, sTmp2))
        elif o["p2map"] == "chk84":
            p("s_lshr_b32 s%d, s%d, 1\ns_lshl_b32 s%d, s%d, 3\ns_lshr_b32 s3, s%d, 2\ns_add_u32 s%d, s%d, s3" % (sTT, sTmp, sTT, sTT, sTmp2, sTT, sTT))
            p("s_and_b32 s3, s3, 1\ns_xor_b32 s3, s3, s%d\ns_and_b32 s3, s3, 3\ns_and_b32 s%d, s%d, 1\ns_lshl_b32 s%d, s%d, 2\ns_add_u32 s%d, s%d, s3" % (sTmp2, sCT, sTmp, sCT, sCT, sCT, sCT))
        elif o["p2map"] == "4x8":
            p("s_lshl_b32 s%d, s%d, 2\ns_lshr_b32 s3, s%d, 3\ns_add_u32 s%d, s%d, s3\ns_and_b32 s%d, s%d, 7" % (sTT, sTmp, sTmp2, sTT, sTT, sCT, sTmp2))
        else:
            p("s_lshr_b32 s%d, s%d, 1\ns_lshl_b32 s%d, s%d, 3\ns_lshr_b32 s3, s%d, 2\ns_add_u32 s%d, s%d, s3" % (sTT, sTmp, sTT, sTT, sTmp2, sTT, sTT))
            p("s_and_b32 s%d, s%d, 1\ns_lshl_b32 s%d, s%d, 2\ns_and_b32 s3, s%d, 3\ns_add_u32 s%d, s%d, s3" % (sCT, sTmp, sCT, sCT, sTmp2, sCT, sCT))
        self.srd(p, sX, 4, 2048 * 1024)
        if tw:
            p("s_bitcmp1_b32 s%d, 0\ns_cselect_b64 s[%d:%d], s[6:7], s[4:5]\ns_cselect_b64 s[100:101], s[16:17], s[14:15]" % (sWave, sTc, sTc + 1))
            p("s_cmp_lt_u32 s%d, 2\ns_cselect_b64 s[%d:%d], s[%d:%d], s[100:101]" % (sWave, sTc, sTc + 1, sTc, sTc + 1))
        for c in self.touches("pre"): p.ext(c)
        for c in self.xdma(0): p.ext(c)
        for c in self.touches("x0"): p.ext(c)
        p("s_cmp_lt_u32 s%d, 2\ns_cselect_b64 s[%d:%d], s[14:15], s[16:17]" % (sWave, sW, sW + 1))
        p("s_mov_b32 s%d, 0x%x\ns_mov_b32 s%d, 0x20000" % (sW + 2, 512 * 2752, sW + 3))
        self.srd(p, sQ, 6, 512 * 3072)
        p("s_bitcmp0_b32 s2, 3\ns_cbranch_scc1 LpathA")
        return p
    def dma(self, pre, v, srd, so, imm, post, tag):
        p = P()
        if pre: p(pre)
        p("buffer_load_dwordx4 v%d, %s, s%d offen offset:%d lds" % (v, sr(srd), so, imm), tag=tag)
        if post: p(post)
        return p.l
    def group(self, n, m0reg, m0off, v, srd, so, step, tag):
        first = so not in self.started; self.started.add(so)
        def pre(j):
            if j % 4: return ""
            t = "s_add_u32 m0, s%d, %d" % (m0reg, m0off + 1024 * j)
            if j == 0 and not first: t += "\ns_%s_u32 s%d, s%d, %d" % ("add" if step > 0 else "sub", so, so, abs(step))
            return t
        return [self.dma(pre(j), v + j, srd, so, 1024 * (j % 4), "", tag) for j in range(n)]
    def xdma(self, sg): return self.group(4, sMx, XS[sg % 3], vXo, sX, sXo, 128, "slab%d" % sg)
    def common2(self, q, B):
        self.utable(q)
        q("v_lshlrev_b32 v6, 2, v5\nv_xor_b32 v6, v3, v6\nv_lshlrev_b32 v7, 4, v6")
        q("v_lshl_add_u32 v%d, v2, 10, v7\nv_add_u32 v%d, 7168, v%d\nv_add_u32 v%d, %d, v%d\nv_add_u32 v%d, %d, v%d" % (v2o, v2o + 1, v2o, v2o + 2, 65536 - 2048, v2o, v2o + 3, 65536 - 2048, v2o + 1))
        if B == 1: q("v_mul_u32_u24 v6, 3072, v2\nv_add_u32 v%d, v6, v7\nv_add_u32 v%d, %d, v%d" % (vWo + 7, vWo + 8, 8 * 3072 - 1024, vWo + 7))
        self.srd(q, sD, 18, 1376 * 1024); self.srd(q, sO, 10, 512 * 1024); self.srd(q, sH, 26, WS_SIZE)
        self.srd(q, sG, 24, 256); self.srd(q, sOut, 22, 2048 * 1024); self.srd(q, sM, 8, 16384); self.srd(q, sM2, 20, 1024)
        if self.o.get("spins"): q("s_mov_b32 s26, 0")
        q("v_lshlrev_b32 v%d, 4, v1" % vL16)
        q("v_mov_b32 v%d, 1\nv_mov_b32 v6, 0x%x\nv_cmp_eq_u32 vcc, 0, v0\nv_cndmask_b32 v%d, v6, 0, vcc" % (vOne, OOB, vFlag))
        q("v_lshlrev_b32 v7, 7, v0\nv_cmp_gt_u32 vcc, 16, v0\nv_cndmask_b32 v%d, v6, v7, vcc\nv_cmp_gt_u32 vcc, 8, v0\nv_cndmask_b32 v%d, v6, v7, vcc" % (vPoll, vPoll8))
        q("s_mov_b32 s%d, 0x%x\ns_mov_b32 s%d, 0x%x\ns_mov_b32 s%d, 0x%x\ns_mov_b32 s%d, 0x%x\nv_mov_b32 v%d, 0x%x" % (sL2E, f2u(L2E), sL2E + 1, f2u(L2E), sK2, f2u(K2), sK2 + 1, f2u(K2), vK1, f2u(K1)))
        q("s_cmp_eq_u32 s%d, 0\ns_cselect_b32 s%d, 0xffff, 0\ns_cselect_b32 s%d, 0xff, 0" % (sWave, sExp, sE8))
        if self.sc: q("s_mov_b32 s%d, 1" % sExp)
        q("s_lshl_b32 s%d, s%d, 14\ns_lshl_b32 s3, s%d, 7\ns_add_u32 s%d, s%d, s3" % (sW2o, sWave, sCT, sW2o, sW2o))
        q("s_lshl_b32 s3, s%d, 2\ns_add_u32 s3, s3, s%d\ns_lshl_b32 s3, s3, 12\ns_add_u32 s%d, s3, 0x%x" % (sU, sWave, sKv, WS_KV))
        q("v_and_b32 v2, 31, v1\nv_lshrrev_b32 v3, 5, v1\nv_bfe_u32 v6, v2, 1, 3\nv_xor_b32 v6, v3, v6\nv_lshlrev_b32 v6, 4, v6\nv_lshl_add_u32 v6, v2, 7, v6")
        q("v_bfe_u32 v4, v1, 2, 2\nv_lshrrev_b32 v9, 1, v4\nv_and_b32 v7, 3, v1\nv_lshlrev_b32 v7, 3, v7\nv_lshl_add_u32 v8, v3, 3, v4")
    def w2_init(self, loc, bases, avail):
        self.loc = loc; self.bases = bases; self.used = []; self.avail = avail; self.g = 0; self.nh = 0; self.rmin = lambda i: 34 + 2 * i
    def w2(self, spec):
        r = []
        for t in spec.split("."):
            if not t: continue
            if t in ("T", "X", "Z"): r += self.extra[t]; continue
            if t[0] == "H":
                assert int(t[1:]) == self.nh; self.nh += 1
                l = self.hload(int(t[1:])).l; r += [l[:1], l[1:]]; continue
            if t[0] == "P":
                z = P(); self.poll_issue(z, t[1:]); r.append(z.l); continue
            i = int(t[1:]); assert t not in self.used, t
            self.used.append(t)
            if t[0] in "GQ":
                assert i == 0 or "%s%d" % (t[0], i - 1) in self.used
                assert self.g >= self.avail[t], (t, self.g)
                r += self.other(i)
            elif t[0] == "D":
                assert i == 0 or "D%d" % (i - 1) in self.used
                assert self.g >= self.avail[self.loc[i]], (t, self.g)
                prev = [k for k in range(i) if self.loc[k] == self.loc[i]]
                g = self.group(4, sMx, self.loc[i], v2o, sD if i < 11 else sO, sW2o, -10 * 131072 + 32768 if i == 11 else 131072 - 32768 if i == 7 else 131072, "w2d%d" % i)
                if prev: g[0] = [Ins("@wait lg:w2r%d" % prev[-1])] + g[0]
                r += g
            else:
                assert self.g >= self.rmin(i), (t, self.g)
                rs = max(k for k, b in enumerate(self.bases) if b <= self.loc[i]); off = self.loc[i] - self.bases[rs]
                assert off + 4096 <= 65536
                for st in range(2):
                    for cb in range(2):
                        for half in range(2):
                            p = P()
                            if st == cb == half == 0: p("@wait vm:w2d%d" % i)
                            p("ds_read_b64_tr_b16 %s, v%d offset:%d" % (ar(8 * (2 * i + st) + 4 * cb + 2 * half, 2), v2a + 2 * rs + cb, off + st * 2048 + half * 1024), tag="w2r%d" % i)
                            r.append(p.l)
        return r
    def w2_addr(self):
        p = P(); va = v2a
        p("v_bfe_u32 v2, v1, 2, 2\nv_lshrrev_b32 v3, 5, v1\nv_lshl_add_u32 v3, v3, 2, v2\nv_and_b32 v2, 2, v2\nv_bfe_u32 v4, v1, 4, 1\nv_or_b32 v2, v2, v4")
        p("v_and_b32 v4, 3, v1\nv_lshlrev_b32 v4, 3, v4\nv_lshl_add_u32 v4, v2, 5, v4\nv_lshl_add_u32 v4, v3, 7, v4\nv_add_u32 v%d, s%d, v4\nv_xor_b32 v%d, 64, v%d" % (va, sMx, va + 1, va))
        assert self.bases[0] == 0
        for k in range(1, len(self.bases)): p("v_add_u32 v%d, %d, v%d\nv_add_u32 v%d, %d, v%d" % (va + 2 * k, self.bases[k], va, va + 2 * k + 1, self.bases[k], va + 1))
        return p
    CNT = {"kv": 0, "h": 8, "a": 24, "o": 40}
    def flag_off(self, p, kind, B, d):
        if self.sc:
            p("s_lshl_b32 s%d, s%d, 7\ns_add_u32 s%d, s%d, 0x%x" % (d, sU if kind == "kv" else sT, d, d, WS_FL + 128 * self.CNT["a" if kind == "h" and not B else kind]))
            return
        if kind == "kv": p("s_lshl_b32 s%d, s%d, 4\ns_add_u32 s%d, s%d, s%d\ns_lshl_b32 s%d, s%d, 7" % (d, sU, d, d, sT, d, d)); base = FKV
        elif kind == "h": p("s_lshl_b32 s%d, s%d, 4\ns_add_u32 s%d, s%d, s%d\ns_lshl_b32 s%d, s%d, 7" % (d, sT, d, d, sU, d, d)); base = FHD + (0 if B else 8)
        else: p("s_lshl_b32 s%d, s%d, 3\ns_add_u32 s%d, s%d, s%d\ns_lshl_b32 s%d, s%d, 7" % (d, sT, d, d, sU, d, d)); base = FOD
        p("s_add_u32 s%d, s%d, 0x%x" % (d, d, WS_FL + base * 128))
    def flag(self, p, d):
        if self.sc:
            k = self.nlab; self.nlab += 1
            p("s_cmp_lg_u32 s%d, 0\ns_cbranch_scc1 Lfl%d" % (sWave, k))
            p("s_atomic_add s%d, s[%d:%d], s%d\nLfl%d:" % (sExp, sH, sH + 1, d, k), raw=True)
            p("@async")
            return
        p("buffer_store_dword v%d, v%d, %s, s%d offen sc1" % (vOne, vFlag, sr(sH), d))
    def poll_off(self, p, kind):
        d = {"kv": sPk, "h": sPh, "o": sPo}[kind]
        if self.sc:
            if kind == "kv": p("s_lshl_b32 s%d, s%d, 7\ns_add_u32 s%d, s%d, 0x%x" % (d, sU, d, d, WS_FL))
            else: p("s_lshr_b32 s%d, s%d, 1\ns_lshl_b32 s%d, s%d, 7\ns_add_u32 s%d, s%d, 0x%x" % (d, sTT, d, d, d, d, WS_FL + 128 * self.CNT[kind]))
            return
        if kind == "kv": p("s_lshl_b32 s%d, s%d, 11\ns_add_u32 s%d, s%d, 0x%x" % (d, sU, d, d, WS_FL + FKV * 128))
        elif kind == "h": p("s_lshr_b32 s%d, s%d, 1\ns_lshl_b32 s%d, s%d, 11\ns_add_u32 s%d, s%d, 0x%x" % (d, sTT, d, d, d, d, WS_FL + FHD * 128))
        else: p("s_lshr_b32 s%d, s%d, 1\ns_lshl_b32 s%d, s%d, 10\ns_add_u32 s%d, s%d, 0x%x" % (d, sTT, d, d, d, d, WS_FL + FOD * 128))
    def poll_ins(self, kind, first=False):
        if kind == "init": return "buffer_load_dword v%d, v%d, %s, 0 offen sc1" % (vPr, vDum + 1, sr(sG))
        if self.sc:
            so = {"kv": sPk, "h": sPh, "a": sPh, "o": sPo}[kind]
            if self.sc == 1: return "s_mov_b32 s%d, 0\ns_atomic_add s%d, s[%d:%d], s%d glc" % (sTmp2, sTmp2, sH, sH + 1, so)
            return "s_load_dword s%d, s[%d:%d], s%d glc" % (sTmp2, sH, sH + 1, so)
        if self.o.get("apoll", 0) > (1 if first else 0):
            return "v_mov_b32 v%d, 0\nbuffer_atomic_or v%d, v%d, %s, s%d offen offset:%d sc0" % (vPr, vPr, vPoll if kind == "kv" else vPoll8, sr(sH), {"kv": sPk, "h": sPh, "a": sPh, "o": sPo}[kind], 1024 if kind == "a" else 0)
        return "buffer_load_dword v%d, v%d, %s, s%d offen offset:%d sc1" % (vPr, vPoll if kind == "kv" else vPoll8, sr(sH), {"kv": sPk, "h": sPh, "a": sPh, "o": sPo}[kind], 1024 if kind == "a" else 0)
    def poll_issue(self, p, kind):
        if self.sc and kind != "init":
            k = self.nlab; self.nlab += 1
            if kind == "a": p("s_add_u32 s%d, s%d, %d" % (sPh, sPh, 128 * (self.CNT["a"] - self.CNT["h"])))
            p("s_cmp_lg_u32 s%d, 0\ns_cbranch_scc1 Lpi%d" % (sWave, k))
            p(self.poll_ins(kind) + "\nLpi%d:" % k, raw=True)
            p("@async")
            return
        if kind == "init": p("v_lshrrev_b32 v%d, 5, v%d" % (vDum + 1, vPoll8))
        p(self.poll_ins(kind, True))
    def poll_check(self, p, kind):
        k = self.nlab; self.nlab += 1
        if self.sc and kind != "init":
            n = 16 if kind == "kv" else 8
            p("s_waitcnt lgkmcnt(0)", raw=True); p("@sync")
            p("s_cmp_lg_u32 s%d, 0\ns_cbranch_scc1 Lok%d" % (sWave, k))
            p("s_cmp_ge_u32 s%d, %d\ns_cbranch_scc1 Lok%d\ns_mov_b32 s%d, 0\nLsp%d:\n%s\ns_add_u32 s%d, s%d, 1" % (sTmp2, n, k, sPC + 1, k, self.poll_ins(kind), sPC + 1, sPC + 1), raw=True)
            if self.o.get("spins"): p("s_add_u32 s26, s26, %d" % (1 << 6 * ["init", "kv", "h", "a", "o"].index(kind)), raw=True)
            p("s_waitcnt lgkmcnt(0)\ns_cmp_ge_u32 s%d, %d\ns_cbranch_scc1 Lok%d\ns_cmp_lt_u32 s%d, 0x8000\ns_cbranch_scc1 Lsp%d\nLok%d:" % (sTmp2, n, k, sPC + 1, k, k), raw=True)
            return
        e = sExp if kind == "kv" else sE8
        p("v_cmp_eq_u32 vcc, 1, v%d\ns_nop 1\ns_and_b32 s%d, vcc_lo, s%d\ns_cmp_eq_u32 s%d, s%d\ns_cbranch_scc1 Lok%d" % (vPr, sPC, e, sPC, e, k))
        p("s_mov_b32 s%d, 0\nLsp%d:\ns_sleep %d\n%s\ns_waitcnt vmcnt(0)" % (sPC + 1, k, self.o.get("sleep", 0), self.poll_ins(kind)), raw=True)
        if self.o.get("spins"): p("s_add_u32 s26, s26, %d" % (1 << 6 * ["init", "kv", "h", "a", "o"].index(kind)), raw=True)
        p("v_cmp_eq_u32 vcc, 1, v%d\ns_add_u32 s%d, s%d, 1\ns_nop 0\ns_and_b32 s%d, vcc_lo, s%d\ns_cmp_eq_u32 s%d, s%d\ns_cbranch_scc1 Lok%d\ns_cmp_lt_u32 s%d, 0x8000\ns_cbranch_scc1 Lsp%d\nLok%d:" % (vPr, sPC + 1, sPC + 1, sPC, e, sPC, e, k, sPC + 1, k, k), raw=True)
    def gate_job(self, g=112, sA=sMw, sB=sMq, tag="hst", r0=20, r1=21):
        ld = P(); c = P(); gw = vGt; vA = vGt + 6
        ld("s_lshl_b32 s3, s%d, 3\ns_add_u32 s3, s3, s%d\ns_lshl_b32 s3, s3, 2\ns_add_u32 s3, s3, s%d" % (sT, sU, sWave))
        ld("s_lshl_b32 s%d, s3, 4\ns_add_u32 s%d, s%d, 0x%x\ns_lshl_b32 s%d, s3, 12\nv_lshlrev_b32 v%d, 4, v1" % (sA, sA, sA, WS_G, sB, vA))
        lds = [ld.l + [Ins("buffer_load_dwordx4 %s, v%d, %s, 0 offen" % (vr(gw), vA, sr(sM2)))]]
        for k in range(4): lds.append([Ins("buffer_load_dwordx4 %s, v%d, %s, s%d offen offset:%d" % (vr(g + 4 * k), vA, sr(sX), sB, 1024 * k))])
        for i in range(4):
            c("v_lshlrev_b32 v6, 16, v%d\nv_and_b32 v7, 0xffff0000, v%d" % (gw + i, gw + i))
            for k in range(4):
                c("v_lshlrev_b32 v8, 16, v%d\nv_and_b32 v9, 0xffff0000, v%d" % (g + 4 * k + i, g + 4 * k + i))
                c("%s v%d, v8, v6\nv_fmac_f32 v%d, v9, v7" % ("v_mul_f32" if i == 0 else "v_fmac_f32", 2 + k, 2 + k))
        c("v_and_b32 v6, 15, v1\nv_lshlrev_b32 v6, 25, v6")
        c("v_permlane32_swap_b32 v2, v4\nv_permlane32_swap_b32 v3, v5\nv_add_f32 v2, v2, v4\nv_add_f32 v3, v3, v5")
        c("v_lshrrev_b32 v7, 2, v1\nv_or_b32 v6, v6, v7")
        c("v_permlane16_swap_b32 v2, v3\nv_add_f32 v2, v2, v3")
        for r in (8, 4, 2, 1): c("v_add_f32_dpp v2, v2, v2 row_ror:%d row_mask:0xf bank_mask:0xf" % r)
        c("v_mul_f32 v2, 0x%x, v2\nv_exp_f32 v2, v2\nv_add_f32 v2, 1.0, v2\nv_rcp_f32 v%d, v2\nv_mov_b32 v%d, v6" % (f2u(-L2E), r0, r1))
        st = P(); st("buffer_store_dword v%d, v%d, %s, s%d offen sc1" % (r0, r1, sr(sH), sA), tag=tag)
        return lds, c, st
    def wphi_load(self):
        p = P()
        p("s_lshl_b32 s3, s%d, 10\ns_add_u32 m0, s3, %d\ns_lshl_b32 s%d, s%d, 11\ns_add_u32 s3, s3, s%d" % (sC, MISC, sTmp, sU, sTmp))
        p("buffer_load_dwordx4 v%d, %s, s3 offen lds" % (vL16, sr(sM)), tag="wphi")
        return p.l
    def wphi_read(self):
        p = P()
        p("v_bfe_u32 v2, v1, 2, 2\nv_lshrrev_b32 v3, 5, v1\nv_lshl_add_u32 v3, v3, 2, v2\nv_bfe_u32 v2, v1, 1, 1\nv_and_b32 v4, 16, v1\nv_lshl_add_u32 v4, v2, 3, v4\nv_lshl_add_u32 v4, v3, 5, v4")
        p("s_lshl_b32 s3, s%d, 10\ns_add_u32 s3, s3, %d\nv_add_u32 v4, s3, v4" % (sC, MISC))
        p("@wait vm:wphi")
        for b in range(2):
            for half in range(2): p("ds_read_b64_tr_b16 %s, v4 offset:%d" % (vr(vWp + 4 * b + 2 * half, 2), b * 512 + half * 256))
        p("v_bfe_u32 v6, v1, 2, 1\nv_mul_u32_u24 v6, 0x8000, v6\nv_lshl_or_b32 v%d, v6, 16, v6" % vSign)
        q = P()
        for i in range(8): q("v_xor_b32 v%d, v%d, v%d" % (vWp + i, vWp + i, vSign))
        return p, q
    def softmax(self, Pr, T, out, pk=True):
        p = P()
        if isinstance(out, tuple):
            class O:
                def __add__(s_, k): return out_[k >> 2] + (k & 3)
            out_ = out; out = O()
        if not pk:
            for k in range(5): p("v_max3_f32 v%d, v%d, v%d, v%d" % (T + k, Pr + 3 * k, Pr + 3 * k + 1, Pr + 3 * k + 2))
            p("v_max3_f32 v%d, v%d, v%d, v%d\nv_max3_f32 v%d, v%d, v%d, v%d\nv_max_f32 v%d, v%d, v%d" % (T, T, T + 1, Pr + 15, T + 2, T + 2, T + 3, T + 4, T, T, T + 2))
            p("v_mul_f32 v%d, 0x%x, v%d" % (T, f2u(-L2E), T))
            for k in range(2): p("v_fma_f32 v%d, v%d, s%d, v%d" % (Pr + k, Pr + k, sL2E, T))
            for k in range(16):
                p("v_exp_f32 v%d, v%d" % (Pr + k, Pr + k))
                if k < 14: p("v_fma_f32 v%d, v%d, s%d, v%d" % (Pr + k + 2, Pr + k + 2, sL2E, T))
                if k == 3: p("v_add_f32 v%d, v%d, v%d" % (T + 1, Pr, Pr + 1))
                if k > 3: p("v_add_f32 v%d, v%d, v%d" % (T + 1, T + 1, Pr + k - 2))
            p("v_add_f32 v%d, v%d, v%d\nv_add_f32 v%d, v%d, v%d\nv_rcp_f32 v%d, v%d" % (T + 1, T + 1, Pr + 14, T + 1, T + 1, Pr + 15, T, T + 1))
            for k in range(8):
                p("v_mul_f32 v%d, v%d, v%d\nv_mul_f32 v%d, v%d, v%d" % (Pr + 2 * k, Pr + 2 * k, T, Pr + 2 * k + 1, Pr + 2 * k + 1, T))
                if k: p("v_cvt_pk_bf16_f32 v%d, v%d, v%d" % (out + (k - 1), Pr + 2 * k - 2, Pr + 2 * k - 1))
            p("v_cvt_pk_bf16_f32 v%d, v%d, v%d" % (out + 7, Pr + 14, Pr + 15))
            return p
        for k in range(5): p("v_max3_f32 v%d, v%d, v%d, v%d" % (T + k, Pr + 3 * k, Pr + 3 * k + 1, Pr + 3 * k + 2))
        p("v_max3_f32 v%d, v%d, v%d, v%d\nv_max3_f32 v%d, v%d, v%d, v%d\nv_max_f32 v%d, v%d, v%d" % (T, T, T + 1, Pr + 15, T + 2, T + 2, T + 3, T + 4, T, T, T + 2))
        p("v_mul_f32 v%d, 0x%x, v%d" % (T, f2u(-L2E), T))
        for k in range(8): p("v_pk_fma_f32 %s, %s, %s, %s op_sel_hi:[1,0,0]" % (vr(Pr + 2 * k, 2), vr(Pr + 2 * k, 2), sr(sL2E, 2), vr(T, 2)))
        for k in range(16): p("v_exp_f32 v%d, v%d" % (Pr + k, Pr + k))
        for k in range(4): p("v_pk_add_f32 %s, %s, %s" % (vr(T + 2 * k, 2), vr(Pr + 4 * k, 2), vr(Pr + 4 * k + 2, 2)))
        p("v_pk_add_f32 %s, %s, %s\nv_pk_add_f32 %s, %s, %s\nv_pk_add_f32 %s, %s, %s" % (vr(T, 2), vr(T, 2), vr(T + 2, 2), vr(T + 4, 2), vr(T + 4, 2), vr(T + 6, 2), vr(T, 2), vr(T, 2), vr(T + 4, 2)))
        p("v_add_f32 v%d, v%d, v%d\nv_rcp_f32 v%d, v%d" % (T, T, T + 1, T, T))
        for k in range(8): p("v_pk_mul_f32 %s, %s, %s op_sel_hi:[1,0]" % (vr(Pr + 2 * k, 2), vr(Pr + 2 * k, 2), vr(T, 2)))
        for k in range(8): p("v_cvt_pk_bf16_f32 v%d, v%d, v%d" % (out + k, Pr + 2 * k, Pr + 2 * k + 1))
        return p
    def gelu(self, a, T, soff, imm, pk=True):
        p = P()
        if not pk:
            for k in range(8): p("v_mul_f32 v%d, v%d, v%d" % (T + k, a + k, a + k))
            for k in range(8): p("v_fma_f32 v%d, v%d, s%d, v%d" % (T + k, T + k, sK2, vK1))
            for k in range(2): p("v_mul_f32 v%d, v%d, v%d" % (T + k, T + k, a + k))
            for k in range(8):
                p("v_exp_f32 v%d, v%d" % (T + k, T + k))
                if k < 6: p("v_mul_f32 v%d, v%d, v%d" % (T + k + 2, T + k + 2, a + k + 2))
                p("v_mul_f32 v%d, v%d, v%d" % (a + k, a + k, a + 8 + k))
            for k in range(2): p("v_add_f32 v%d, 1.0, v%d" % (T + k, T + k))
            for k in range(8):
                p("v_rcp_f32 v%d, v%d" % (T + k, T + k))
                if k < 6: p("v_add_f32 v%d, 1.0, v%d" % (T + k + 2, T + k + 2))
                if k >= 1: p("v_mul_f32 v%d, v%d, v%d" % (a + k - 1, a + k - 1, T + k - 1))
            p("v_cvt_pk_bf16_f32 v%d, v%d, v%d\nv_mul_f32 v%d, v%d, v%d" % (a + 8, a, a + 1, a + 7, a + 7, T + 7))
            for k in range(1, 4): p("v_cvt_pk_bf16_f32 v%d, v%d, v%d" % (a + 8 + k, a + 2 * k, a + 2 * k + 1))
            p("buffer_store_dwordx4 %s, v%d, %s, s%d offen offset:%d sc1" % (vr(a + 8), vL16, sr(sH), soff, imm), tag="hst")
            return p
        for k in range(4): p("v_pk_mul_f32 %s, %s, %s" % (vr(T + 2 * k, 2), vr(a + 2 * k, 2), vr(a + 2 * k, 2)))
        for k in range(4): p("v_pk_fma_f32 %s, %s, %s, %s op_sel_hi:[1,0,0]" % (vr(T + 2 * k, 2), vr(T + 2 * k, 2), sr(sK2, 2), vr(vK1, 2)))
        for k in range(4): p("v_pk_mul_f32 %s, %s, %s" % (vr(T + 2 * k, 2), vr(T + 2 * k, 2), vr(a + 2 * k, 2)))
        for k in range(8): p("v_exp_f32 v%d, v%d" % (T + k, T + k))
        for k in range(4): p("v_pk_mul_f32 %s, %s, %s" % (vr(a + 2 * k, 2), vr(a + 2 * k, 2), vr(a + 8 + 2 * k, 2)))
        for k in range(4): p("v_pk_add_f32 %s, %s, 1.0 op_sel_hi:[1,0]" % (vr(T + 2 * k, 2), vr(T + 2 * k, 2)))
        for k in range(8): p("v_rcp_f32 v%d, v%d" % (T + k, T + k))
        for k in range(4): p("v_pk_mul_f32 %s, %s, %s" % (vr(a + 2 * k, 2), vr(a + 2 * k, 2), vr(T + 2 * k, 2)))
        for k in range(4): p("v_cvt_pk_bf16_f32 v%d, v%d, v%d" % (a + 8 + k, a + 2 * k, a + 2 * k + 1))
        p("buffer_store_dwordx4 %s, v%d, %s, s%d offen offset:%d sc1" % (vr(a + 8), vL16, sr(sH), soff, imm), tag="hst")
        return p
    @staticmethod
    def cluster(e, after):
        after = [int(x) for x in str(after).split(".") if x != ""]
        out = []; held = []; k = 0
        for i in e.l:
            if i.op == "buffer_store_dwordx4":
                held.append(i)
                if not after or k in after: out += held; held = []
                k += 1
            else: out.append(i)
        assert not held
        e.l = out
    def hpos(self, p, dst, ksreg):
        p("s_and_b32 s3, s%d, 3\ns_mul_i32 s3, s3, 30\ns_lshr_b32 s%d, s%d, 2\ns_add_u32 s3, s3, s%d" % (ksreg, dst, ksreg, dst))
        p("s_lshl_b32 s3, s3, %d\ns_add_u32 s%d, s3, s%d" % (10 + self.hs, dst, sHo))
    def scalars(self, e, B):
        if self.hs == 2: e("v_lshrrev_b32 v2, 3, v1\nv_lshl_add_u32 v%d, v2, 7, v%d" % (vL16, vL16))
        self.flag_off(e, "h", B, sF1); self.flag_off(e, "o" if B else "kv", B, sF2)
        self.poll_off(e, "h"); self.poll_off(e, "o")
        if B: self.poll_off(e, "kv")
        e("s_lshl_b32 s%d, s%d, 8\ns_add_u32 s%d, s%d, 0x%x" % (sGo, sTT, sGo, sGo, WS_G))
        e("s_lshl_b32 s%d, s%d, 16\ns_lshl_b32 s3, s%d, 7\ns_add_u32 s%d, s%d, s3\ns_add_u32 s%d, s%d, 32768" % (sOa, sTT, sCT, sOa, sOa, sOb, sOa))
    @staticmethod
    def cost(c):
        t = 0
        for i in c:
            if i.raw or i.op.startswith("@cut"): continue
            t += 8 if i.op.startswith(("v_exp", "v_rcp")) else 40 if i.op == "ds_write_b128" else 20 if i.cls == "vmem" else 32 if i.cls == "mfma" else 4
        return t
    @staticmethod
    def zones(l):
        out = []; pk = [i.op.startswith("v_pk") for i in l]; k = 0
        while k < len(l):
            if not pk[k]: out.append([l[k]]); k += 1; continue
            e = k
            while any(pk[e + 1:e + 4]): e += 1
            out.append(l[k:e + 1]); k = e + 1
        return out
    def flush(self, p):
        self.nflush = len(self.fq)
        for c in self.fq: p.ext(c)
        self.fq = []
    def engine(self, p, nsteps, mfmas, reads, pre, rel, dq, front, budget=lambda g: 24):
        self.fq = []; debt = 0
        for g in range(nsteps):
            self.g = g
            pre(g, p)
            if g in rel: dq += rel[g]()
            nxt = min([k for k in rel if k > g] + [nsteps])
            nq = -(-len(dq) // (nxt - g))
            mm = mfmas(g); rd = reads(g); ex = list(self.side.get(g, []))
            fr = front(g)
            if fr: nq = max(nq, min(len(dq), fr * len(mm)))
            rper = max(2, -(-len(rd) // max(1, len(mm) - 1)))
            if self.fq and len(rd) <= len(mm) and (g % 4 != 2 or len(mm) == 2): rper = 1
            for gi, m in enumerate(mm):
                xm = self.o.get("x_j1", 0) if g < 31 else 0
                if not xm & 1: p(m)
                n0 = len(p.l)
                for _ in range(rper):
                    if rd:
                        c = rd.pop(0)
                        if not xm & 2 or len(rd) == 0: p.ext(c)
                rem = len(mm) - gi
                k = max(nq // rem, min(nq, fr))
                for _ in range(k):
                    c = dq.pop(0); nq -= 1
                    if xm & 4 and c[-1].cls == "vmem" and len(dq) > 0: c = c[:-1]
                    p.ext(c)
                k = -(-len(ex) // rem)
                for _ in range(k): p.ext(ex.pop(0))
                used = self.cost(p.l[n0:])
                while self.fq:
                    c = self.fq[0]; z = c[0].op.startswith("v_pk"); cc = self.cost(c)
                    if not z and used + min(cc, 16) > budget(g): break
                    p.ext(self.fq.pop(0)); used += cc
                    if c[0].cls == "mfma": used = 0
                    if z: break
            assert not rd and not ex and nq == 0
        assert not dq
        self.g = nsteps
        self.flush(p)
    def addside(self, g, chunks): self.side.setdefault(g, []); self.side[g] += chunks
    def spread(self, chunks, g0, g1):
        if isinstance(chunks, P): chunks = [[i] for i in chunks.l]
        n = len(chunks)
        for g in range(g0, g1): self.addside(g, chunks[(g - g0) * n // (g1 - g0):(g - g0 + 1) * n // (g1 - g0)])
    def seg(self, p, e, spec):
        ch = self.w2(spec)
        p.ext(merge(e.l, ch, max(1, len(e.l) // (len(ch) + 1))))
    xf = staticmethod(lambda g, tb: ar(8 * (g % 32) + 4 * tb))
    def pathA(self):
        o = self.o; p = P(); B = self.B = False; self.side = {}
        vWo2 = 24; vXa = 28; vWa1 = 32; vWa2 = 34
        aPw, aPw2, aVw, aPr, aVr, aKeep, aOnes, aAt = range(36, 44)
        J = [A_J2 + 16384 * i for i in range(4)]
        K = [A_KV + 16384 * i for i in range(3)]
        ex = o.get("aexp", 1); sHs = 36
        gx = 32 if ex else 4 * o.get("axb", 12) + 3; gk = gx + o.get("akv", 3 if ex else 4)
        GL = J + XS + [J[0]]
        bars = [int(x) for x in str(o.get("abar", "8.11.13.15" if ex else "8.9.10.11.12.13.15")).split(".")]
        fb = lambda n: 4 * min(k for k in bars if k >= n) + 3
        av = {}
        for m in range(8): av[GL[m]] = fb(8 + m)
        for i in range(3): av[K[i]] = fb(gk // 4)
        for i in range(8): av["G%d" % i] = [23, 23, 23, 31, 27, 31, 23, fb(8)][i]
        self.w2_init(K + J[1:] + XS + [J[0]] + K + J[1:3] if ex else J[1:] + XS[:1] + K + XS[1:] + J + XS[:1] + K[:1], [0, 65536, 131072], av)
        p("LpathA:")
        p("s_lshr_b32 s%d, s%d, 1\ns_lshl_b32 s3, s%d, 2" % (sTmp, sWave, sTmp))
        p("v_lshlrev_b32 v6, 1, v5\nv_xor_b32 v6, v3, v6\nv_xor_b32 v6, s3, v6\nv_lshlrev_b32 v6, 4, v6")
        p("v_mul_u32_u24 v7, 3072, v2\nv_add_u32 v%d, v6, v7" % vWo)
        for j in range(1, 4): p("v_add_u32 v%d, %d, v%d" % (vWo + j, j * (8 * 3072 - 1024), vWo))
        p("s_lshl_b32 s%d, s%d, 10\ns_lshl_b32 s3, s%d, 7\ns_add_u32 s%d, s%d, s3\ns_mul_i32 s3, s%d, %d\ns_add_u32 s%d, s%d, s3\ns_add_u32 s%d, s%d, 1024" % (sWa, sTmp, sU, sWa, sWa, sC, 32 * 3072, sWa, sWa, sWa, sWa))
        kvdma = lambda sg: self.group(4, sMx, A_KV + 16384 * (sg % 3), vWo, sQ, sWa, 64 * 3072, "slab%d" % sg)
        gudma = lambda m: self.group(4, sMx, GL[m], vWo2, sW, sWb, 64 * 2752, "slab%d" % (8 + m))
        self.other = gudma
        for c in kvdma(0): p.ext(c)
        if o.get("gate", o["aux"]) == "L":
            self.srd(p, sM2, 20, 1024)
            p("s_lshl_b32 s3, s%d, 8\ns_add_u32 m0, s3, %d\nv_lshlrev_b32 v7, 4, v1\ns_mov_b64 exec, 0xffff" % (sWave, MISC + 2048))
            p("buffer_load_dwordx4 v7, %s, s3 offen lds" % sr(sM2), tag="slab0")
            p("s_mov_b64 exec, -1")
        if self.sc:
            z = P(); self.srd(z, sH, 26, WS_SIZE)
            z("s_lshl_b32 s3, s%d, 2\ns_add_u32 s3, s3, s%d\ns_lshl_b32 s3, s3, 12\ns_add_u32 s3, s3, 0x%x\nv_lshlrev_b32 v7, 4, v1" % (sU, sWave, WS_KV))
            for k in range(4): z("v_mov_b32 v%d, 0" % (96 + k))
            for k in range(3): z("buffer_store_dwordx4 %s, v7, %s, s3 offen offset:%d sc1" % (vr(96), sr(sH), 1024 * k))
            z("s_lshl_b32 s3, s%d, 14\ns_add_u32 s3, s3, s%d\ns_lshl_b32 s3, s3, 10\ns_add_u32 s3, s3, 0x%x" % (sWave, sU, WS_FL))
            z("buffer_store_dwordx4 %s, v7, %s, s3 offen sc1" % (vr(96), sr(sH)))
            p("s_cmp_lg_u32 s%d, 0\ns_cbranch_scc1 Lnz" % sT)
            for i_ in z.l: p(i_.text, raw=True)
            p("Lnz:")
        for c in self.touches("s0"): p.ext(c)
        self.stamp(p, "issued0")
        dq = self.xdma(1) + kvdma(1)
        npre = o.get("apre", 8)
        for c in dq[:npre]: p.ext(c)
        dq = dq[npre:]
        p("v_mul_u32_u24 v7, 2752, v2\nv_add_u32 v%d, v6, v7" % vWo2)
        for j in range(1, 4): p("v_add_u32 v%d, %d, v%d" % (vWo2 + j, j * (8 * 2752 - 1024), vWo2))
        p("s_lshl_b32 s3, s%d, 2\ns_add_u32 s%d, s3, 54" % (sU, sFfn))
        p("s_lshl_b32 s%d, s%d, 5\ns_mul_i32 s3, s%d, %d\ns_add_u32 s%d, s%d, s3" % (sWb, sFfn, sC, 32 * 2752, sWb, sWb))
        self.common2(p, B)
        p("s_lshr_b32 s3, s%d, 1\ns_lshl_b32 s3, s3, 13\nv_add_u32 v%d, s3, v6" % (sWave, vXa))
        for s in range(1, 4): p("v_xor_b32 v%d, %d, v%d" % (vXa + s, s << 5, vXa))
        p("s_lshl_b32 s3, s%d, 1\nv_lshl_or_b32 v9, v5, 1, v9\nv_xor_b32 v9, s3, v9\nv_lshl_add_u32 v9, v9, 5, v7\nv_lshl_add_u32 v9, v8, 7, v9\nv_lshl_add_u32 v9, v5, 13, v9" % sC)
        p("v_add_u32 v%d, %d, v9\nv_xor_b32 v%d, 32, v%d\nv_add_u32 v%d, %d, v9\nv_xor_b32 v%d, 32, v%d" % (vWa1, A_KV, vWa1 + 1, vWa1, vWa2, A_J2, vWa2 + 1, vWa2))
        if not self.sc:
            p("s_cmp_eq_u32 s%d, 0\ns_cselect_b32 s%d, 0, 0x%x\ns_add_u32 s3, s%d, s%d" % (sT, sTmp, OOB, sKv, sTmp))
            for k in range(4): p("v_mov_b32 v%d, 0" % (96 + k))
            for k in range(3): p("buffer_store_dwordx4 %s, v%d, %s, s3 offen offset:%d sc1" % (vr(96), vL16, sr(sH), 1024 * k), tag="zst")
            p("s_lshl_b32 s3, s%d, 13\ns_add_u32 s3, s3, s%d\ns_add_u32 s3, s3, 0x%x\ns_lshl_b32 s%d, s%d, 26\ns_add_u32 s3, s3, s%d\nv_lshlrev_b32 v2, 7, v1" % (sU, sTmp, WS_FL, sTmp, sWave, sTmp))
            p("buffer_store_dword v96, v2, %s, s3 offen sc1" % sr(sH), tag="zst")
        lg = o.get("gate", o["aux"]) == "L"
        if lg:
            p("s_lshl_b32 s3, s%d, 2\ns_add_u32 s3, s3, s%d\ns_lshl_b32 s3, s3, 2\nv_bfe_u32 v2, v1, 3, 2\nv_add_u32 v2, s3, v2\nv_and_b32 v3, 7, v1" % (sU, sWave))
            p("v_bfe_u32 v4, v2, 1, 3\nv_xor_b32 v4, v3, v4\nv_lshlrev_b32 v4, 4, v4\nv_lshl_add_u32 v78, v2, 7, v4\nv_lshlrev_b32 v3, 4, v3\nv_add_u32 v79, %d, v3\nv_mov_b32 v74, 0" % (MISC + 2048))
            p("s_lshl_b32 s%d, s%d, 7\ns_add_u32 s%d, s%d, s3\ns_lshl_b32 s%d, s%d, 2\ns_add_u32 s%d, s%d, 0x%x" % (sMw, sT, sMw, sMw, sMw, sMw, sMw, sMw, WS_G))
        dq += self.touches("s1") + self.xdma(2) + kvdma(2) + self.touches("s2")
        p("@wait vm:slab0\ns_barrier")
        self.stamp(p, "slab0")
        fw = lambda g, b: vFr + 8 * (g & 1) + 4 * b
        acc = lambda job, b, tb: 128 + 64 * job + 32 * b + 16 * tb
        def rd(g):
            r = []
            if g >= 64: return r
            sg, s = g // 4, g % 4
            def w(b):
                for half in range(2):
                    if g < 32: va, off = vWa1 + b, 16384 * (sg % 3)
                    elif GL[sg - 8] >= A_J2: va, off = vWa2 + b, GL[sg - 8] - A_J2
                    else: va, off = vWa1 + b, GL[sg - 8]
                    r.append([Ins("ds_read_b64_tr_b16 %s, v%d offset:%d" % (vr(fw(g, b) + 2 * half, 2), va, off + s * 2048 + half * 512))])
            def x(tb):
                if g < 32: r.append([Ins("ds_read_b128 %s, v%d offset:%d" % (self.xf(g, tb), vXa + s, XS[sg % 3] + 4096 * tb))])
            x(0); w(0); x(1); w(1)
            return r
        for c in rd(0): p.ext(c)
        def mfmas(g):
            return ["%s %s, %s, %s, %s" % (MF, vr(acc(g // 32, b, tb), 16), vr(fw(g, b)), self.xf(g, tb), "0" if g % 32 == 0 else vr(acc(g // 32, b, tb), 16)) for b in range(2) for tb in range(2)]
        gl, gc, gst = self.gate_job()
        t2a, t2l = self.touch2()
        if o.get("gate", o["aux"]) == "B": gl, gc, gst = [], P(), P()
        if lg:
            gl = []; gc = P()
            for sg in range(8):
                self.addside(4 * sg, [[Ins("ds_read_b128 v[112:115], v78 offset:%d" % XS[sg % 3])], [Ins("ds_read_b128 v[116:119], v79 offset:%d" % (128 * sg))]])
                self.addside(4 * sg + 2, [[Ins("v_dot2c_f32_bf16 v74, v%d, v%d" % (112 + i, 116 + i))] for i in range(4)])
            gc("v_and_b32 v6, 0x27, v1\nv_lshrrev_b32 v7, 1, v1\nv_lshl_or_b32 v21, v6, 24, v7")
            for m in ("quad_perm:[1,0,3,2]", "quad_perm:[2,3,0,1]", "row_half_mirror"): gc("v_add_f32_dpp v74, v74, v74 %s row_mask:0xf bank_mask:0xf" % m)
            gc("v_mul_f32 v2, 0x%x, v74\nv_exp_f32 v2, v2\nv_add_f32 v2, 1.0, v2\nv_rcp_f32 v20, v2" % f2u(-L2E))
        if o.get("tw", o["aux"]) == "B": t2a, t2l = P(), []
        self.addside(8, gl[:1])
        z = P(); z("s_cmp_eq_u32 s%d, 0\ns_cselect_b32 s%d, 0, 0x%x\ns_lshl_b32 s3, s%d, 2\ns_add_u32 s3, s3, s%d" % (sT, sTmp, OOB, sU, sTmp))
        z("buffer_store_dword v%d, v%d, %s, s3 offen sc1" % (vOne, vFlag, sr(sG)))
        if self.sc:
            z = P(); z("s_lshl_b32 s3, s%d, 2\ns_or_b32 s%d, s%d, s%d\ns_cbranch_scc1 Lni" % (sU, sTmp, sT, sWave))
            z("s_atomic_add s%d, s[%d:%d], s3\nLni:" % (sExp, sG, sG + 1), raw=True); z("@async")
        self.addside(o.get("ainit", 3) if self.sc else 7, [z.l])
        e = P()
        e("v_and_b32 v2, 31, v1\nv_lshrrev_b32 v3, 5, v1\nv_bfe_u32 v4, v1, 1, 2\nv_lshlrev_b32 v5, 1, v3\nv_xor_b32 v4, v4, v5\nv_lshlrev_b32 v4, 4, v4\nv_lshl_add_u32 v4, v2, 6, v4")
        e("s_lshl_b32 s3, s%d, 2\ns_lshr_b32 s%d, s%d, 1\ns_add_u32 s%d, s%d, s3" % (sC, sTmp, sWave, sTmp, sTmp))
        e("s_lshl_b32 s3, s%d, 12\ns_add_u32 s3, s3, %d\nv_add_u32 v%d, s3, v4\nv_xor_b32 v%d, 16, v%d" % (sTmp, A_PHI, aPw, aPw2, aPw))
        e("v_bfe_u32 v4, v1, 2, 1\nv_xor_b32 v4, v4, v3\nv_lshlrev_b32 v4, 4, v4\nv_lshl_add_u32 v4, v2, 5, v4")
        e("s_lshl_b32 s3, s%d, 11\ns_add_u32 s3, s3, %d\nv_add_u32 v%d, s3, v4" % (sTmp, A_V, aVw))
        e("v_lshlrev_b32 v%d, 2, v2\nv_lshl_add_u32 v%d, v3, 9, v%d" % (aAt, aAt, aAt))
        e("v_bfe_u32 v4, v1, 2, 2\nv_lshl_add_u32 v5, v3, 2, v4")
        e("v_bfe_u32 v6, v1, 1, 1\nv_bfe_u32 v7, v1, 4, 1\nv_lshl_or_b32 v8, v7, 1, v6\nv_lshrrev_b32 v9, 1, v5\nv_xor_b32 v8, v8, v9\nv_lshlrev_b32 v8, 4, v8")
        e("v_and_b32 v9, 1, v1\nv_lshl_add_u32 v8, v9, 3, v8\nv_lshl_add_u32 v8, v5, 6, v8\ns_lshl_b32 s3, s%d, 13\ns_add_u32 s3, s3, %d\nv_add_u32 v%d, s3, v8" % (sWave, A_PHI, aPr))
        e("v_xor_b32 v9, v9, v3\nv_lshlrev_b32 v9, 4, v9\nv_lshl_add_u32 v9, v6, 3, v9\nv_lshl_add_u32 v9, v5, 5, v9\ns_add_u32 s3, s%d, %d\nv_add_u32 v%d, s3, v9" % (sMx, A_V, aVr))
        e("v_add_u32 v%d, -1, v7\nv_mul_u32_u24 v%d, 0x3f80, v7\nv_lshl_or_b32 v%d, v%d, 16, v%d" % (aKeep, aOnes, aOnes, aOnes, aOnes))
        w1, w2_ = self.wphi_read()
        e.ext(self.w2_addr()); e.ext(t2a); e.ext(w1)
        self.spread(e, 11, 23)
        e = P(); e.ext(w2_); self.scalars(e, B)
        e("s_lshl_b32 s3, s%d, 1\ns_lshr_b32 s%d, s%d, 1\ns_add_u32 s3, s3, s%d\ns_mul_i32 s%d, s3, %d" % (sT, sTmp, sWave, sTmp, sHo, 245760 * self.hs))
        e("s_lshl_b32 s%d, s%d, 1\ns_add_u32 s%d, s%d, s%d\ns_add_u32 s%d, s%d, 2" % (sTmp, sC, sTmp, sTmp, sFfn, sTmp, sTmp)); self.hpos(e, sHs, sTmp)
        e("s_add_u32 s%d, s%d, 1" % (sTmp, sTmp)); self.hpos(e, sHs + 1, sTmp)
        e("s_lshl_b32 s3, s%d, 2\ns_add_u32 s3, s3, s%d\ns_mul_i32 s%d, s3, %d" % (sTT, sWave, sHo, 61440 * self.hs))
        self.spread(e, 24, 32)
        items = [(b, tb) for b in range(2) for tb in range(2)]
        vKf, vV, vPh = 96, 104, 112
        e = P()
        def prep(k):
            b, tb = items[k]; a = acc(0, b, tb); kf = vKf + 4 * (k & 1); vv = vV + 4 * (k & 1)
            for i in range(4): e("v_cvt_pk_bf16_f32 v%d, v%d, v%d" % (kf + i, a + 2 * i, a + 2 * i + 1))
            for i in range(4): e("v_cvt_pk_bf16_f32 v%d, v%d, v%d" % (vv + i, a + 8 + 2 * i, a + 9 + 2 * i))
            e("ds_write_b128 v%d, %s offset:%d" % (aVw, vr(vv), b * 4096 + tb * 1024))
            e("%s %s, %s, %s, 0" % (MF, vr(a, 16), vr(vWp + 4 * b), vr(kf)))
        e("v_subrev_u32 v%d, %d, v%d\nv_subrev_u32 v%d, %d, v%d" % (vWa1, A_KV, vWa1, vWa1 + 1, A_KV, vWa1 + 1))
        prep(0); prep(1)
        for k, (b, tb) in enumerate(items):
            ph = vPh + 8 * (k & 1)
            sm = self.softmax(acc(0, b, tb), 2, ph, pk=bool(o.get("apk", 1))).l
            e.ext(sm[:17])
            if k < 2: prep(k + 2)
            k4 = -4 if o.get("apk", 1) else -8
            e.ext(sm[17:k4])
            e("ds_write_b128 v%d, %s offset:%d" % (aPw, vr(ph), b * 8192 + tb * 2048))
            e.ext(sm[k4:])
            e("ds_write_b128 v%d, %s offset:%d" % (aPw2, vr(ph + 4), b * 8192 + tb * 2048))
        e0 = e
        z = P(); self.poll_issue(z, "init"); self.addside(29, [z.l])
        kv = 96; fa = lambda s: 128 + 8 * s
        e = P()
        for s in range(11):
            if s < 8:
                for half in range(2): e("ds_read_b64_tr_b16 %s, v%d offset:%d" % (vr(fa(s) + 2 * half, 2), aVr, s * 512 + half * 256))
                for half in range(2): e("ds_read_b64_tr_b16 %s, v%d offset:%d" % (vr(fa(s) + 4 + 2 * half, 2), aPr, s * 1024 + half * 512))
            if 2 <= s < 10:
                for i in range(4): e("v_and_or_b32 v%d, v%d, v%d, v%d" % (fa(s - 2) + i, fa(s - 2) + i, aKeep, aOnes))
            if s >= 3: e("%s %s, %s, %s, %s" % (MF, vr(kv, 16), vr(fa(s - 3)), vr(fa(s - 3) + 4), "0" if s == 3 else vr(kv, 16)))
        self.spread(e, gx, gk)
        ch = [[Ins("buffer_atomic_add_f32 v%d, v%d, %s, s%d offen offset:%d" % (kv + i, aAt, sr(sH), sKv, (8 * (i >> 2) + (i & 3)) * 128), "kvat")] for i in range(8)]
        z = P(); z("s_mov_b32 exec_hi, 0\nbuffer_atomic_add_f32 v%d, v%d, %s, s%d offen offset:2048" % (kv + 8, aAt, sr(sH), sKv), tag="kvat"); z("s_mov_b32 exec_hi, -1")
        self.stamp(z, "atom")
        ga = o.get("aat", gk + 2 if ex else gk + 1)
        self.spread(ch + [z.l] + (t2l if o.get("atz") else []), ga, ga + o.get("aan", 3))
        gg = o.get("agl", gx + 1)
        self.spread(gl[1:], gg, gg + 2)
        if ex: self.spread(gc, 46, 62)
        gf = o.get("akf", 13 if ex else 99)
        dspec = o.get("ad", "G0,G1,,G7,,,,D0.D1,D2.D3,D4.D5,D6" if ex else "G0,G1,,G4,G5.G6,G7,D0,D1,,D2,D3").split(",")
        rspec = o.get("ar", ",,,,,,,R0.R1" if ex else ",,,,,,,").split(",")
        def pre(g, p):
            sg, s = g // 4, g % 4
            if g == 32:
                self.stamp(p, "job1")
                if ex:
                    if o.get("x_nowr"): e0.l = [i for i in e0.l if not i.op.startswith("ds_write")]
                    if o.get("x_nopk"): e0.l = [i for i in e0.l if not i.op.startswith("v_pk")]
                    if o.get("x_noexp"): e0.l = [i for i in e0.l if not i.op.startswith("v_exp")]
                    self.seg(p, e0, o.get("a0", "G2.G3.G4.G5"))
                    self.stamp(p, "ksm0")
                    self.poll_check(p, "init")
                    p("@wait lg:all vm:slab%d\ns_barrier" % bars[0]); self.stamp(p, "ksm")
                    for c in rd(32): p.ext(c)
                else: self.fq += self.zones(e0.l)
            if not ex and g == gx:
                self.flush(p); self.poll_check(p, "init")
            if not ex and g == ga + 2: self.fq += self.zones(gc.l)
            if g >= 32 and s == 0: self.spread(self.w2(rspec[sg - 8]), g, g + 3)
            if s == 3 and (sg < 8 or sg in bars):
                cov = sg + 1 if sg < 7 else min([k for k in bars if k > sg] + [15])
                p("@wait lg:all%s%s%s\ns_barrier" % (" vm:slab%d" % cov if sg != 15 and not (ex and sg == 7) else "", " vm:zst?" if sg == 1 else "", " vm:kvat" if sg == gf else ""))
                if sg == gf: self.flag(p, sF2); self.stamp(p, "kvflag")
                if g == gx: self.stamp(p, "ksm")
        rel = {}
        for sg in range(16):
            def f(sg=sg):
                r = []
                if sg < 5: r += self.xdma(sg + 3) + kvdma(sg + 3) + self.touches("s%d" % (sg + 3))
                if sg == 0: r += [self.wphi_load()]
                if sg >= 5: r += self.w2(dspec[sg - 5])
                return r
            rel[4 * sg + 3] = f
        self.extra = {"T": t2l}
        rel[32] = lambda: self.w2(o.get("a1", "G6" if ex else "G2.G3"))
        rel.setdefault(ga, lambda: [])
        self.engine(p, 64, mfmas, lambda g: [] if ex and g == 31 else rd(g + 1), pre, rel, dq, lambda g: o.get("afr", 0) if g < o.get("afrg", 31) else 0, lambda g: o.get("abud", 24))
        self.stamp(p, "gemm")
        e = P(); e.ext(gst)
        for k, (b, tb) in enumerate(items):
            e.ext(self.gelu(acc(1, b, tb), 2, sHs + b, 1024 * self.hs * tb))
            if gf == 99 and k == o.get("akf2", 1):
                assert not self.sc
                e("@wait vm:kvat\ns_barrier"); self.flag(e, sF2); self.stamp(e, "kvflag")
        self.cluster(e, o.get("ast", ""))
        self.p2pre(e)
        self.seg(p, e, o.get("a2", "D7.D8.Ph"))
        self.stamp(p, "gelu")
        self.seg(p, P(), o.get("a3", ""))
        if o.get("ahf", 0) < 0:
            p("@wait vm:hst\ns_barrier")
            if gf == 100: self.flag(p, sF2)
            self.flag(p, sF1); self.stamp(p, "hflag")
            self.seg(p, P(), o.get("a3b", ""))
        elif gf == 100:
            p("@wait vm:kvat\ns_barrier"); self.flag(p, sF2); self.stamp(p, "kvflag")
        self.poll_check(p, "h")
        p("s_barrier")
        self.stamp(p, "hseen")
        self.phase2(p, B, o.get("a4", "R2.D9,R3,R4.D10,R5,R6,,R7,Pa.D11,R8.D12,R9,,R10,,R11,R12,Po.D13,D14,,,,R13,R14"), o.get("ahf", 0))
        return p
    def pathB(self):
        o = self.o; p = P(); B = self.B = True; self.side = {}
        vXa = 29; vWa = 37; vQa = 41
        self.w2_init([XS[0], B_W, XS[1], B_W + 16384, B_W + 32768] * 3, [0, 65536], {XS[0]: 27, B_W: 27, XS[1]: 31, B_W + 16384: 31, B_W + 32768: 31})
        for i in range(8): self.avail["Q%d" % i] = 0 if i < 3 else 23
        ex = o.get("bexp", 1)
        p("s_mul_i32 s%d, s%d, 7" % (sFfn, sU))
        p("s_mul_i32 s%d, s%d, %d\ns_lshl_b32 s3, s%d, 5\ns_add_u32 s%d, s%d, s3" % (sWa, sC, 32 * 2752, sFfn, sWa, sWa))
        p("s_mul_i32 s%d, s%d, 7168\ns_lshr_b32 s3, s%d, 1\ns_mul_i32 s3, s3, 14464\ns_add_u32 s%d, s%d, s3" % (sMw, sC, sWave, sMw, sMw))
        gudma = lambda sg: self.group(7, sMw, B_W + B_SW * (sg % 3), vWo, sW, sWa, 64 * 2752, "slab%d" % sg)
        qdma = lambda c: self.group(2, sMq, B_Q[c], vWo + 7, sQ, sWb, 64 * 3072, "q%d" % c)
        self.other = qdma
        g0 = gudma(0)
        for j in range(7):
            r = vWo + j
            p("v_add_u32 v6, %d, v1\nv_mul_u32_u24 v8, 4682, v6\nv_lshrrev_b32 v8, 16, v8" % (64 * j))
            p("v_mul_u32_u24 v8, %d, v8\nv_lshl_add_u32 v%d, v6, 4, v8" % (2752 - 224, r))
            if j & 3: p("v_subrev_u32 v%d, %d, v%d" % (r, 1024 * (j & 3), r))
            p.ext(g0[j])
        for c in self.touches("s0"): p.ext(c)
        self.stamp(p, "issued0")
        p("s_branch LbodyB\n@cut\nLbodyB:")
        dq = self.xdma(1) + gudma(1)
        npre = o.get("bpre", 6)
        p("s_mul_i32 s%d, s%d, %d\ns_lshl_b32 s3, s%d, 7\ns_add_u32 s%d, s%d, s3\ns_lshl_b32 s%d, s%d, 11" % (sWb, sWave, 16 * 3072, sU, sWb, sWb, sMq, sWave))
        self.common2(p, B)
        p("v_add_u32 v%d, s%d, v6" % (vXa, sMx))
        for s in range(1, 4): p("v_xor_b32 v%d, %d, v%d" % (vXa + s, s << 5, vXa))
        for s in range(4): p("v_xor_b32 v%d, 0x1000, v%d" % (vXa + 4 + s, vXa + s))
        p("s_lshl_b32 s3, s%d, 1\nv_lshl_or_b32 v9, v9, 1, v5\nv_xor_b32 v9, s3, v9\nv_lshl_add_u32 v9, v9, 5, v7\nv_lshl_add_u32 v9, v8, 7, v9" % sC)
        p("v_add_u32 v%d, %d, v9\nv_add_u32 v%d, %d, v9" % (vQa, B_Q[3], vQa + 1, B_Q[6]))
        p("v_mul_u32_u24 v9, 224, v8\nv_add_u32 v9, v9, v7\nv_mul_u32_u24 v8, 14464, v5\nv_add_u32 v9, v9, v8\ns_mul_i32 s3, s%d, 96" % sC)
        for k in range(2): p("v_add_u32 v%d, %d, v9\nv_add_u32 v%d, s3, v%d\nv_add_u32 v%d, 192, v%d" % (vWa + 2 * k + 1, B_W + 2 * k * B_SW, vWa + 2 * k, vWa + 2 * k + 1, vWa + 2 * k + 1, vWa + 2 * k + 1))
        for c in dq[:npre]: p.ext(c)
        dq = dq[npre:] + self.touches("s1") + self.xdma(2) + gudma(2) + self.touches("s2")
        p("@wait vm:slab0\ns_barrier")
        self.stamp(p, "slab0")
        fw = lambda g, b: vFr + 16 * (g & 1) + 4 * b
        fq = lambda g: vFr + 4 * (g % 4)
        acc = lambda b, tb: 144 + 32 * b + 16 * tb
        aq = lambda tb: 112 + 16 * tb
        LA = 2
        def rd(g):
            r = []
            if g >= 64: return r
            sg, s = g // 4, g % 4
            if g < 32:
                sl = sg % 3
                def w(b):
                    for half in range(2):
                        va = vWa + 2 * (sl >> 1) + (1 if b == 3 else 0); off = (sl & 1) * B_SW + s * 3584 + half * 896 + (b * 32 if b < 3 else 0)
                        r.append([Ins("ds_read_b64_tr_b16 %s, v%d offset:%d" % (vr(fw(g, b) + 2 * half, 2), va, off), "fr%d" % g)])
                def x(tb): r.append([Ins("ds_read_b128 %s, v%d offset:%d" % (self.xf(g, tb), vXa + 4 * tb + s, XS[sl]), "fr%d" % g)])
                x(0); w(0); x(1); w(1); w(2); w(3)
            else:
                c = sg - 8; k = 1 if c >= 6 else 0
                for half in range(2): r.append([Ins("ds_read_b64_tr_b16 %s, v%d offset:%d" % (vr(fq(g) + 2 * half, 2), vQa + k, B_Q[c] - B_Q[6 if k else 3] + s * 2048 + half * 512))])
            return r
        for c in rd(0): p.ext(c)
        def reads(g):
            if g < 31: return rd(g + 1)
            if g == 31: return [] if ex else sum((rd(32 + k) for k in range(LA)), [])
            return rd(g + LA)
        def mfmas(g):
            if g < 32:
                return ["%s %s, %s, %s, %s" % (MF, vr(acc(b, tb), 16), vr(fw(g, b)), self.xf(g, tb), "0" if g == 0 else vr(acc(b, tb), 16)) for b, tb in [(0, 0), (0, 1), (1, 0), (1, 1), (2, 0), (2, 1), (3, 0)]]
            return ["%s %s, %s, %s, %s" % (MF, vr(aq(tb), 16), vr(fq(g)), self.xf(g, tb), "0" if g == 32 else vr(aq(tb), 16)) for tb in range(2)]
        w1, w2_ = self.wphi_read()
        gl, gc, gst = self.gate_job(96, 100, 101, "ost")
        t2a, t2l = self.touch2()
        if o.get("gate", o["aux"]) != "B": gl, gc, gst = [], P(), P()
        if o.get("tw", o["aux"]) == "A": t2a, t2l = P(), []
        self.extra = {"T": t2l, "X": gl[1:]}
        self.addside(11, gl[:1])
        sHs = [32, 33, 34, 35, sMw, sWa, sXo]
        e = P(); e.ext(t2a); e.ext(self.w2_addr()); e.ext(w1); self.spread(e, 12, 19)
        e = P(); e.ext(w2_); self.scalars(e, B); self.spread(e, 19, 23)
        z = P(); self.poll_issue(z, "init"); self.addside(24, [z.l])
        e = P()
        e("s_lshl_b32 s3, s%d, 1\ns_lshr_b32 s%d, s%d, 1\ns_add_u32 s3, s3, s%d\ns_mul_i32 s%d, s3, %d" % (sT, sTmp, sWave, sTmp, sHo, 245760 * self.hs))
        e("s_lshl_b32 s3, s%d, %d\ns_add_u32 s%d, s%d, s3" % (sC, 9 + self.hs, sHo, sHo))
        e("s_mul_i32 s%d, s%d, 3\ns_add_u32 s%d, s%d, s%d" % (sTmp, sC, sTmp, sTmp, sFfn))
        for b in range(4):
            if b == 3: e("s_add_u32 s%d, s%d, 6" % (sTmp, sFfn))
            self.hpos(e, sHs[2 * b], sTmp)
            if b < 3: e("s_xor_b32 s%d, s%d, %d\ns_add_u32 s%d, s%d, 1" % (sHs[2 * b + 1], sHs[2 * b], 1024 * self.hs, sTmp, sTmp))
        e("s_mul_i32 s3, s%d, 60\ns_add_u32 s3, s3, s%d\ns_add_u32 s3, s3, 22\ns_lshl_b32 s3, s3, %d\ns_add_u32 s%d, s3, s%d" % (sC, sU, 10 + self.hs, sOs, sHo))
        e("s_xor_b32 s%d, s%d, %d\ns_add_u32 s%d, s%d, %d\ns_add_u32 s%d, s%d, %d" % (sOs + 1, sOs, 1024 * self.hs, sOs + 2, sOs, 61440 * self.hs, sOs + 3, sOs + 1, 61440 * self.hs))
        bD = [23, 24, 25]; bR = [16, 17, 18, 19]
        e("v_lshrrev_b32 v2, 3, v1\nv_and_b32 v3, 7, v1\nv_lshrrev_b32 v4, 4, v1\nv_xor_b32 v3, v3, v4\nv_lshlrev_b32 v3, 4, v3\nv_lshl_add_u32 v23, v2, 7, v3\nv_xor_b32 v24, 64, v23")
        e("v_lshl_or_b32 v25, v2, 24, v23")
        e("v_and_b32 v2, 31, v1\nv_min_u32 v2, 16, v2\nv_lshrrev_b32 v3, 5, v1\nv_lshlrev_b32 v3, 2, v3\nv_bfe_u32 v4, v2, 1, 3\nv_xor_b32 v3, v3, v4\nv_lshlrev_b32 v3, 4, v3\nv_lshl_add_u32 v3, v2, 7, v3")
        e("s_lshl_b32 s3, s%d, 13\ns_add_u32 s3, s3, %d\nv_add_u32 v16, s3, v3\nv_xor_b32 v17, 16, v16\nv_xor_b32 v18, 32, v16\nv_xor_b32 v19, 48, v16" % (sC, B_KZ))
        e("s_lshl_b32 s3, s%d, 2\ns_add_u32 s3, s3, s%d\ns_mul_i32 s%d, s3, %d" % (sTT, sWave, sHo, 61440 * self.hs))
        self.spread(e, 23, 31)
        e = P()
        npk = o.get("bpk", 7 if ex else 0)
        e0 = P()
        for k in range(7): (e0 if k < npk else e).ext(self.gelu(acc(k >> 1, k & 1), 2, sHs[k], 0, pk=k < npk + o.get("bhy", 7)))
        self.cluster(e0, o.get("bst", ""))
        self.stamp(e0 if npk == 7 else e, "gelu")
        e1 = e
        gh = o.get("bhf", 46 if ex else 99)
        dspec = o.get("bd", "T,Q0.Q1.Q2.Q3,,D2,D3,D4,D5,D6,D7,Pkv.D8,D9" if ex else "Q0.Q1.Q2.Q3.Q4.Q5.Q6.Q7,D0.D1,D2,D3.D4,,D5,D6,D7,D8,D9,D10").split(",")
        rspec = o.get("br", ",,R0,R1,R2,R3,R4,R5").split(",")
        def pre(g, p):
            sg, s = g // 4, g % 4
            if g == 32:
                self.stamp(p, "job1"); self.seg(p, e0, o.get("b0", "Q4.Q5.Q6.Q7.X.D0.D1" if ex else ""))
                if ex:
                    p("@wait vm:q7\ns_barrier")
                    for k in range(LA):
                        for c in rd(32 + k): p.ext(c)
                self.fq += self.zones(e1.l)
            if g >= 32 and s == 0: self.spread(self.w2(rspec[sg - 8]), g, g + 4)
            if g < 32:
                if s == 3:
                    if sg == 7: self.poll_check(p, "init")
                    p("@wait lg:all%s\ns_barrier" % (" vm:slab%d" % (sg + 1) if sg < 7 else ("" if ex else " vm:q7")))
                else: p("@wait lg:fr%d" % g)
            if g == o.get("bgc", 42): self.fq += self.zones(gc.l)
            if g == gh:
                self.flush(p)
                p("@wait vm:hst\ns_barrier"); self.flag(p, sF1); self.stamp(p, "hflag")
        rel = {}
        for sg in range(8):
            def f(sg=sg):
                r = []
                if sg < 5: r += self.xdma(sg + 3) + gudma(sg + 3) + self.touches("s%d" % (sg + 3))
                if sg == 0: r += [self.wphi_load()]
                if sg >= 5: r += self.w2(dspec[sg - 5])
                return r
            rel[4 * sg + 3] = f
        for k in range(8): rel[32 + 4 * k] = (lambda k=k: self.w2(dspec[3 + k]))
        self.engine(p, 64, mfmas, reads, pre, rel, dq, lambda g: o.get("bfr", 0) if g < o.get("bfrg", 31) else 0, lambda g: o.get("bbud", 24))
        self.stamp(p, "gemm")
        items = [(b, tb) for b in range(2) for tb in range(2)]
        vKf = 96; vKz = 208; vPh = 224
        pa = lambda k: 144 + 16 * k
        e = P(); self.p2pre(e)
        for k in (0, 2, 1, 3):
            b, tb = items[k]; a = aq(tb) + 8 * b
            for i in range(4): e("v_cvt_pk_bf16_f32 v%d, v%d, v%d" % (vKf + 4 * k + i, a + 2 * i, a + 2 * i + 1))
            e("%s %s, %s, %s, 0" % (MF, vr(pa(k), 16), vr(vWp + 4 * b), vr(vKf + 4 * k)))
        h0 = o.get("bh0", 0)
        sm = [self.softmax(pa(k), 2, vPh + 8 * k).l for k in range(4)]
        for k in range(h0): e.ext(sm[k])
        self.seg(p, e, o.get("b2", ""))
        self.poll_check(p, "kv")
        p("%ss_add_u32 m0, s%d, %d\ns_barrier" % ("@wait vm:hst\n" if gh == 99 else "", sMx, B_KZ))
        if gh == 99: self.flag(p, sF1); self.stamp(p, "hflag")
        self.stamp(p, "kvseen")
        for j in range(3): p("buffer_load_dwordx4 v%d, %s, s%d offen offset:%d sc1 lds" % (bD[j], sr(sH), sKv, 1024 * j), tag="kvz")
        e = P()
        for k in range(h0, 2): e.ext(sm[k])
        self.seg(p, e, o.get("b3", "Ph.D10.R6"))
        self.poll_check(p, "h")
        p("@wait vm:kvz\ns_barrier"); self.stamp(p, "hseen")
        kz = 112; PF = o["pf"]
        def omm(e, k):
            b = k >> 1
            e("%s %s, %s, %s, 0" % (MF, vr(pa(k), 16), vr(vKz + 8 * b), vr(vPh + 8 * k)))
            e("%s %s, %s, %s, %s" % (MF, vr(pa(k), 16), vr(vKz + 8 * b + 4), vr(vPh + 8 * k + 4), vr(pa(k), 16)))
        def ofin(e, k):
            a = pa(k)
            e("v_add_f32 v%d, 0x%x, v%d\nv_rcp_f32 v%d, v%d" % (a + 8, f2u(1e-6), a + 8, a + 8, a + 8))
            for i in range(4): e("v_pk_mul_f32 %s, %s, %s op_sel_hi:[1,0]" % (vr(a + 2 * i, 2), vr(a + 2 * i, 2), vr(a + 8, 2)))
            for i in range(4): e("v_cvt_pk_bf16_f32 v%d, v%d, v%d" % (a + 12 + i, a + 2 * i, a + 2 * i + 1))
        def ost(e, k): e("buffer_store_dwordx4 %s, v%d, %s, s%d offen sc1" % (vr(pa(k) + 12), vL16, sr(sH), sOs + k), tag="ost")
        e = P()
        for b in range(2):
            for q4 in range(4): e("ds_read_b128 %s, v%d offset:%d" % (vr(kz + 16 * b + 4 * q4), bR[q4], 4096 * b))
        e.ext(sm[2][:17])
        for b in range(2):
            for i in range(8): e("v_cvt_pk_bf16_f32 v%d, v%d, v%d" % (vKz + 8 * b + i, kz + 16 * b + 2 * i, kz + 16 * b + 2 * i + 1))
        z = P(); omm(z, 0); omm(z, 1)
        e.ext(merge(sm[2][17:33], [[i] for i in z.l], 3)); e.ext(sm[2][33:])
        e.ext(sm[3][:17])
        z = P(); omm(z, 2)
        e.ext(merge(sm[3][17:33], [[i] for i in z.l], 3)); e.ext(sm[3][33:])
        omm(e, 3)
        self.seg(p, e, o.get("b4", "H0.H1.H2.H3.H4"))
        self.stamp(p, "qsm")
        e = P()
        for k in range(4):
            ofin(e, k)
            if o.get('x_nogate', 0) < 3: ost(e, k)
        self.cluster(e, o.get("ost", ""))
        if o.get('x_nogate', 0) < 3: e.ext(gst)
        self.seg(p, e, o.get("b5", ""))
        self.phase2(p, B, o.get("b6", ",R7,,R8,,R9,,Pa.D11,D12,R10,,,,R11,R12,Po.D13,D14,,,,R13,R14"), o.get("bof", 4))
        return p
    def pathB3(self):
        o = self.o; p = P(); B = self.B = True; self.side = {}
        vXa = 29; vWa = 37; vQa = 41
        SW = 37120; W0, W1, W2 = B_W, B_W + SW, B_W + 2 * SW; B_KZ = W1 + 16384
        self.w2_init(([XS[2], W2, W2 + 16384, XS[0], W0, W0 + 16384, XS[1], W1] * 2)[:15], [0, 65536, W2],
                     {XS[2]: 23, W2: 23, W2 + 16384: 23, XS[0]: 27, W0: 27, W0 + 16384: 27, XS[1]: 31, W1: 31})
        self.rmin = lambda i: 32 if i == 14 else 0
        self.used += ["Q%d" % i for i in range(8)]
        xf = lambda g, tb: ar(240 + 8 * (g & 1) + 4 * tb)
        p("s_mul_i32 s%d, s%d, 7" % (sFfn, sU))
        p("s_mul_i32 s%d, s%d, %d\ns_lshl_b32 s3, s%d, 5\ns_add_u32 s%d, s%d, s3" % (sWa, sC, 32 * 2752, sFfn, sWa, sWa))
        p("s_mul_i32 s%d, s%d, 7168\ns_lshr_b32 s3, s%d, 1\ns_mul_i32 s3, s3, 14464\ns_add_u32 s%d, s%d, s3" % (sMw, sC, sWave, sMw, sMw))
        gudma = lambda sg: self.group(7, sMw, B_W + 8192 + SW * (sg % 3), vWo, sW, sWa, 64 * 2752, "slab%d" % sg)
        qdma = lambda sg: self.group(2, sMq, B_W + SW * (sg % 3), vWo + 7, sQ, sWb, 64 * 3072, "slab%d" % sg)
        p("s_mul_i32 s%d, s%d, %d\ns_lshl_b32 s3, s%d, 7\ns_add_u32 s%d, s%d, s3\ns_lshl_b32 s%d, s%d, 11" % (sWb, sWave, 16 * 3072, sU, sWb, sWb, sMq, sWave))
        p("v_lshlrev_b32 v6, 2, v5\nv_xor_b32 v6, v3, v6\nv_lshlrev_b32 v7, 4, v6\nv_mul_u32_u24 v6, 3072, v2\nv_add_u32 v%d, v6, v7\nv_add_u32 v%d, %d, v%d" % (vWo + 7, vWo + 8, 8 * 3072 - 1024, vWo + 7))
        for c in qdma(0): p.ext(c)
        g0 = gudma(0)
        for j in range(7):
            r = vWo + j
            p("v_add_u32 v6, %d, v1\nv_mul_u32_u24 v8, 4682, v6\nv_lshrrev_b32 v8, 16, v8" % (64 * j))
            p("v_mul_u32_u24 v8, %d, v8\nv_lshl_add_u32 v%d, v6, 4, v8" % (2752 - 224, r))
            if j & 3: p("v_subrev_u32 v%d, %d, v%d" % (r, 1024 * (j & 3), r))
            p.ext(g0[j])
        for c in self.touches("s0"): p.ext(c)
        self.stamp(p, "issued0")
        p("s_branch LbodyB\n@cut\nLbodyB:")
        dq = self.xdma(1) + qdma(1) + gudma(1)
        npre = o.get("bpre", 6)
        self.common2(p, 2)
        p("v_add_u32 v%d, s%d, v6" % (vXa, sMx))
        for s in range(1, 4): p("v_xor_b32 v%d, %d, v%d" % (vXa + s, s << 5, vXa))
        for s in range(4): p("v_xor_b32 v%d, 0x1000, v%d" % (vXa + 4 + s, vXa + s))
        p("s_lshl_b32 s3, s%d, 1\nv_lshl_or_b32 v9, v9, 1, v5\nv_xor_b32 v9, s3, v9\nv_lshl_add_u32 v9, v9, 5, v7\nv_lshl_add_u32 v9, v8, 7, v9" % sC)
        p("v_add_u32 v%d, %d, v9\nv_add_u32 v%d, %d, v9" % (vQa, W0, vQa + 1, W2))
        p("v_mul_u32_u24 v9, 224, v8\nv_add_u32 v9, v9, v7\nv_mul_u32_u24 v8, 14464, v5\nv_add_u32 v9, v9, v8\ns_mul_i32 s3, s%d, 96" % sC)
        for k in range(2): p("v_add_u32 v%d, %d, v9\nv_add_u32 v%d, s3, v%d\nv_add_u32 v%d, 192, v%d" % (vWa + 2 * k + 1, B_W + 8192 + 2 * k * SW, vWa + 2 * k, vWa + 2 * k + 1, vWa + 2 * k + 1, vWa + 2 * k + 1))
        for c in dq[:npre]: p.ext(c)
        dq = dq[npre:] + self.touches("s1") + self.xdma(2) + qdma(2) + gudma(2) + self.touches("s2")
        p("@wait vm:slab0\ns_barrier")
        self.stamp(p, "slab0")
        fw = lambda g, b: vFr + 16 * (g & 1) + 4 * b
        fq = lambda g: 232 + 4 * (g & 1)
        acc = lambda b, tb: 144 + 32 * b + 16 * tb
        aq = lambda tb: 112 + 16 * tb
        def rd(g):
            r = []
            if g >= 32: return r
            sg, s = g // 4, g % 4; sl = sg % 3
            def w(b):
                for half in range(2):
                    va = vWa + 2 * (sl >> 1) + (1 if b == 3 else 0); off = (sl & 1) * SW + s * 3584 + half * 896 + (b * 32 if b < 3 else 0)
                    r.append([Ins("ds_read_b64_tr_b16 %s, v%d offset:%d" % (vr(fw(g, b) + 2 * half, 2), va, off), "fr%d" % g)])
            def x(tb): r.append([Ins("ds_read_b128 %s, v%d offset:%d" % (xf(g, tb), vXa + 4 * tb + s, XS[sl]), "fr%d" % g)])
            x(0); w(0); x(1); w(1); w(2); w(3)
            for half in range(2): r.append([Ins("ds_read_b64_tr_b16 %s, v%d offset:%d" % (ar(fq(g) + 2 * half, 2), vQa + (sl >> 1), (sl & 1) * SW + s * 2048 + half * 512), "fr%d" % g)])
            return r
        for c in rd(0): p.ext(c)
        reads = lambda g: rd(g + 1)
        def mfmas(g):
            return (["%s %s, %s, %s, %s" % (MF, vr(acc(b, tb), 16), vr(fw(g, b)), xf(g, tb), "0" if g == 0 else vr(acc(b, tb), 16)) for b, tb in [(0, 0), (0, 1), (1, 0), (1, 1), (2, 0), (2, 1), (3, 0)]]
                  + ["%s %s, %s, %s, %s" % (MF, vr(aq(tb), 16), ar(fq(g)), xf(g, tb), "0" if g == 0 else vr(aq(tb), 16)) for tb in range(2)])
        w1, w2_ = self.wphi_read()
        gl, gc, gst = self.gate_job(80, 100, 101, "ost")
        t2a, t2l = self.touch2()
        if o.get("gate", o["aux"]) != "B": gl, gc, gst = [], P(), P()
        if o.get("tw", o["aux"]) == "A": t2a, t2l = P(), []
        self.extra = {"T": t2l, "X": gl[1:]}
        self.addside(11, gl[:1])
        sHs = [32, 33, 34, 35, sMw, sWa, sXo]
        e = P(); e.ext(t2a); e.ext(self.w2_addr()); e.ext(w1); self.spread(e, 12, 19)
        e = P(); e.ext(w2_); self.scalars(e, B); self.spread(e, 19, 23)
        z = P(); self.poll_issue(z, "init"); self.addside(24, [z.l])
        e = P()
        e("s_lshl_b32 s3, s%d, 1\ns_lshr_b32 s%d, s%d, 1\ns_add_u32 s3, s3, s%d\ns_mul_i32 s%d, s3, %d" % (sT, sTmp, sWave, sTmp, sHo, 245760 * self.hs))
        e("s_lshl_b32 s3, s%d, %d\ns_add_u32 s%d, s%d, s3" % (sC, 9 + self.hs, sHo, sHo))
        e("s_mul_i32 s%d, s%d, 3\ns_add_u32 s%d, s%d, s%d" % (sTmp, sC, sTmp, sTmp, sFfn))
        for b in range(4):
            if b == 3: e("s_add_u32 s%d, s%d, 6" % (sTmp, sFfn))
            self.hpos(e, sHs[2 * b], sTmp)
            if b < 3: e("s_xor_b32 s%d, s%d, %d\ns_add_u32 s%d, s%d, 1" % (sHs[2 * b + 1], sHs[2 * b], 1024 * self.hs, sTmp, sTmp))
        e("s_mul_i32 s3, s%d, 60\ns_add_u32 s3, s3, s%d\ns_add_u32 s3, s3, 22\ns_lshl_b32 s3, s3, %d\ns_add_u32 s%d, s3, s%d" % (sC, sU, 10 + self.hs, sOs, sHo))
        e("s_xor_b32 s%d, s%d, %d\ns_add_u32 s%d, s%d, %d\ns_add_u32 s%d, s%d, %d" % (sOs + 1, sOs, 1024 * self.hs, sOs + 2, sOs, 61440 * self.hs, sOs + 3, sOs + 1, 61440 * self.hs))
        bD = [23, 24, 25]; bR = [16, 17, 18, 19]
        e("v_lshrrev_b32 v2, 3, v1\nv_and_b32 v3, 7, v1\nv_lshrrev_b32 v4, 4, v1\nv_xor_b32 v3, v3, v4\nv_lshlrev_b32 v3, 4, v3\nv_lshl_add_u32 v23, v2, 7, v3\nv_xor_b32 v24, 64, v23")
        e("v_lshl_or_b32 v25, v2, 24, v23")
        e("v_and_b32 v2, 31, v1\nv_min_u32 v2, 16, v2\nv_lshrrev_b32 v3, 5, v1\nv_lshlrev_b32 v3, 2, v3\nv_bfe_u32 v4, v2, 1, 3\nv_xor_b32 v3, v3, v4\nv_lshlrev_b32 v3, 4, v3\nv_lshl_add_u32 v3, v2, 7, v3")
        e("s_lshl_b32 s3, s%d, 13\ns_add_u32 s3, s3, %d\nv_add_u32 v16, s3, v3\nv_xor_b32 v17, 16, v16\nv_xor_b32 v18, 32, v16\nv_xor_b32 v19, 48, v16" % (sC, B_KZ))
        e("s_lshl_b32 s3, s%d, 2\ns_add_u32 s3, s3, s%d\ns_mul_i32 s%d, s3, %d" % (sTT, sWave, sHo, 61440 * self.hs))
        self.spread(e, 23, 31)
        dspec = o.get("bd", "T.D0,D1.D2.D3,D4").split(",")
        rspec = o.get("br", ",R0").split(",")
        def pre(g, p):
            sg, s = g // 4, g % 4
            if g >= 24 and s == 0: self.spread(self.w2(rspec[sg - 6]), g, g + 3)
            if s == 3:
                if sg == 7: self.poll_check(p, "init")
                p("@wait lg:all%s\ns_barrier" % (" vm:slab%d" % (sg + 1) if sg < 7 else ""))
            else: p("@wait lg:fr%d" % g)
        rel = {}
        for sg in range(8):
            def f(sg=sg):
                r = []
                if sg < 5: r += self.xdma(sg + 3) + qdma(sg + 3) + gudma(sg + 3) + self.touches("s%d" % (sg + 3))
                if sg == 0: r += [self.wphi_load()]
                if sg >= 5: r += self.w2(dspec[sg - 5])
                return r
            rel[4 * sg + 3] = f
        self.engine(p, 32, mfmas, reads, pre, rel, dq, lambda g: 0)
        self.stamp(p, "gemm")
        items = [(b, tb) for b in range(2) for tb in range(2)]
        vKf = 96; vKz = 208; vPh = 224
        pa = lambda k: 144 + 16 * k
        e = P()
        for k in range(7): e.ext(self.gelu(acc(k >> 1, k & 1), 2, sHs[k], 0))
        self.seg(p, e, o.get("b0", "D5.X.D6.D7"))
        self.stamp(p, "gelu")
        e = P(); self.p2pre(e)
        for k in (0, 2, 1, 3):
            b, tb = items[k]; a = aq(tb) + 8 * b
            for i in range(4): e("v_cvt_pk_bf16_f32 v%d, v%d, v%d" % (vKf + 4 * k + i, a + 2 * i, a + 2 * i + 1))
            e("%s %s, %s, %s, 0" % (MF, vr(pa(k), 16), vr(vWp + 4 * b), vr(vKf + 4 * k)))
        sm = [self.softmax(pa(k), 2, vPh + 8 * k).l for k in range(4)]
        work = [gc.l] + sm
        n1, n2 = o.get("bn1", 2), o.get("bn2", 4)
        for w in work[:n1]: e.ext(w)
        self.seg(p, e, o.get("b1", "D8.R1.D9"))
        p("@wait vm:hst\ns_barrier"); self.flag(p, sF1); self.stamp(p, "hflag")
        e = P()
        for w in work[n1:n2]: e.ext(w)
        self.seg(p, e, o.get("b2", "R2.D10.R3.Pkv.R4"))
        self.poll_check(p, "kv")
        p("s_add_u32 m0, s%d, %d\ns_barrier" % (sMx, B_KZ))
        self.stamp(p, "kvseen")
        for j in range(3): p("buffer_load_dwordx4 v%d, %s, s%d offen offset:%d sc1 lds" % (bD[j], sr(sH), sKv, 1024 * j), tag="kvz")
        e = P()
        for w in work[n2:]: e.ext(w)
        self.seg(p, e, o.get("b3", "Ph.R5.R6.R7"))
        self.poll_check(p, "h")
        p("@wait vm:kvz\ns_barrier"); self.stamp(p, "hseen")
        kz = 112; PF = o["pf"]
        def omm(e, k):
            b = k >> 1
            e("%s %s, %s, %s, 0" % (MF, vr(pa(k), 16), vr(vKz + 8 * b), vr(vPh + 8 * k)))
            e("%s %s, %s, %s, %s" % (MF, vr(pa(k), 16), vr(vKz + 8 * b + 4), vr(vPh + 8 * k + 4), vr(pa(k), 16)))
        def ofin(e, k):
            a = pa(k)
            e("v_add_f32 v%d, 0x%x, v%d\nv_rcp_f32 v%d, v%d" % (a + 8, f2u(1e-6), a + 8, a + 8, a + 8))
            for i in range(4): e("v_pk_mul_f32 %s, %s, %s op_sel_hi:[1,0]" % (vr(a + 2 * i, 2), vr(a + 2 * i, 2), vr(a + 8, 2)))
            for i in range(4): e("v_cvt_pk_bf16_f32 v%d, v%d, v%d" % (a + 12 + i, a + 2 * i, a + 2 * i + 1))
        def ost(e, k): e("buffer_store_dwordx4 %s, v%d, %s, s%d offen sc1" % (vr(pa(k) + 12), vL16, sr(sH), sOs + k), tag="ost")
        e = P()
        for b in range(2):
            for q4 in range(4): e("ds_read_b128 %s, v%d offset:%d" % (vr(kz + 16 * b + 4 * q4), bR[q4], 4096 * b))
        for b in range(2):
            for i in range(8): e("v_cvt_pk_bf16_f32 v%d, v%d, v%d" % (vKz + 8 * b + i, kz + 16 * b + 2 * i, kz + 16 * b + 2 * i + 1))
            omm(e, 2 * b); omm(e, 2 * b + 1)
        self.seg(p, e, o.get("b4", "H0.H1.H2.H3.H4"))
        self.stamp(p, "qsm")
        e = P()
        for k in range(4):
            ofin(e, k)
            if o.get('x_nogate', 0) < 3: ost(e, k)
        self.cluster(e, o.get("ost", ""))
        if o.get('x_nogate', 0) < 3: e.ext(gst)
        self.seg(p, e, o.get("b5", ""))
        self.phase2(p, B, o.get("b6", ",R8,,R9,,R10,,Pa.D11,D12,,,,,R11,R12,Po.D13,D14,,,,R13,R14"), o.get("bof", 4))
        return p
    def pathB2(self):
        o = self.o; p = P(); B = self.B = True; self.side = {}
        vXa = 28; vWa = 36; vQa = 41; vQo = 42
        QS = 49152; GS = 73728; KZ = 147968
        er = o.get("ber", 0)
        av = {XS[2]: 23, XS[0]: 27, XS[1]: 31, QS: 31, 131584: 55, GS: 59, 90112: 63, 106496: 63}
        self.w2_init(([XS[2], XS[0], XS[1], QS, 131584, GS, 90112, 106496] * 2)[:15], [0, GS], av)
        for i in range(8): av["G%d" % i] = 0 if i < 3 else 4 * i + 23
        p("s_mul_i32 s%d, s%d, %d\ns_lshl_b32 s3, s%d, 7\ns_add_u32 s%d, s%d, s3\ns_lshl_b32 s%d, s%d, 11" % (sWb, sWave, 16 * 3072, sU, sWb, sWb, sMq, sWave))
        p("v_lshlrev_b32 v6, 2, v5\nv_xor_b32 v6, v3, v6\nv_lshlrev_b32 v7, 4, v6\nv_mul_u32_u24 v6, 3072, v2\nv_add_u32 v%d, v6, v7\nv_add_u32 v%d, %d, v%d" % (vQo, vQo + 1, 8 * 3072 - 1024, vQo))
        gudma = lambda m: self.group(7, sMw, GS + B_SW * (m % 3), vWo, sW, sWa, 64 * 2752, "slab%d" % (8 + m))
        qdma = lambda sg: self.group(2, sMq, QS + 8192 * (sg % 3), vQo, sQ, sWb, 64 * 3072, "slab%d" % sg)
        self.other = gudma
        for c in qdma(0) + self.touches("s0"): p.ext(c)
        self.stamp(p, "issued0")
        dq = self.xdma(1) + qdma(1) + self.touches("s1") + self.xdma(2) + qdma(2) + self.touches("s2")
        npre = o.get("bpre", 6)
        for c in dq[:npre]: p.ext(c)
        dq = dq[npre:]
        p("s_branch LbodyB\n@cut\nLbodyB:")
        self.common2(p, 2)
        p("v_add_u32 v%d, s%d, v6" % (vXa, sMx))
        for s in range(1, 4): p("v_xor_b32 v%d, %d, v%d" % (vXa + s, s << 5, vXa))
        for s in range(4): p("v_xor_b32 v%d, 0x1000, v%d" % (vXa + 4 + s, vXa + s))
        p("s_lshl_b32 s3, s%d, 1\nv_lshl_or_b32 v9, v9, 1, v5\nv_xor_b32 v9, s3, v9\nv_lshl_add_u32 v9, v9, 5, v7\nv_lshl_add_u32 v9, v8, 7, v9" % sC)
        p("v_add_u32 v%d, %d, v9" % (vQa, QS))
        p("v_mul_u32_u24 v9, 224, v8\nv_add_u32 v9, v9, v7\nv_mul_u32_u24 v8, 14464, v5\nv_add_u32 v9, v9, v8\ns_mul_i32 s3, s%d, 96" % sC)
        for k in range(2): p("v_add_u32 v%d, %d, v9\nv_add_u32 v%d, s3, v%d\nv_add_u32 v%d, 192, v%d" % (vWa + 2 * k + 1, GS + 2 * k * B_SW, vWa + 2 * k, vWa + 2 * k + 1, vWa + 2 * k + 1, vWa + 2 * k + 1))
        p("s_mul_i32 s%d, s%d, 7" % (sFfn, sU))
        p("s_mul_i32 s%d, s%d, %d\ns_lshl_b32 s3, s%d, 5\ns_add_u32 s%d, s%d, s3" % (sWa, sC, 32 * 2752, sFfn, sWa, sWa))
        p("s_mul_i32 s%d, s%d, 7168\ns_lshr_b32 s3, s%d, 1\ns_mul_i32 s3, s3, 14464\ns_add_u32 s%d, s%d, s3" % (sMw, sC, sWave, sMw, sMw))
        for j in range(7):
            r = vWo + j
            p("v_add_u32 v6, %d, v1\nv_mul_u32_u24 v8, 4682, v6\nv_lshrrev_b32 v8, 16, v8" % (64 * j))
            p("v_mul_u32_u24 v8, %d, v8\nv_lshl_add_u32 v%d, v6, 4, v8" % (2752 - 224, r))
            if j & 3: p("v_subrev_u32 v%d, %d, v%d" % (r, 1024 * (j & 3), r))
        if er:
            for c in dq: p.ext(c)
            dq = []
        p("@wait vm:slab0\ns_barrier")
        self.stamp(p, "slab0")
        fw = lambda g, b: vFr + 16 * (g & 1) + 4 * b
        fq = lambda g: vFr + 4 * (g % 8)
        acc = lambda b, tb: 144 + 32 * b + 16 * tb
        aq = lambda tb: 112 + 16 * tb
        def rd(g):
            r = []
            if g >= 64: return r
            sg, s = g // 4, g % 4
            if g < 32:
                x = lambda tb: r.append([Ins("ds_read_b128 %s, v%d offset:%d" % (self.xf(g, tb), vXa + 4 * tb + s, XS[sg % 3]))])
                x(0)
                for half in range(2): r.append([Ins("ds_read_b64_tr_b16 %s, v%d offset:%d" % (vr(fq(g) + 2 * half, 2), vQa, 8192 * (sg % 3) + s * 2048 + half * 512))])
                x(1)
            else:
                sl = (sg - 8) % 3
                for b in range(4):
                    for half in range(2):
                        va = vWa + 2 * (sl >> 1) + (1 if b == 3 else 0); off = (sl & 1) * B_SW + s * 3584 + half * 896 + (b * 32 if b < 3 else 0)
                        r.append([Ins("ds_read_b64_tr_b16 %s, v%d offset:%d" % (vr(fw(g, b) + 2 * half, 2), va, off), "fr%d" % g)])
            return r
        for g in range(4):
            for c in rd(g): p.ext(c)
        def reads(g):
            if g < 31: return sum((rd(g + k) for k in range(1, 5)), []) if g % 4 == 3 else []
            return rd(g + 1)
        def mfmas(g):
            if g >= 32:
                return ["%s %s, %s, %s, %s" % (MF, vr(acc(b, tb), 16), vr(fw(g, b)), self.xf(g, tb), "0" if g == 32 else vr(acc(b, tb), 16)) for b, tb in [(0, 0), (0, 1), (1, 0), (1, 1), (2, 0), (2, 1), (3, 0)]]
            return ["%s %s, %s, %s, %s" % (MF, vr(aq(tb), 16), vr(fq(g)), self.xf(g, tb), "0" if g == 0 else vr(aq(tb), 16)) for tb in range(2)]
        w1, w2_ = self.wphi_read()
        gl, gc, gst = self.gate_job(112, 100, 101, "ost", 27, 55)
        t2a, t2l = self.touch2()
        if o.get("gate", o["aux"]) != "B": gl, gc, gst = [], P(), P()
        if o.get("tw", o["aux"]) == "A": t2a, t2l = P(), []
        self.extra = {"T": t2l, "X": gl[1:]}
        self.addside(11, gl[:1])
        e = P(); e.ext(t2a); e.ext(self.w2_addr()); e.ext(w1); self.spread(e, 12, 24)
        e = P(); e.ext(w2_); self.scalars(e, B); self.spread(e, 24, 31)
        sHs = [36, 37, 38, 39, sWb, sMq, sXo]
        z = P()
        z("s_lshl_b32 s3, s%d, 1\ns_lshr_b32 s%d, s%d, 1\ns_add_u32 s3, s3, s%d\ns_mul_i32 s%d, s3, %d" % (sT, sTmp, sWave, sTmp, sHo, 245760 * self.hs))
        z("s_lshl_b32 s3, s%d, %d\ns_add_u32 s%d, s%d, s3" % (sC, 9 + self.hs, sHo, sHo))
        z("s_mul_i32 s%d, s%d, 3\ns_add_u32 s%d, s%d, s%d" % (sTmp, sC, sTmp, sTmp, sFfn))
        for b in range(4):
            if b == 3: z("s_add_u32 s%d, s%d, 6" % (sTmp, sFfn))
            self.hpos(z, sHs[2 * b], sTmp)
            if b < 3: z("s_xor_b32 s%d, s%d, %d\ns_add_u32 s%d, s%d, 1" % (sHs[2 * b + 1], sHs[2 * b], 1024 * self.hs, sTmp, sTmp))
        z("s_mul_i32 s3, s%d, 60\ns_add_u32 s3, s3, s%d\ns_add_u32 s3, s3, 22\ns_lshl_b32 s3, s3, %d\ns_add_u32 s%d, s3, s%d" % (sC, sU, 10 + self.hs, sOs, sHo))
        z("s_xor_b32 s%d, s%d, %d\ns_add_u32 s%d, s%d, %d\ns_add_u32 s%d, s%d, %d" % (sOs + 1, sOs, 1024 * self.hs, sOs + 2, sOs, 61440 * self.hs, sOs + 3, sOs + 1, 61440 * self.hs))
        z("s_lshl_b32 s3, s%d, 2\ns_add_u32 s3, s3, s%d\ns_mul_i32 s%d, s3, %d" % (sTT, sWave, sHo, 61440 * self.hs))
        items = [(b, tb) for b in range(2) for tb in range(2)]
        phi = [(128, 132), (136, 140), (28, 32), (16, 40)]; kf = [32, 40, 28, 16]
        e1 = P(); n = len(z.l)
        e1.ext(z.l[:n // 5])
        for k in (0, 2, 1, 3):
            b, tb = items[k]; a = aq(tb) + 8 * b
            for i in range(4): e1("v_cvt_pk_bf16_f32 v%d, v%d, v%d" % (kf[k] + i, a + 2 * i, a + 2 * i + 1))
        for k, (b, tb) in enumerate(items):
            e1("%s %s, %s, %s, 0" % (MF, vr(112, 16), vr(vWp + 4 * b), vr(kf[k])))
            e1.ext(z.l[(k + 1) * n // 5:(k + 2) * n // 5])
            e1.ext(self.softmax(112, 2, phi[k], pk=bool(o.get("bqpk", 0))))
        self.stamp(e1, "qsm")
        bD = [20, 21, 22]; bR = [23, 24, 25, 26]
        e2 = P()
        e2("v_lshrrev_b32 v2, 3, v1\nv_and_b32 v3, 7, v1\nv_lshrrev_b32 v4, 4, v1\nv_xor_b32 v3, v3, v4\nv_lshlrev_b32 v3, 4, v3\nv_lshl_add_u32 v20, v2, 7, v3\nv_xor_b32 v21, 64, v20")
        e2("v_lshl_or_b32 v22, v2, 24, v20")
        e2("v_and_b32 v2, 31, v1\nv_min_u32 v2, 16, v2\nv_lshrrev_b32 v3, 5, v1\nv_lshlrev_b32 v3, 2, v3\nv_bfe_u32 v4, v2, 1, 3\nv_xor_b32 v3, v3, v4\nv_lshlrev_b32 v3, 4, v3\nv_lshl_add_u32 v3, v2, 7, v3")
        e2("s_lshl_b32 s3, s%d, 13\ns_add_u32 s3, s3, %d\nv_add_u32 v23, s3, v3\nv_xor_b32 v24, 16, v23\nv_xor_b32 v25, 32, v23\nv_xor_b32 v26, 48, v23" % (sC, KZ))
        z = P(); self.poll_issue(z, "init"); self.addside(44, [z.l])
        dspec = o.get("bd", "G0,G1,G2,G3,G4,G5,G6,G7,T.X.D0,D1.D2.D3,D4").split(",")
        rspec = o.get("br", ",,,,,,,R0").split(",")
        def pre(g, p):
            sg, s = g // 4, g % 4
            if g == 32: self.stamp(p, "job1"); self.fq += self.zones(e1.l)
            if g >= 32 and s == 0: self.spread(self.w2(rspec[sg - 8]), g, g + 3)
            if g == 55:
                assert "G7" in self.used
                self.flush(p); self.nfl = self.nflush
                self.fq += self.zones(e2.l)
            if g == 60: self.fq += self.zones(gc.l)
            if s == 3:
                if sg == 12: self.poll_check(p, "init")
                p("@wait lg:all%s\ns_barrier" % (" vm:slab%d" % (sg + 1) if sg < 15 else ""))
            elif g >= 32: p("@wait lg:fr%d" % g)
            elif er and s == 0 and sg < 5: p("@wait lg:all\ns_barrier")
        rel = {}
        for sg in range(16):
            def f(sg=sg):
                r = []
                if sg < 5: r += self.xdma(sg + 3) + qdma(sg + 3) + self.touches("s%d" % (sg + 3))
                if sg == 0: r += [self.wphi_load()]
                if sg >= 5: r += self.w2(dspec[sg - 5])
                return r
            rel[4 * sg + (0 if er and sg < 8 else 3)] = f
        self.engine(p, 64, mfmas, reads, pre, rel, dq, lambda g: o.get("bfr", 2) if g < o.get("bfrg", 31) else 0, lambda g: o.get("bbud", 24))
        self.stamp(p, "gemm")
        e = P()
        for k in range(7): e.ext(self.gelu(acc(k >> 1, k & 1), 2, sHs[k], 0))
        self.seg(p, e, o.get("b0", "D5.D6.D7.D8"))
        self.stamp(p, "gelu")
        self.seg(p, P(), o.get("b1", "R1.R2.Pkv.D9.R3.R4.R5"))
        p("@wait vm:hst\ns_barrier"); self.flag(p, sF1); self.stamp(p, "hflag")
        self.seg(p, P(), o.get("b2", ""))
        self.poll_check(p, "kv")
        p("s_add_u32 m0, s%d, %d\ns_barrier" % (sMx, KZ))
        self.stamp(p, "kvseen")
        for j in range(3): p("buffer_load_dwordx4 v%d, %s, s%d offen offset:%d sc1 lds" % (bD[j], sr(sH), sKv, 1024 * j), tag="kvz")
        self.seg(p, P(), o.get("b3", "D10.R6.R7.R8.Ph"))
        p("@wait vm:kvz\ns_barrier")
        vKz = 208; kz = 224; pa = lambda k: 144 + 16 * k
        e = P()
        for b in range(2):
            for q4 in range(4): e("ds_read_b128 %s, v%d offset:%d" % (vr(kz + 16 * b + 4 * q4), bR[q4], 4096 * b))
        for b in range(2):
            for i in range(8): e("v_cvt_pk_bf16_f32 v%d, v%d, v%d" % (vKz + 8 * b + i, kz + 16 * b + 2 * i, kz + 16 * b + 2 * i + 1))
            for k in (2 * b, 2 * b + 1):
                e("%s %s, %s, %s, 0" % (MF, vr(pa(k), 16), vr(vKz + 8 * b), vr(phi[k][0])))
                e("%s %s, %s, %s, %s" % (MF, vr(pa(k), 16), vr(vKz + 8 * b + 4), vr(phi[k][1]), vr(pa(k), 16)))
        self.seg(p, e, o.get("b4", ""))
        early = o.get("bearly", 0)
        if early: self.poll_check(p, "h"); p("s_barrier"); self.stamp(p, "hseen")
        e = P()
        for k in range(4):
            a = pa(k)
            e("v_add_f32 v%d, 0x%x, v%d\nv_rcp_f32 v%d, v%d" % (a + 8, f2u(1e-6), a + 8, a + 8, a + 8))
            for i in range(4): e("v_pk_mul_f32 %s, %s, %s op_sel_hi:[1,0]" % (vr(a + 2 * i, 2), vr(a + 2 * i, 2), vr(a + 8, 2)))
            for i in range(4): e("v_cvt_pk_bf16_f32 v%d, v%d, v%d" % (a + 12 + i, a + 2 * i, a + 2 * i + 1))
            e("buffer_store_dwordx4 %s, v%d, %s, s%d offen sc1" % (vr(a + 12), vL16, sr(sH), sOs + k), tag="ost")
        e.ext(gst); self.p2pre(e)
        self.seg(p, e, o.get("b5", ""))
        if not early: self.poll_check(p, "h"); p("s_barrier"); self.stamp(p, "hseen")
        self.phase2(p, B, o.get("b6", ",R9,,R10,,,,Pa.D11,D12,,,,,R11,R12,Po.D13,D14,,,,R13,R14"), o.get("bof", 0))
        return p
    vDm, vGo, vG, vG1 = 29, 30, 4, 32
    hf = staticmethod(lambda st, tb: 56 + 8 * (st % 9) + 4 * tb)
    def p2pre(self, e):
        e("s_lshr_b32 s3, s%d, 1\ns_lshl_b32 s3, s3, 30\nv_add_u32 v%d, s3, v%d\nv_and_b32 v%d, 31, v1\nv_lshlrev_b32 v%d, 2, v%d" % (sWave, self.vDm, vL16, self.vGo, self.vGo, self.vGo))
        if self.hs == 2: e("v_add_u32 v31, 4096, v%d" % vL16)
    def hload(self, st):
        q = P()
        if self.hs == 2:
            for tb in range(2):
                q("buffer_load_dwordx4 %s, v%d, %s, s%d offen offset:%d sc1" % (vr(self.hf(st, tb)), self.vDm if st == 13 else vL16, sr(sH), sHo, tb * 2048))
            q("s_add_u32 s%d, s%d, 4096" % (sHo, sHo))
            return q
        for tb in range(2):
            q("buffer_load_dwordx4 %s, v%d, %s, s%d offen offset:%d sc1" % (vr(self.hf(st, tb)), self.vDm if st == 13 else vL16, sr(sH), sHo, (st & 1) * 2048 + tb * 1024))
        if st & 1: q("s_add_u32 s%d, s%d, 4096" % (sHo, sHo))
        return q
    def phase2(self, p, B, spec, fat):
        o = self.o; PF = o["pf"]; hf = self.hf; vG, vG1, vGo = self.vG, self.vG1, self.vGo
        auto = "Pa" not in spec; spec = spec.split(","); wp = o.get("wpoll", 0)
        if wp: p("v_lshrrev_b32 v2, 3, v1\nv_lshlrev_b32 v3, 7, v1\nv_lshl_or_b32 v%d, v2, 24, v3\ns_movk_i32 s%d, 0xff" % (vPoll8, sE8))
        assert self.nh <= 7
        for st in range(self.nh, PF): p.ext(self.hload(st))
        a2 = lambda part, cb, tb: 128 + 64 * part + 32 * cb + 16 * tb
        wa = [16, 17, 18, 19]; ra = [20, 21]; oa = 22
        ad = P()
        ad("v_and_b32 v2, 15, v1\nv_lshrrev_b32 v3, 5, v1\nv_and_b32 v8, 7, v1\nv_xor_b32 v3, v3, v8\nv_lshlrev_b32 v3, 4, v3\nv_lshl_add_u32 v3, v2, 8, v3\nv_bfe_u32 v2, v1, 4, 1\nv_lshl_add_u32 v3, v2, 14, v3")
        ad("v_add_u32 v16, s%d, v3\nv_xor_b32 v17, 32, v16\nv_xor_b32 v18, 64, v16\nv_xor_b32 v19, 0x60, v16" % sMx)
        ad("v_lshrrev_b32 v2, 3, v0\nv_and_b32 v3, 7, v2\nv_lshlrev_b32 v9, 1, v8\nv_xor_b32 v3, v3, v9\nv_lshlrev_b32 v3, 4, v3\nv_and_b32 v9, 15, v2\nv_lshl_add_u32 v3, v9, 8, v3\nv_lshrrev_b32 v9, 7, v0\nv_lshl_add_u32 v20, v9, 14, v3\nv_xor_b32 v21, 16, v20")
        ad("v_lshlrev_b32 v8, 4, v8\nv_lshl_add_u32 v22, v2, 10, v8")
        oreg = lambda j, tb: hf(22 + (tb * 8 + j) // 2, (tb * 8 + j) & 1)
        def oload(n):
            q = P()
            for k in (2 * n, 2 * n + 1):
                tb, j = k // 8, k % 8
                if self.hs == 2: q("buffer_load_dwordx4 %s, v%d, %s, s%d offen offset:%d sc1" % (vr(oreg(j, tb)), 31 if j & 1 else vL16, sr(sH), sHo, tb * 2048))
                else: q("buffer_load_dwordx4 %s, v%d, %s, s%d offen offset:%d sc1" % (vr(oreg(j, tb)), vL16, sr(sH), sHo, (j & 1) * 2048 + tb * 1024))
            if n == 3: q("s_sub_u32 s%d, s%d, %d" % (sHo, sHo, 3 * 4096 * self.hs))
            elif n < 7: q("s_add_u32 s%d, s%d, %d" % (sHo, sHo, 4096 * self.hs))
            return q
        def scale(tb):
            q = P()
            q("v_sub_f32 v%d, 1.0, v%d" % (vG1 + 2 * tb, vG + 2 * tb))
            for cb in range(2):
                for i in range(16): q("v_mul_f32 v%d, v%d, v%d" % (a2(0, cb, tb) + i, a2(0, cb, tb) + i, vG1 + 2 * tb))
            return q
        def comb(tb):
            q = P()
            for cb in range(2):
                a = a2(0, cb, tb); b_ = a2(1, cb, tb)
                for j in range(4):
                    if tb == 0:
                        for i in range(4 * j, 4 * j + 4): q("v_fmac_f32 v%d, v%d, v%d" % (a + i, b_ + i, vG))
                    else:
                      for i in (2 * j, 2 * j + 1): q("v_pk_fma_f32 %s, %s, %s, %s op_sel_hi:[1,0,1]" % (vr(a + 2 * i, 2), vr(b_ + 2 * i, 2), vr(vG + 2 * tb, 2), vr(a + 2 * i, 2)))
                    q("ds_write_b128 v%d, %s offset:%d" % (wa[j], vr(a + 4 * j), tb * 32768 + cb * 128))
            return q
        def trd(hh):
            q = P()
            for w in range(4):
                for i in range(2): q("ds_read_b128 %s, v%d offset:%d" % (vr(tr0(hh) + 8 * w + 4 * i), ra[i], w * 4096 + hh * 32768))
            return q
        def fin(hh):
            q = P(); b0 = tr0(hh)
            for i in range(4): q("v_pk_add_f32 %s, %s, %s" % (vr(b0 + 2 * i, 2), vr(b0 + 2 * i, 2), vr(b0 + 8 + 2 * i, 2)))
            for i in range(4): q("v_pk_add_f32 %s, %s, %s" % (vr(b0 + 16 + 2 * i, 2), vr(b0 + 16 + 2 * i, 2), vr(b0 + 24 + 2 * i, 2)))
            for i in range(4): q("v_pk_add_f32 %s, %s, %s" % (vr(b0 + 2 * i, 2), vr(b0 + 2 * i, 2), vr(b0 + 16 + 2 * i, 2)))
            for i in range(4): q("v_cvt_pk_bf16_f32 v%d, v%d, v%d" % (b0 + 8 + i, b0 + 2 * i, b0 + 2 * i + 1))
            q("buffer_store_dwordx4 %s, v%d, %s, s%d offen %s" % (vr(b0 + 8), oa, sr(sOut), sOb if hh else sOa, o["outfl"].replace("_", " ")))
            return q
        tr0 = lambda hh: 88 if hh == 0 else 56
        fill = []
        for st in range(30):
            nx = st + PF
            if o.get("tsplit", 1) and st == 29:
                p.ext(fill); p("@wait lg:all\ns_barrier"); fill = trd(0).l
            if st == fat and o.get("x_nogate", 0) < 2:
                p("@wait vm:%s\ns_barrier" % ("ost" if B else "hst")); self.flag(p, sF2 if B else sF1); self.stamp(p, "oflag" if B else "hflag")
            assert "R%d" % (st // 2 if st < 22 else min(14, st - 11)) in self.used
            ng = o.get("x_nogate", 0)
            if auto and nx == 14 - o.get("opoll", 2) and not ng: self.poll_issue(p, "a")
            if nx == 14:
                if not ng: self.poll_check(p, "a"); p("" if wp else "s_barrier")
                self.stamp(p, "aseen")
            if auto and nx == 22 - o.get("opoll", 2) and not ng: self.poll_issue(p, "o")
            if nx == 22:
                if not ng: self.poll_check(p, "o"); p("" if wp else "s_barrier")
                self.stamp(p, "oseen")
                p("buffer_load_dword v%d, v%d, %s, s%d offen sc1\nbuffer_load_dword v%d, v%d, %s, s%d offen offset:128 sc1" % (vG, vGo, sr(sH), sGo, vG + 2, vGo, sr(sH), sGo))
            ld = [] if nx < self.nh else self.hload(nx).l if nx < 22 else (oload(nx - 22).l if nx < 30 else [])
            wq = self.w2(spec[st]) if st < len(spec) else []
            if st == 18: fill = ad.l
            if st == 22: fill = [Ins("s_nop 0")] * 0 + scale(0).l + scale(1).l
            if st == 26: fill += comb(0).l
            for g_ in range(4):
                if st < 22:
                    cb, tb = g_ >> 1, g_ & 1; a = a2(0, cb, tb)
                    p("%s %s, %s, %s, %s" % (MF, vr(a, 16), ar(8 * st + 4 * cb), vr(hf(st, tb)), "0" if st == 0 else vr(a, 16)))
                else:
                    k = 2 * (st - 22) + (g_ >> 1); tb, j = k // 8, k % 8; cb = g_ & 1; a = a2(1, cb, tb)
                    p("%s %s, %s, %s, %s" % (MF, vr(a, 16), ar(8 * (22 + j) + 4 * cb), vr(oreg(j, tb)), "0" if j == 0 else vr(a, 16)))
                if ld: p.ext([ld.pop(0)])
                for _ in range(-(-len(wq) // (4 - g_))): p.ext(wq.pop(0))
                p.ext(fill[:4]); fill = fill[4:]
            assert not ld
        p.ext(fill)
        self.stamp(p, "p2mfma")
        assert len(self.used) == 38, sorted(set("%s%d" % (k, i) for k in "RD" for i in range(15)) - set(self.used))
        if o.get("tsplit", 1):
            f = fin(0).l
            p.ext(comb(1)); p.ext(f[:8])
            p("@wait lg:all\ns_barrier"); p.ext(trd(1)); p.ext(f[8:]); p.ext(fin(1))
        else:
            p.ext(comb(1))
            p("@wait lg:all\ns_barrier")
            p.ext(trd(0)); p.ext(trd(1)); p.ext(fin(0)); p.ext(fin(1))
        nm = "B" if B else "A"
        if o["stamps"]:
            p("s_waitcnt vmcnt(0)", raw=True); self.stamp(p, "end")
            p("s_waitcnt lgkmcnt(0)", raw=True)
            p("s_lshl_b32 s3, s2, 2\ns_add_u32 s3, s3, s%d\ns_lshl_b32 s3, s3, 6\ns_add_u32 s3, s3, 0x%x" % (sWave, WS_ST))
            p("v_mov_b32 v16, s94")
            for k in range(self.nst): p("v_mov_b32 v%d, s%d" % (17 + k, sStamp + 2 * k))
            if o.get("spins"):
                assert self.nst <= 11
                p("v_mov_b32 v31, s26")
            p("v_lshlrev_b32 v2, 24, v1")
            for k in range(4): p("buffer_store_dwordx4 %s, v2, %s, s3 offen offset:%d" % (vr(16 + 4 * k), sr(sH), 16 * k))
        if o.get("calib"):
            p("Lcal%s:\ns_memrealtime s[96:97]\ns_waitcnt lgkmcnt(0)\ns_sub_u32 s3, s96, s94\ns_cmp_lt_u32 s3, %d\ns_cbranch_scc1 Lcal%s" % (nm, o["calib"], nm), raw=True)
        p("s_endpgm")
    def build(self):
        st = State(); stats = {}
        out = process(self.prologue().l, st, stats)
        stB = st.copy(); n0 = self.ntouch; s0 = set(self.started)
        def flt(l):
            dr = [d for d in self.o.get("x_drop", "").split(".") if d]
            if not dr: return l
            r = []
            for i in l:
                if i.op == "@wait": i = Ins(" ".join(t + ("?" if ":" in t and not t.endswith(("?", "all")) else "") for t in i.text.split()))
                t = i.text
                kill = (("w2d" in dr and (i.tag or "").startswith("w2d")) or ("w2r" in dr and (i.tag or "").startswith("w2r"))
                    or ("hld" in dr and i.op == "buffer_load_dwordx4" and "sc1" in t and " lds" not in t)
                    or ("at" in dr and i.op == "buffer_atomic_add_f32") or ("st" in dr and i.op == "buffer_store_dwordx4" and i.tag in ("hst", "ost"))
                    or ("trans" in dr and i.op in ("v_exp_f32", "v_rcp_f32")) or ("pk" in dr and i.op.startswith("v_pk"))
                    or ("m2" in dr and i.cls == "mfma" and i.ops[1].startswith("a[")) or ("m1" in dr and i.cls == "mfma" and i.ops[2].startswith("a["))
                    or ("skel" in dr and (i.cls in ("mfma", "ds") or i.op in ("s_barrier", "v_exp_f32", "v_rcp_f32", "v_max3_f32", "v_cvt_pk_bf16_f32", "v_mul_f32", "v_fmac_f32", "v_add_f32", "v_max_f32", "v_and_or_b32", "v_sub_f32")
                                          or i.op.startswith("v_pk") or (i.op == "@wait" and "all" not in t.replace("lg:all", "")) or (i.op == "v_cmp_eq_u32" and "v13" in t)))
                    or ("fl" in dr and i.op == "buffer_store_dword")
                    or ("dw" in dr and i.op == "ds_write_b128") or ("p1d" in dr and (i.tag or "").startswith(("slab", "q")))
                    or ("out" in dr and i.op == "buffer_store_dwordx4" and not i.tag and "s[56:59]" in t))
                if "skel" in dr and i.op == "s_cbranch_scc1" and "Lok" in t and not i.raw: i = Ins(t.replace("s_cbranch_scc1", "s_branch"))
                if "skel" in dr and i.op == "buffer_load_dwordx4" and " lds" not in t: i = Ins(t, raw=True)
                if not kill: r.append(i)
            return r
        oa = process(flt(self.pathA().l), st, stats); self.namesA = list(self.stnames)
        self.started = s0; self.ntouch = n0; self.nst = 0; self.stnames = []
        ob = process(flt([self.pathB, self.pathB2, self.pathB3][self.o.get("bq", 0)]().l), stB, stats); self.namesB = list(self.stnames)
        k = ob.index("@cut")
        out += ob[:k] + oa + ob[k + 1:]
        out.append("Lend:\ns_endpgm")
        self.stats = stats
        hdr = "; @launch grid=(256,1,1) block=(256,1,1) lds=163840\n"
        hdr += '.amdgcn_target "amdgcn-amd-amdhsa--gfx950"\n.text\n.globl %s\n.p2align 8\n.type %s,@function\n%s:\n' % (KNAME, KNAME, KNAME)
        tail = """
.section .rodata,"a"
.p2align 6
.amdhsa_kernel %s
  .amdhsa_next_free_vgpr 512
  .amdhsa_next_free_sgpr 102
  .amdhsa_accum_offset 256
  .amdhsa_group_segment_fixed_size 0
  .amdhsa_kernarg_size 96
  .amdhsa_user_sgpr_count 2
  .amdhsa_user_sgpr_kernarg_segment_ptr 1
  .amdhsa_system_sgpr_workgroup_id_x 1
  .amdhsa_float_denorm_mode_32 3
.end_amdhsa_kernel
""" % KNAME
        return hdr + "\n".join(out) + tail
if __name__ == "__main__":
    opts = {}
    for a in sys.argv[2:]:
        k, v = a.split("="); opts[k] = int(v) if v.lstrip("-").isdigit() else v
    g = Gen(**opts)
    open(sys.argv[1], "w").write(g.build())
    print("nops", g.stats)
```

```python
import sys, math, struct
from asmpass import Ins, State, process
KNAME = "gated_mix__linear_kernel_hedgehog__glu_gated_geglu__prompt_kernel"
def f2u(x): return struct.unpack("<I", struct.pack("<f", x))[0]
L2E = math.log2(math.e)
K1 = -2.0 * math.sqrt(2.0 / math.pi) * L2E
K2 = K1 * 0.044715
XS = [0, 16384, 32768]
A_KV = 49152; A_J2 = 98304; A_PHI = 49152; A_V = 81920
B_W = 49152; B_SW = 28928; B_Q = [135936, 144128, 152320, 107008, 115200, 123392, 32768, 40960]; B_KZ = 107008
MISC = 160512
WS_FL = 0xFC0000; FKV, FHD, FOD = 0, 128, 384
WS_G = 0xF80000; WS_KV = 0xF90000; WS_ST = 0xFE0000; WS_SIZE = 0x1000000
OOB = 0x40000000
sX, sW, sQ, sD, sO, sH, sG, sOut, sM, sM2 = 28, 32, 36, 40, 44, 48, 52, 56, 60, 64
(sWave, sT, sU, sFfn, sTT, sCT, sXo, sWa, sWb, sC, sMx, sMw, sMq, sW2o, sKv, sTmp, sTmp2, sExp, sHo, sE8) = range(68, 88)
sL2E = 88; sK2 = 90; sPC = 92; sTc = 96
sHs = 28
sOs = 96
sF1, sF2, sPk, sPh, sPo, sGo, sOa, sOb = range(60, 68)
sStamp = 4
def sr(b, n=4): return "s[%d:%d]" % (b, b + n - 1)
def vr(b, n=4): return "v[%d:%d]" % (b, b + n - 1)
def ar(b, n=4): return "a[%d:%d]" % (b, b + n - 1)
vFlag, vPoll, vOne, vPr, vL16, vPoll8 = 10, 11, 12, 13, 14, 15
vXo = 16; vWo = 20
v2o = 44; v2a = 48
vK1 = 54
vSign, vTa, vDum = 56, 57, 58
vWp = 60; vGt = 68; vFr = 80
MF = "v_mfma_f32_32x32x16_bf16"
class P:
    def __init__(self, l=None): self.l = list(l) if l else []
    def __call__(self, s, tag=None, raw=False):
        for x in s.split("\n"):
            if x.strip(): self.l.append(Ins(x, tag, raw))
    def ext(self, o): self.l += o.l if isinstance(o, P) else o
def merge(main, side, every):
    out = []; k = 0
    for i, x in enumerate(main):
        out.append(x)
        if i % every == every - 1 and k < len(side): out += side[k]; k += 1
    for c in side[k:]: out += c
    return out

class Gen:
    def __init__(self, **o):
        self.o = dict(stamps=False, p2map="chk84", pf=5, touch="L@pre,H@s1,U@s4", codepf=True, outfl="sc1", aux="B", gate="L")
        self.o.update(o); self.hs = 2 if self.o.get("heven", 1) else 1; self.sc = self.o.get("sc", 1); self.B = None; self.started = set(); self.ntouch = 0; self.nst = 0; self.nlab = 0; self.stnames = []
    def stamp(self, p, name):
        if self.o.get("calat") == name: p("s_memrealtime s[94:95]", raw=True)
        if self.o["stamps"] and name not in self.o.get("nostamp", "").split(".") and self.o.get("only", name) == name:
            p("%s s[%d:%d]" % ("s_memtime" if self.o.get("cyc") else "s_memrealtime", sStamp + 2 * self.nst, sStamp + 2 * self.nst + 1), raw=True)
            self.nst += 1; self.stnames.append(name); assert self.nst <= 12, self.stnames
    def srd(self, p, d, ptr, size):
        p("s_mov_b32 s%d, s%d\ns_mov_b32 s%d, s%d\ns_mov_b32 s%d, 0x%x\ns_mov_b32 s%d, 0x20000" % (d, ptr, d + 1, ptr + 1, d + 2, size, d + 3))
    def touch(self, g):
        p = P(); d = [75, 76, 77, 70, 71][self.ntouch]; self.ntouch += 2 if g in "wc" else 1
        if g == "c":
            p("s_lshr_b32 s%d, s2, 3\ns_mul_i32 s3, s%d, %d\nv_lshlrev_b32 v2, 10, v0\nv_subrev_u32 v2, %d, v2\nv_mov_b32 v3, 0x%x\nv_cmp_gt_u32 vcc, %d, v2\nv_cndmask_b32 v4, v3, v2, vcc" % (sTmp, sTmp, 43 * 1024, 128 * 1024, OOB, 43 * 1024))
            p("buffer_load_dword v%d, v4, %s, s3 offen offset:384" % (d, sr(sD)))
            p("s_lshl_b32 s3, s%d, 14\nv_subrev_u32 v2, 65536, v2\nv_cmp_gt_u32 vcc, 16384, v2\nv_cndmask_b32 v4, v3, v2, vcc" % sTmp)
            p("buffer_load_dword v%d, v4, %s, s3 offen offset:384" % (d + 1, sr(sO)))
        elif g == "w":
            p("s_mul_i32 s3, s2, %d\nv_lshlrev_b32 v2, 7, v0\nv_mov_b32 v3, 0x%x\nv_cmp_gt_u32 vcc, 43, v0\nv_cndmask_b32 v4, v3, v2, vcc" % (43 * 128, OOB))
            p("buffer_load_dword v%d, v4, %s, s3 offen" % (d, sr(sD)))
            p("s_lshl_b32 s3, s2, 11\nv_subrev_u32 v2, 8192, v2\nv_cmp_gt_u32 vcc, 2048, v2\nv_cndmask_b32 v4, v3, v2, vcc")
            p("buffer_load_dword v%d, v4, %s, s3 offen" % (d + 1, sr(sO)))
        elif g[0] in "LHUM":
            so = "s%d" % sPC if g[0] == "H" else "0"
            if self.B is None:
                p("s_bitcmp%d_b32 s2, 3\ns_cselect_b32 s%d, %s, 0x20000000" % (1 if g[1] == "B" else 0, sPC + 1, so)); so = "s%d" % (sPC + 1)
            if len(g) == 3:
                p("s_cmp_%s_u32 s%d, 2\ns_cselect_b32 s%d, %s, 0x20000000" % ("lt" if g[2] == "a" else "ge", sWave, sPC + 1, so)); so = "s%d" % (sPC + 1)
            if g[0] == "L": p("s_mov_b32 exec_lo, 0xffff0000")
            p("buffer_load_dword v%d, v%d, %s, %s offen" % (d, vSign if g[0] == "U" else vTa, sr(sTc), so))
            if g[0] == "L": p("s_mov_b32 exec_lo, -1")
        else:
            m = sum(1 << k for k in range(int(g[0]), int(g[1]) + 1)) * 0x01010101
            p("s_mov_b32 exec_lo, 0x%x\ns_mov_b32 exec_hi, 0x%x" % (m, m))
            so = "0"
            if len(g) == 3:
                p("s_cmp_%s_u32 s%d, 2\ns_cselect_b32 s%d, 0, 0x20000000" % ("lt" if g[2] == "a" else "ge", sWave, sPC)); so = "s%d" % sPC
            p("buffer_load_dword v%d, v%d, %s, %s offen" % (d, vTa, sr(sTc), so))
            p("s_mov_b64 exec, -1")
        return p.l
    def touch2(self):
        a = P(); t = vGt + 4
        a("s_lshr_b32 s%d, s2, 4\ns_lshl_b32 s3, s%d, 3\ns_and_b32 s%d, s2, 7\ns_add_u32 s3, s3, s%d" % (sTmp, sTmp, sTmp2, sTmp2))
        a("v_mov_b32 v2, s3\nv_mov_b32 v3, s%d\nv_cmp_gt_u32 vcc, 128, v0\nv_cndmask_b32 v2, v3, v2, vcc\nv_cndmask_b32 v3, 10, 7, vcc" % sTmp)
        a("v_and_b32 v4, 127, v0\nv_lshrrev_b32 v5, 7, v0\nv_mul_u32_u24 v5, 384, v5\nv_mov_b32 v6, 0x%x" % OOB)
        for k, n in enumerate((86, 32)):
            a("v_mul_u32_u24 v7, %d, v2\nv_add_u32 v7, v7, v4\nv_lshlrev_b32 v7, v3, v7\nv_add_u32 v7, v7, v5\nv_cmp_gt_u32 vcc, %d, v%d\nv_cndmask_b32 v%d, v6, v7, vcc" % (n, n, 4 if self.o.get("tc", 1) else 0, t + k))
        return a, [[Ins("buffer_load_dword v%d, v%d, %s, 0 offen" % (t + k, t + k, sr(d)))] for k, d in enumerate((sD, sO))]
    def tlist(self):
        r = []
        for t in self.o["touch"].split(","):
            if not t: continue
            g, pos = t.split("@")
            if g in "LHM": g += "A"
            if g == "U": g += "B"
            r.append((g, pos))
        return r
    def touches(self, pos):
        skip = {None: "", False: "B", True: "A"}[self.B]
        return [self.touch(g) for g, ps in self.tlist() if ps == pos and not (g[0] in "LHUM" and g[1] == skip)]
    def utable(self, p):
        if not any(g[0] == "U" and g[1] == "AB"[self.B] for g, _ in self.tlist()): return
        p("s_lshr_b32 s3, s2, 4\ns_lshl_b32 s3, s3, 3\ns_and_b32 s%d, s2, 7\ns_add_u32 s3, s3, s%d\ns_lshr_b32 s%d, s%d, 9\ns_mul_i32 s3, s3, s%d\ns_lshl_b32 s3, s3, 2" % (sTmp, sTmp, sTmp, sTc + 2, sTmp))
        p("s_cmp_ge_u32 s%d, 2\ns_cselect_b32 s%d, 1728, 0\ns_add_u32 s3, s3, s%d\ns_cmp_lt_u32 s%d, %d\ns_cselect_b32 s3, 0x%x, s3" % (sWave, sTmp2, sTmp2, sWave, 2 if self.o.get("bq", 0) == 2 else 1, OOB // 2))
        p("v_lshrrev_b32 v8, 4, v1\nv_and_b32 v9, 7, v1\nv_lshlrev_b32 v9, 7, v9\nv_mad_u32_u24 v8, v8, s%d, v9\nv_add_u32 v8, s3, v8\nv_bfe_u32 v9, v1, 3, 1\nv_lshl_or_b32 v%d, v9, 30, v8" % (sTmp, vSign))
    def prologue(self):
        p = P(); o = self.o
        if o["stamps"] or o.get("calib"): p("%s s[94:95]" % ("s_memtime" if o.get("cyc") else "s_memrealtime"), raw=True)
        p("s_load_dwordx16 s[4:19], s[0:1], 0\ns_load_dwordx8 s[20:27], s[0:1], 64")
        p("s_cmp_ge_u32 s2, 256\ns_cbranch_scc1 Lend")
        if o["codepf"]:
            p("s_getpc_b64 s[%d:%d]" % (sPC, sPC + 1))
            p("Lpc:")
            n = o.get("cpn", 160)
            p("s_bitcmp1_b32 s2, 3\ns_cselect_b32 s3, LbodyB-Lpc, 0")
            if n < 160: p("s_bfe_u32 s%d, s2, 0x%x\ns_mul_i32 s%d, s%d, %d\ns_add_u32 s3, s3, s%d" % (sTmp, 4 + ((160 // n).bit_length() - 1 << 16), sTmp, sTmp, n * 128, sTmp))
            p("v_lshl_add_u32 v2, v0, 7, s3\nv_cmp_gt_u32 vcc, %d, v0" % n + "\nv_cndmask_b32 v2, 0, v2, vcc\nv_min_u32 v2, Lend-Lpc, v2")
            p("global_load_dword v%d, v2, s[%d:%d]" % (vDum, sPC, sPC + 1))
        p("v_and_b32 v1, 63, v0\nv_lshrrev_b32 v2, 6, v0\nv_readfirstlane_b32 s%d, v2" % sWave)
        p("s_and_b32 s%d, s2, 7\ns_lshr_b32 s%d, s2, 3" % (sTmp, sTmp2))
        p("s_lshr_b32 s%d, s%d, 2\ns_lshl_b32 s%d, s%d, 3\ns_lshr_b32 s3, s%d, 2\ns_add_u32 s%d, s%d, s3" % (sT, sTmp, sT, sT, sTmp2, sT, sT))
        p("s_lshl_b32 s%d, s%d, 17\ns_lshl_b32 s3, s%d, 15\ns_add_u32 s%d, s%d, s3" % (sXo, sT, sWave, sXo, sXo))
        p("s_lshl_b32 s%d, s%d, 12\ns_and_b32 s%d, s%d, 1" % (sMx, sWave, sC, sWave))
        p("v_lshrrev_b32 v2, 3, v1\nv_and_b32 v3, 7, v1\nv_lshrrev_b32 v4, 4, v1\nv_and_b32 v5, 1, v4")
        p("v_xor_b32 v6, v3, v4\nv_lshlrev_b32 v6, 4, v6\nv_lshl_add_u32 v%d, v2, 10, v6" % vXo)
        p("v_xor_b32 v6, 64, v%d\nv_add_u32 v%d, 7168, v6\nv_add_u32 v%d, 14336, v%d\nv_add_u32 v%d, 21504, v6" % (vXo, vXo + 1, vXo + 2, vXo, vXo + 3))
        tw = any(t and t[0] not in "wc" for t in o["touch"].split(","))
        t2 = any(t and t[0] in "LHUM" for t in o["touch"].split(","))
        if t2:
            r16, r128, b0, s1, s2_, s3_, nj = sKv, sW2o, sWa, sWb, sMw, sMq, sHo
            p("s_lshr_b32 s%d, s2, 4\ns_lshl_b32 s%d, s%d, 3\ns_add_u32 s%d, s%d, s%d" % (r16, r128, r16, r128, r128, sTmp))
            p("s_mov_b32 s3, 0x%x\ns_cmp_eq_u32 s%d, 1\ns_cselect_b32 s%d, 0x%x, s3\ns_cmp_eq_u32 s%d, 0\ns_cselect_b32 s%d, 0x200000, s%d" % (512 * 2752, sWave, sTc + 2, 512 * 3072, sWave, sTc + 2, sTc + 2))
            z = """s_movk_i32 s{s3}, 128
s_movk_i32 s{s2}, 512
s_lshr_b32 s{s1}, s{sz}, 3
s_mov_b32 s{nj}, 4
s_cmp_eq_u32 s{w}, 1
s_cbranch_scc1 LtA1
s_cmp_eq_u32 s{w}, 0
s_cbranch_scc1 LtA0
s_mul_i32 s{b0}, s{r16}, 11008
s_and_b32 s3, s2, 3
s_mul_i32 s3, s3, 448
s_add_u32 s{b0}, s{b0}, s3
s_movk_i32 s{s2}, 2752
s_branch LtE
LtA0:
s_lshl_b32 s{b0}, s{r128}, 14
s_movk_i32 s{s1}, 128
s_movk_i32 s{s2}, 4096
s_movk_i32 s{s3}, 1024
s_branch LtE
LtA1:
{a1}
LtE:""".replace("{a1}", "s_mul_i32 s{b0}, s{r128}, 1536\ns_mov_b32 s{nj}, 3" if o.get("bq", 0) == 2 else
                "s_lshr_b32 s3, s{r128}, 1\ns_add_u32 s{b0}, s{r128}, s3\ns_add_u32 s{b0}, s{b0}, 1\ns_lshl_b32 s{b0}, s{b0}, 10\ns_mov_b32 s{nj}, 2").format(bw=2 if o.get("bq", 0) == 2 else 1, s1=s1, s2=s2_, s3=s3_, b0=b0, nj=nj, r16=r16, r128=r128, w=sWave, sz=sTc + 2)
            p(z, raw=True)
            p("v_bfe_u32 v7, v1, 2, 2\nv_and_b32 v8, 3, v1\nv_mov_b32 v6, s%d\nv_mad_u32_u24 v6, v4, s%d, v6\nv_mad_u32_u24 v6, v7, s%d, v6\nv_mad_u32_u24 v6, v8, s%d, v6" % (b0, s1, s2_, s3_))
            p("v_mov_b32 v8, 0x%x\nv_cmp_gt_u32 vcc, s%d, v7\nv_cndmask_b32 v%d, v8, v6, vcc\ns_mov_b32 s%d, 0x20000\ns_lshl_b32 s%d, s%d, 2" % (OOB, nj, vTa, sTc + 3, sPC, s1))
        elif tw:
            p("s_mov_b32 s3, 176128\ns_cmp_eq_u32 s%d, 1\ns_cselect_b32 s%d, 196608, s3\ns_lshl_b32 s%d, s%d, 3" % (sWave, sWa, sTc + 2, sWa))
            p("s_cmp_eq_u32 s%d, 0\ns_cselect_b32 s%d, 128, s%d\ns_cselect_b32 s%d, 8, 6\ns_cselect_b32 s%d, 10, 7\ns_cselect_b32 s%d, 0x200000, s%d" % (sWave, sWa, sWa, sWb, sMw, sTc + 2, sTc + 2))
            p("s_mul_i32 s3, s2, s%d\nv_add_u32 v6, s3, v2\nv_lshlrev_b32 v6, s%d, v6\nv_mad_u32_u24 v6, v3, s%d, v6" % (sWb, sMw, sWa))
            p("v_mov_b32 v7, 0x%x\nv_cmp_gt_u32 vcc, s%d, v2\nv_cndmask_b32 v%d, v7, v6, vcc\ns_mov_b32 s%d, 0x20000" % (OOB, sWb, vTa, sTc + 3))
        p("s_and_b32 s3, s%d, 3\ns_lshl_b32 s%d, s3, 1\ns_bfe_u32 s3, s%d, 0x10001\ns_add_u32 s%d, s%d, s3" % (sTmp, sU, sTmp2, sU, sU))
        if o["p2map"] == "chk":
            p("s_lshl_b32 s%d, s%d, 2\ns_lshr_b32 s3, s%d, 3\ns_add_u32 s%d, s%d, s3\ns_and_b32 s3, s3, 1\ns_xor_b32 s3, s3, s%d\ns_and_b32 s%d, s3, 7" % (sTT, sTmp, sTmp2, sTT, sTT, sTmp2, sCT))
        elif o["p2map"] == "row":
            p("s_lshl_b32 s%d, s%d, 1\ns_lshr_b32 s3, s%d, 4\ns_add_u32 s%d, s%d, s3\ns_lshl_b32 s%d, s%d, 1\ns_and_b32 s3, s%d, 1\ns_add_u32 s%d, s%d, s3\ns_bfe_u32 s%d, s%d, 0x30001" % (sTT, sTmp, sTmp2, sTT, sTT, sTT, sTT, sTmp2, sTT, sTT, sCT, sTmp2))
        elif o["p2map"] == "chk84":
            p("s_lshr_b32 s%d, s%d, 1\ns_lshl_b32 s%d, s%d, 3\ns_lshr_b32 s3, s%d, 2\ns_add_u32 s%d, s%d, s3" % (sTT, sTmp, sTT, sTT, sTmp2, sTT, sTT))
            p("s_and_b32 s3, s3, 1\ns_xor_b32 s3, s3, s%d\ns_and_b32 s3, s3, 3\ns_and_b32 s%d, s%d, 1\ns_lshl_b32 s%d, s%d, 2\ns_add_u32 s%d, s%d, s3" % (sTmp2, sCT, sTmp, sCT, sCT, sCT, sCT))
        elif o["p2map"] == "4x8":
            p("s_lshl_b32 s%d, s%d, 2\ns_lshr_b32 s3, s%d, 3\ns_add_u32 s%d, s%d, s3\ns_and_b32 s%d, s%d, 7" % (sTT, sTmp, sTmp2, sTT, sTT, sCT, sTmp2))
        else:
            p("s_lshr_b32 s%d, s%d, 1\ns_lshl_b32 s%d, s%d, 3\ns_lshr_b32 s3, s%d, 2\ns_add_u32 s%d, s%d, s3" % (sTT, sTmp, sTT, sTT, sTmp2, sTT, sTT))
            p("s_and_b32 s%d, s%d, 1\ns_lshl_b32 s%d, s%d, 2\ns_and_b32 s3, s%d, 3\ns_add_u32 s%d, s%d, s3" % (sCT, sTmp, sCT, sCT, sTmp2, sCT, sCT))
        self.srd(p, sX, 4, 2048 * 1024)
        if tw:
            p("s_bitcmp1_b32 s%d, 0\ns_cselect_b64 s[%d:%d], s[6:7], s[4:5]\ns_cselect_b64 s[100:101], s[16:17], s[14:15]" % (sWave, sTc, sTc + 1))
            p("s_cmp_lt_u32 s%d, 2\ns_cselect_b64 s[%d:%d], s[%d:%d], s[100:101]" % (sWave, sTc, sTc + 1, sTc, sTc + 1))
        for c in self.touches("pre"): p.ext(c)
        for c in self.xdma(0): p.ext(c)
        for c in self.touches("x0"): p.ext(c)
        p("s_cmp_lt_u32 s%d, 2\ns_cselect_b64 s[%d:%d], s[14:15], s[16:17]" % (sWave, sW, sW + 1))
        p("s_mov_b32 s%d, 0x%x\ns_mov_b32 s%d, 0x20000" % (sW + 2, 512 * 2752, sW + 3))
        self.srd(p, sQ, 6, 512 * 3072)
        p("s_bitcmp0_b32 s2, 3\ns_cbranch_scc1 LpathA")
        return p
    def dma(self, pre, v, srd, so, imm, post, tag):
        p = P()
        if pre: p(pre)
        p("buffer_load_dwordx4 v%d, %s, s%d offen offset:%d lds" % (v, sr(srd), so, imm), tag=tag)
        if post: p(post)
        return p.l
    def group(self, n, m0reg, m0off, v, srd, so, step, tag):
        first = so not in self.started; self.started.add(so)
        def pre(j):
            if j % 4: return ""
            t = "s_add_u32 m0, s%d, %d" % (m0reg, m0off + 1024 * j)
            if j == 0 and not first: t += "\ns_%s_u32 s%d, s%d, %d" % ("add" if step > 0 else "sub", so, so, abs(step))
            return t
        return [self.dma(pre(j), v + j, srd, so, 1024 * (j % 4), "", tag) for j in range(n)]
    def xdma(self, sg): return self.group(4, sMx, XS[sg % 3], vXo, sX, sXo, 128, "slab%d" % sg)
    def common2(self, q, B):
        self.utable(q)
        q("v_lshlrev_b32 v6, 2, v5\nv_xor_b32 v6, v3, v6\nv_lshlrev_b32 v7, 4, v6")
        q("v_lshl_add_u32 v%d, v2, 10, v7\nv_add_u32 v%d, 7168, v%d\nv_add_u32 v%d, %d, v%d\nv_add_u32 v%d, %d, v%d" % (v2o, v2o + 1, v2o, v2o + 2, 65536 - 2048, v2o, v2o + 3, 65536 - 2048, v2o + 1))
        if B == 1: q("v_mul_u32_u24 v6, 3072, v2\nv_add_u32 v%d, v6, v7\nv_add_u32 v%d, %d, v%d" % (vWo + 7, vWo + 8, 8 * 3072 - 1024, vWo + 7))
        self.srd(q, sD, 18, 1376 * 1024); self.srd(q, sO, 10, 512 * 1024); self.srd(q, sH, 26, WS_SIZE)
        self.srd(q, sG, 24, 256); self.srd(q, sOut, 22, 2048 * 1024); self.srd(q, sM, 8, 16384); self.srd(q, sM2, 20, 1024)
        if self.o.get("spins"): q("s_mov_b32 s26, 0")
        q("v_lshlrev_b32 v%d, 4, v1" % vL16)
        q("v_mov_b32 v%d, 1\nv_mov_b32 v6, 0x%x\nv_cmp_eq_u32 vcc, 0, v0\nv_cndmask_b32 v%d, v6, 0, vcc" % (vOne, OOB, vFlag))
        q("v_lshlrev_b32 v7, 7, v0\nv_cmp_gt_u32 vcc, 16, v0\nv_cndmask_b32 v%d, v6, v7, vcc\nv_cmp_gt_u32 vcc, 8, v0\nv_cndmask_b32 v%d, v6, v7, vcc" % (vPoll, vPoll8))
        q("s_mov_b32 s%d, 0x%x\ns_mov_b32 s%d, 0x%x\ns_mov_b32 s%d, 0x%x\ns_mov_b32 s%d, 0x%x\nv_mov_b32 v%d, 0x%x" % (sL2E, f2u(L2E), sL2E + 1, f2u(L2E), sK2, f2u(K2), sK2 + 1, f2u(K2), vK1, f2u(K1)))
        q("s_cmp_eq_u32 s%d, 0\ns_cselect_b32 s%d, 0xffff, 0\ns_cselect_b32 s%d, 0xff, 0" % (sWave, sExp, sE8))
        if self.sc: q("s_mov_b32 s%d, 1" % sExp)
        q("s_lshl_b32 s%d, s%d, 14\ns_lshl_b32 s3, s%d, 7\ns_add_u32 s%d, s%d, s3" % (sW2o, sWave, sCT, sW2o, sW2o))
        q("s_lshl_b32 s3, s%d, 2\ns_add_u32 s3, s3, s%d\ns_lshl_b32 s3, s3, 12\ns_add_u32 s%d, s3, 0x%x" % (sU, sWave, sKv, WS_KV))
        q("v_and_b32 v2, 31, v1\nv_lshrrev_b32 v3, 5, v1\nv_bfe_u32 v6, v2, 1, 3\nv_xor_b32 v6, v3, v6\nv_lshlrev_b32 v6, 4, v6\nv_lshl_add_u32 v6, v2, 7, v6")
        q("v_bfe_u32 v4, v1, 2, 2\nv_lshrrev_b32 v9, 1, v4\nv_and_b32 v7, 3, v1\nv_lshlrev_b32 v7, 3, v7\nv_lshl_add_u32 v8, v3, 3, v4")
    def w2_init(self, loc, bases, avail):
        self.loc = loc; self.bases = bases; self.used = []; self.avail = avail; self.g = 0; self.nh = 0; self.rmin = lambda i: 34 + 2 * i
    def w2(self, spec):
        r = []
        for t in spec.split("."):
            if not t: continue
            if t in ("T", "X", "Z"): r += self.extra[t]; continue
            if t[0] == "H":
                assert int(t[1:]) == self.nh; self.nh += 1
                l = self.hload(int(t[1:])).l; r += [l[:1], l[1:]]; continue
            if t[0] == "P":
                z = P(); self.poll_issue(z, t[1:]); r.append(z.l); continue
            i = int(t[1:]); assert t not in self.used, t
            self.used.append(t)
            if t[0] in "GQ":
                assert i == 0 or "%s%d" % (t[0], i - 1) in self.used
                assert self.g >= self.avail[t], (t, self.g)
                r += self.other(i)
            elif t[0] == "D":
                assert i == 0 or "D%d" % (i - 1) in self.used
                assert self.g >= self.avail[self.loc[i]], (t, self.g)
                prev = [k for k in range(i) if self.loc[k] == self.loc[i]]
                g = self.group(4, sMx, self.loc[i], v2o, sD if i < 11 else sO, sW2o, -10 * 131072 + 32768 if i == 11 else 131072 - 32768 if i == 7 else 131072, "w2d%d" % i)
                if prev: g[0] = [Ins("@wait lg:w2r%d" % prev[-1])] + g[0]
                r += g
            else:
                assert self.g >= self.rmin(i), (t, self.g)
                rs = max(k for k, b in enumerate(self.bases) if b <= self.loc[i]); off = self.loc[i] - self.bases[rs]
                assert off + 4096 <= 65536
                for st in range(2):
                    for cb in range(2):
                        for half in range(2):
                            p = P()
                            if st == cb == half == 0: p("@wait vm:w2d%d" % i)
                            p("ds_read_b64_tr_b16 %s, v%d offset:%d" % (ar(8 * (2 * i + st) + 4 * cb + 2 * half, 2), v2a + 2 * rs + cb, off + st * 2048 + half * 1024), tag="w2r%d" % i)
                            r.append(p.l)
        return r
    def w2_addr(self):
        p = P(); va = v2a
        p("v_bfe_u32 v2, v1, 2, 2\nv_lshrrev_b32 v3, 5, v1\nv_lshl_add_u32 v3, v3, 2, v2\nv_and_b32 v2, 2, v2\nv_bfe_u32 v4, v1, 4, 1\nv_or_b32 v2, v2, v4")
        p("v_and_b32 v4, 3, v1\nv_lshlrev_b32 v4, 3, v4\nv_lshl_add_u32 v4, v2, 5, v4\nv_lshl_add_u32 v4, v3, 7, v4\nv_add_u32 v%d, s%d, v4\nv_xor_b32 v%d, 64, v%d" % (va, sMx, va + 1, va))
        assert self.bases[0] == 0
        for k in range(1, len(self.bases)): p("v_add_u32 v%d, %d, v%d\nv_add_u32 v%d, %d, v%d" % (va + 2 * k, self.bases[k], va, va + 2 * k + 1, self.bases[k], va + 1))
        return p
    CNT = {"kv": 0, "h": 8, "a": 24, "o": 40}
    def flag_off(self, p, kind, B, d):
        if self.sc:
            p("s_lshl_b32 s%d, s%d, 7\ns_add_u32 s%d, s%d, 0x%x" % (d, sU if kind == "kv" else sT, d, d, WS_FL + 128 * self.CNT["a" if kind == "h" and not B else kind]))
            return
        if kind == "kv": p("s_lshl_b32 s%d, s%d, 4\ns_add_u32 s%d, s%d, s%d\ns_lshl_b32 s%d, s%d, 7" % (d, sU, d, d, sT, d, d)); base = FKV
        elif kind == "h": p("s_lshl_b32 s%d, s%d, 4\ns_add_u32 s%d, s%d, s%d\ns_lshl_b32 s%d, s%d, 7" % (d, sT, d, d, sU, d, d)); base = FHD + (0 if B else 8)
        else: p("s_lshl_b32 s%d, s%d, 3\ns_add_u32 s%d, s%d, s%d\ns_lshl_b32 s%d, s%d, 7" % (d, sT, d, d, sU, d, d)); base = FOD
        p("s_add_u32 s%d, s%d, 0x%x" % (d, d, WS_FL + base * 128))
    def flag(self, p, d):
        if self.sc:
            k = self.nlab; self.nlab += 1
            p("s_cmp_lg_u32 s%d, 0\ns_cbranch_scc1 Lfl%d" % (sWave, k))
            p("s_atomic_add s%d, s[%d:%d], s%d\nLfl%d:" % (sExp, sH, sH + 1, d, k), raw=True)
            p("@async")
            return
        p("buffer_store_dword v%d, v%d, %s, s%d offen sc1" % (vOne, vFlag, sr(sH), d))
    def poll_off(self, p, kind):
        d = {"kv": sPk, "h": sPh, "o": sPo}[kind]
        if self.sc:
            if kind == "kv": p("s_lshl_b32 s%d, s%d, 7\ns_add_u32 s%d, s%d, 0x%x" % (d, sU, d, d, WS_FL))
            else: p("s_lshr_b32 s%d, s%d, 1\ns_lshl_b32 s%d, s%d, 7\ns_add_u32 s%d, s%d, 0x%x" % (d, sTT, d, d, d, d, WS_FL + 128 * self.CNT[kind]))
            return
        if kind == "kv": p("s_lshl_b32 s%d, s%d, 11\ns_add_u32 s%d, s%d, 0x%x" % (d, sU, d, d, WS_FL + FKV * 128))
        elif kind == "h": p("s_lshr_b32 s%d, s%d, 1\ns_lshl_b32 s%d, s%d, 11\ns_add_u32 s%d, s%d, 0x%x" % (d, sTT, d, d, d, d, WS_FL + FHD * 128))
        else: p("s_lshr_b32 s%d, s%d, 1\ns_lshl_b32 s%d, s%d, 10\ns_add_u32 s%d, s%d, 0x%x" % (d, sTT, d, d, d, d, WS_FL + FOD * 128))
    def poll_ins(self, kind, first=False):
        if kind == "init": return "buffer_load_dword v%d, v%d, %s, 0 offen sc1" % (vPr, vDum + 1, sr(sG))
        if self.sc:
            so = {"kv": sPk, "h": sPh, "a": sPh, "o": sPo}[kind]
            if self.sc == 1: return "s_mov_b32 s%d, 0\ns_atomic_add s%d, s[%d:%d], s%d glc" % (sTmp2, sTmp2, sH, sH + 1, so)
            return "s_load_dword s%d, s[%d:%d], s%d glc" % (sTmp2, sH, sH + 1, so)
        if self.o.get("apoll", 0) > (1 if first else 0):
            return "v_mov_b32 v%d, 0\nbuffer_atomic_or v%d, v%d, %s, s%d offen offset:%d sc0" % (vPr, vPr, vPoll if kind == "kv" else vPoll8, sr(sH), {"kv": sPk, "h": sPh, "a": sPh, "o": sPo}[kind], 1024 if kind == "a" else 0)
        return "buffer_load_dword v%d, v%d, %s, s%d offen offset:%d sc1" % (vPr, vPoll if kind == "kv" else vPoll8, sr(sH), {"kv": sPk, "h": sPh, "a": sPh, "o": sPo}[kind], 1024 if kind == "a" else 0)
    def poll_issue(self, p, kind):
        if self.sc and kind != "init":
            k = self.nlab; self.nlab += 1
            if kind == "a": p("s_add_u32 s%d, s%d, %d" % (sPh, sPh, 128 * (self.CNT["a"] - self.CNT["h"])))
            p("s_cmp_lg_u32 s%d, 0\ns_cbranch_scc1 Lpi%d" % (sWave, k))
            p(self.poll_ins(kind) + "\nLpi%d:" % k, raw=True)
            p("@async")
            return
        if kind == "init": p("v_lshrrev_b32 v%d, 5, v%d" % (vDum + 1, vPoll8))
        p(self.poll_ins(kind, True))
    def poll_check(self, p, kind):
        k = self.nlab; self.nlab += 1
        if self.sc and kind != "init":
            n = 16 if kind == "kv" else 8
            p("s_waitcnt lgkmcnt(0)", raw=True); p("@sync")
            p("s_cmp_lg_u32 s%d, 0\ns_cbranch_scc1 Lok%d" % (sWave, k))
            p("s_cmp_ge_u32 s%d, %d\ns_cbranch_scc1 Lok%d\ns_mov_b32 s%d, 0\nLsp%d:\n%s\ns_add_u32 s%d, s%d, 1" % (sTmp2, n, k, sPC + 1, k, self.poll_ins(kind), sPC + 1, sPC + 1), raw=True)
            if self.o.get("spins"): p("s_add_u32 s26, s26, %d" % (1 << 6 * ["init", "kv", "h", "a", "o"].index(kind)), raw=True)
            p("s_waitcnt lgkmcnt(0)\ns_cmp_ge_u32 s%d, %d\ns_cbranch_scc1 Lok%d\ns_cmp_lt_u32 s%d, 0x8000\ns_cbranch_scc1 Lsp%d\nLok%d:" % (sTmp2, n, k, sPC + 1, k, k), raw=True)
            return
        e = sExp if kind == "kv" else sE8
        p("v_cmp_ne_u32 vcc, 0, v%d\ns_nop 1\ns_and_b32 s%d, vcc_lo, s%d\ns_cmp_eq_u32 s%d, s%d\ns_cbranch_scc1 Lok%d" % (vPr, sPC, e, sPC, e, k))
        p("s_mov_b32 s%d, 0\nLsp%d:\ns_sleep %d\n%s\ns_waitcnt vmcnt(0)" % (sPC + 1, k, self.o.get("sleep", 0), self.poll_ins(kind)), raw=True)
        if self.o.get("spins"): p("s_add_u32 s26, s26, %d" % (1 << 6 * ["init", "kv", "h", "a", "o"].index(kind)), raw=True)
        p("v_cmp_ne_u32 vcc, 0, v%d\ns_add_u32 s%d, s%d, 1\ns_nop 0\ns_and_b32 s%d, vcc_lo, s%d\ns_cmp_eq_u32 s%d, s%d\ns_cbranch_scc1 Lok%d\ns_cmp_lt_u32 s%d, 0x8000\ns_cbranch_scc1 Lsp%d\nLok%d:" % (vPr, sPC + 1, sPC + 1, sPC, e, sPC, e, k, sPC + 1, k, k), raw=True)
    def gate_job(self, g=112, sA=sMw, sB=sMq, tag="hst", r0=20, r1=21):
        ld = P(); c = P(); gw = vGt; vA = vGt + 6
        ld("s_lshl_b32 s3, s%d, 3\ns_add_u32 s3, s3, s%d\ns_lshl_b32 s3, s3, 2\ns_add_u32 s3, s3, s%d" % (sT, sU, sWave))
        ld("s_lshl_b32 s%d, s3, 4\ns_add_u32 s%d, s%d, 0x%x\ns_lshl_b32 s%d, s3, 12\nv_lshlrev_b32 v%d, 4, v1" % (sA, sA, sA, WS_G, sB, vA))
        lds = [ld.l + [Ins("buffer_load_dwordx4 %s, v%d, %s, 0 offen" % (vr(gw), vA, sr(sM2)))]]
        for k in range(4): lds.append([Ins("buffer_load_dwordx4 %s, v%d, %s, s%d offen offset:%d" % (vr(g + 4 * k), vA, sr(sX), sB, 1024 * k))])
        for i in range(4):
            c("v_lshlrev_b32 v6, 16, v%d\nv_and_b32 v7, 0xffff0000, v%d" % (gw + i, gw + i))
            for k in range(4):
                c("v_lshlrev_b32 v8, 16, v%d\nv_and_b32 v9, 0xffff0000, v%d" % (g + 4 * k + i, g + 4 * k + i))
                c("%s v%d, v8, v6\nv_fmac_f32 v%d, v9, v7" % ("v_mul_f32" if i == 0 else "v_fmac_f32", 2 + k, 2 + k))
        c("v_and_b32 v6, 15, v1\nv_lshlrev_b32 v6, 25, v6")
        c("v_permlane32_swap_b32 v2, v4\nv_permlane32_swap_b32 v3, v5\nv_add_f32 v2, v2, v4\nv_add_f32 v3, v3, v5")
        c("v_lshrrev_b32 v7, 2, v1\nv_or_b32 v6, v6, v7")
        c("v_permlane16_swap_b32 v2, v3\nv_add_f32 v2, v2, v3")
        for r in (8, 4, 2, 1): c("v_add_f32_dpp v2, v2, v2 row_ror:%d row_mask:0xf bank_mask:0xf" % r)
        c("v_mul_f32 v2, 0x%x, v2\nv_exp_f32 v2, v2\nv_add_f32 v2, 1.0, v2\nv_rcp_f32 v%d, v2\nv_mov_b32 v%d, v6" % (f2u(-L2E), r0, r1))
        st = P(); st("buffer_store_dword v%d, v%d, %s, s%d offen sc1" % (r0, r1, sr(sH), sA), tag=tag)
        return lds, c, st
    def wphi_load(self):
        p = P()
        p("s_lshl_b32 s3, s%d, 10\ns_add_u32 m0, s3, %d\ns_lshl_b32 s%d, s%d, 11\ns_add_u32 s3, s3, s%d" % (sC, MISC, sTmp, sU, sTmp))
        p("buffer_load_dwordx4 v%d, %s, s3 offen lds" % (vL16, sr(sM)), tag="wphi")
        return p.l
    def wphi_read(self):
        p = P()
        p("v_bfe_u32 v2, v1, 2, 2\nv_lshrrev_b32 v3, 5, v1\nv_lshl_add_u32 v3, v3, 2, v2\nv_bfe_u32 v2, v1, 1, 1\nv_and_b32 v4, 16, v1\nv_lshl_add_u32 v4, v2, 3, v4\nv_lshl_add_u32 v4, v3, 5, v4")
        p("s_lshl_b32 s3, s%d, 10\ns_add_u32 s3, s3, %d\nv_add_u32 v4, s3, v4" % (sC, MISC))
        p("@wait vm:wphi")
        for b in range(2):
            for half in range(2): p("ds_read_b64_tr_b16 %s, v4 offset:%d" % (vr(vWp + 4 * b + 2 * half, 2), b * 512 + half * 256))
        p("v_bfe_u32 v6, v1, 2, 1\nv_mul_u32_u24 v6, 0x8000, v6\nv_lshl_or_b32 v%d, v6, 16, v6" % vSign)
        q = P()
        for i in range(8): q("v_xor_b32 v%d, v%d, v%d" % (vWp + i, vWp + i, vSign))
        return p, q
    def softmax(self, Pr, T, out, pk=True):
        p = P()
        if isinstance(out, tuple):
            class O:
                def __add__(s_, k): return out_[k >> 2] + (k & 3)
            out_ = out; out = O()
        if not pk:
            for k in range(5): p("v_max3_f32 v%d, v%d, v%d, v%d" % (T + k, Pr + 3 * k, Pr + 3 * k + 1, Pr + 3 * k + 2))
            p("v_max3_f32 v%d, v%d, v%d, v%d\nv_max3_f32 v%d, v%d, v%d, v%d\nv_max_f32 v%d, v%d, v%d" % (T, T, T + 1, Pr + 15, T + 2, T + 2, T + 3, T + 4, T, T, T + 2))
            p("v_mul_f32 v%d, 0x%x, v%d" % (T, f2u(-L2E), T))
            for k in range(2): p("v_fma_f32 v%d, v%d, s%d, v%d" % (Pr + k, Pr + k, sL2E, T))
            for k in range(16):
                p("v_exp_f32 v%d, v%d" % (Pr + k, Pr + k))
                if k < 14: p("v_fma_f32 v%d, v%d, s%d, v%d" % (Pr + k + 2, Pr + k + 2, sL2E, T))
                if k == 3: p("v_add_f32 v%d, v%d, v%d" % (T + 1, Pr, Pr + 1))
                if k > 3: p("v_add_f32 v%d, v%d, v%d" % (T + 1, T + 1, Pr + k - 2))
            p("v_add_f32 v%d, v%d, v%d\nv_add_f32 v%d, v%d, v%d\nv_rcp_f32 v%d, v%d" % (T + 1, T + 1, Pr + 14, T + 1, T + 1, Pr + 15, T, T + 1))
            for k in range(8):
                p("v_mul_f32 v%d, v%d, v%d\nv_mul_f32 v%d, v%d, v%d" % (Pr + 2 * k, Pr + 2 * k, T, Pr + 2 * k + 1, Pr + 2 * k + 1, T))
                if k: p("v_cvt_pk_bf16_f32 v%d, v%d, v%d" % (out + (k - 1), Pr + 2 * k - 2, Pr + 2 * k - 1))
            p("v_cvt_pk_bf16_f32 v%d, v%d, v%d" % (out + 7, Pr + 14, Pr + 15))
            return p
        for k in range(5): p("v_max3_f32 v%d, v%d, v%d, v%d" % (T + k, Pr + 3 * k, Pr + 3 * k + 1, Pr + 3 * k + 2))
        p("v_max3_f32 v%d, v%d, v%d, v%d\nv_max3_f32 v%d, v%d, v%d, v%d\nv_max_f32 v%d, v%d, v%d" % (T, T, T + 1, Pr + 15, T + 2, T + 2, T + 3, T + 4, T, T, T + 2))
        p("v_mul_f32 v%d, 0x%x, v%d" % (T, f2u(-L2E), T))
        for k in range(8): p("v_pk_fma_f32 %s, %s, %s, %s op_sel_hi:[1,0,0]" % (vr(Pr + 2 * k, 2), vr(Pr + 2 * k, 2), sr(sL2E, 2), vr(T, 2)))
        for k in range(16): p("v_exp_f32 v%d, v%d" % (Pr + k, Pr + k))
        for k in range(4): p("v_pk_add_f32 %s, %s, %s" % (vr(T + 2 * k, 2), vr(Pr + 4 * k, 2), vr(Pr + 4 * k + 2, 2)))
        p("v_pk_add_f32 %s, %s, %s\nv_pk_add_f32 %s, %s, %s\nv_pk_add_f32 %s, %s, %s" % (vr(T, 2), vr(T, 2), vr(T + 2, 2), vr(T + 4, 2), vr(T + 4, 2), vr(T + 6, 2), vr(T, 2), vr(T, 2), vr(T + 4, 2)))
        p("v_add_f32 v%d, v%d, v%d\nv_rcp_f32 v%d, v%d" % (T, T, T + 1, T, T))
        for k in range(8): p("v_pk_mul_f32 %s, %s, %s op_sel_hi:[1,0]" % (vr(Pr + 2 * k, 2), vr(Pr + 2 * k, 2), vr(T, 2)))
        for k in range(8): p("v_cvt_pk_bf16_f32 v%d, v%d, v%d" % (out + k, Pr + 2 * k, Pr + 2 * k + 1))
        return p
    def gelu(self, a, T, soff, imm, pk=True):
        p = P()
        if not pk:
            for k in range(8): p("v_mul_f32 v%d, v%d, v%d" % (T + k, a + k, a + k))
            for k in range(8): p("v_fma_f32 v%d, v%d, s%d, v%d" % (T + k, T + k, sK2, vK1))
            for k in range(2): p("v_mul_f32 v%d, v%d, v%d" % (T + k, T + k, a + k))
            for k in range(8):
                p("v_exp_f32 v%d, v%d" % (T + k, T + k))
                if k < 6: p("v_mul_f32 v%d, v%d, v%d" % (T + k + 2, T + k + 2, a + k + 2))
                p("v_mul_f32 v%d, v%d, v%d" % (a + k, a + k, a + 8 + k))
            for k in range(2): p("v_add_f32 v%d, 1.0, v%d" % (T + k, T + k))
            for k in range(8):
                p("v_rcp_f32 v%d, v%d" % (T + k, T + k))
                if k < 6: p("v_add_f32 v%d, 1.0, v%d" % (T + k + 2, T + k + 2))
                if k >= 1: p("v_mul_f32 v%d, v%d, v%d" % (a + k - 1, a + k - 1, T + k - 1))
            p("v_cvt_pk_bf16_f32 v%d, v%d, v%d\nv_mul_f32 v%d, v%d, v%d" % (a + 8, a, a + 1, a + 7, a + 7, T + 7))
            for k in range(1, 4): p("v_cvt_pk_bf16_f32 v%d, v%d, v%d" % (a + 8 + k, a + 2 * k, a + 2 * k + 1))
            p("buffer_store_dwordx4 %s, v%d, %s, s%d offen offset:%d sc1" % (vr(a + 8), vL16, sr(sH), soff, imm), tag="hst")
            return p
        for k in range(4): p("v_pk_mul_f32 %s, %s, %s" % (vr(T + 2 * k, 2), vr(a + 2 * k, 2), vr(a + 2 * k, 2)))
        for k in range(4): p("v_pk_fma_f32 %s, %s, %s, %s op_sel_hi:[1,0,0]" % (vr(T + 2 * k, 2), vr(T + 2 * k, 2), sr(sK2, 2), vr(vK1, 2)))
        for k in range(4): p("v_pk_mul_f32 %s, %s, %s" % (vr(T + 2 * k, 2), vr(T + 2 * k, 2), vr(a + 2 * k, 2)))
        for k in range(8): p("v_exp_f32 v%d, v%d" % (T + k, T + k))
        for k in range(4): p("v_pk_mul_f32 %s, %s, %s" % (vr(a + 2 * k, 2), vr(a + 2 * k, 2), vr(a + 8 + 2 * k, 2)))
        for k in range(4): p("v_pk_add_f32 %s, %s, 1.0 op_sel_hi:[1,0]" % (vr(T + 2 * k, 2), vr(T + 2 * k, 2)))
        for k in range(8): p("v_rcp_f32 v%d, v%d" % (T + k, T + k))
        for k in range(4): p("v_pk_mul_f32 %s, %s, %s" % (vr(a + 2 * k, 2), vr(a + 2 * k, 2), vr(T + 2 * k, 2)))
        for k in range(4): p("v_cvt_pk_bf16_f32 v%d, v%d, v%d" % (a + 8 + k, a + 2 * k, a + 2 * k + 1))
        p("buffer_store_dwordx4 %s, v%d, %s, s%d offen offset:%d sc1" % (vr(a + 8), vL16, sr(sH), soff, imm), tag="hst")
        return p
    @staticmethod
    def cluster(e, after):
        after = [int(x) for x in str(after).split(".") if x != ""]
        out = []; held = []; k = 0
        for i in e.l:
            if i.op == "buffer_store_dwordx4":
                held.append(i)
                if not after or k in after: out += held; held = []
                k += 1
            else: out.append(i)
        assert not held
        e.l = out
    def hpos(self, p, dst, ksreg):
        p("s_and_b32 s3, s%d, 3\ns_mul_i32 s3, s3, 30\ns_lshr_b32 s%d, s%d, 2\ns_add_u32 s3, s3, s%d" % (ksreg, dst, ksreg, dst))
        p("s_lshl_b32 s3, s3, %d\ns_add_u32 s%d, s3, s%d" % (10 + self.hs, dst, sHo))
    def scalars(self, e, B):
        if self.hs == 2: e("v_lshrrev_b32 v2, 3, v1\nv_lshl_add_u32 v%d, v2, 7, v%d" % (vL16, vL16))
        self.flag_off(e, "h", B, sF1); self.flag_off(e, "o" if B else "kv", B, sF2)
        self.poll_off(e, "h"); self.poll_off(e, "o")
        if B: self.poll_off(e, "kv")
        e("s_lshl_b32 s%d, s%d, 8\ns_add_u32 s%d, s%d, 0x%x" % (sGo, sTT, sGo, sGo, WS_G))
        e("s_lshl_b32 s%d, s%d, 16\ns_lshl_b32 s3, s%d, 7\ns_add_u32 s%d, s%d, s3\ns_add_u32 s%d, s%d, 32768" % (sOa, sTT, sCT, sOa, sOa, sOb, sOa))
    @staticmethod
    def cost(c):
        t = 0
        for i in c:
            if i.raw or i.op.startswith("@cut"): continue
            t += 8 if i.op.startswith(("v_exp", "v_rcp")) else 40 if i.op == "ds_write_b128" else 20 if i.cls == "vmem" else 32 if i.cls == "mfma" else 4
        return t
    @staticmethod
    def zones(l):
        out = []; pk = [i.op.startswith("v_pk") for i in l]; k = 0
        while k < len(l):
            if not pk[k]: out.append([l[k]]); k += 1; continue
            e = k
            while any(pk[e + 1:e + 4]): e += 1
            out.append(l[k:e + 1]); k = e + 1
        return out
    def flush(self, p):
        self.nflush = len(self.fq)
        for c in self.fq: p.ext(c)
        self.fq = []
    def engine(self, p, nsteps, mfmas, reads, pre, rel, dq, front, budget=lambda g: 24):
        self.fq = []; debt = 0
        for g in range(nsteps):
            self.g = g
            pre(g, p)
            if g in rel: dq += rel[g]()
            nxt = min([k for k in rel if k > g] + [nsteps])
            nq = -(-len(dq) // (nxt - g))
            mm = mfmas(g); rd = reads(g); ex = list(self.side.get(g, []))
            fr = front(g)
            if fr: nq = max(nq, min(len(dq), fr * len(mm)))
            rper = max(2, -(-len(rd) // max(1, len(mm) - 1)))
            if self.fq and len(rd) <= len(mm) and (g % 4 != 2 or len(mm) == 2): rper = 1
            for gi, m in enumerate(mm):
                xm = self.o.get("x_j1", 0) if g < 31 else 0
                if not xm & 1: p(m)
                n0 = len(p.l)
                for _ in range(rper):
                    if rd:
                        c = rd.pop(0)
                        if not xm & 2 or len(rd) == 0: p.ext(c)
                rem = len(mm) - gi
                k = max(nq // rem, min(nq, fr))
                for _ in range(k):
                    c = dq.pop(0); nq -= 1
                    if xm & 4 and c[-1].cls == "vmem" and len(dq) > 0: c = c[:-1]
                    p.ext(c)
                k = -(-len(ex) // rem)
                for _ in range(k): p.ext(ex.pop(0))
                used = self.cost(p.l[n0:])
                while self.fq:
                    c = self.fq[0]; z = c[0].op.startswith("v_pk"); cc = self.cost(c)
                    if not z and used + min(cc, 16) > budget(g): break
                    p.ext(self.fq.pop(0)); used += cc
                    if c[0].cls == "mfma": used = 0
                    if z: break
            assert not rd and not ex and nq == 0
        assert not dq
        self.g = nsteps
        self.flush(p)
    def addside(self, g, chunks): self.side.setdefault(g, []); self.side[g] += chunks
    def spread(self, chunks, g0, g1):
        if isinstance(chunks, P): chunks = [[i] for i in chunks.l]
        n = len(chunks)
        for g in range(g0, g1): self.addside(g, chunks[(g - g0) * n // (g1 - g0):(g - g0 + 1) * n // (g1 - g0)])
    def seg(self, p, e, spec):
        ch = self.w2(spec)
        p.ext(merge(e.l, ch, max(1, len(e.l) // (len(ch) + 1))))
    xf = staticmethod(lambda g, tb: ar(8 * (g % 32) + 4 * tb))
    def pathA(self):
        o = self.o; p = P(); B = self.B = False; self.side = {}
        vWo2 = 24; vXa = 28; vWa1 = 32; vWa2 = 34
        aPw, aPw2, aVw, aPr, aVr, aKeep, aOnes, aAt = range(36, 44)
        J = [A_J2 + 16384 * i for i in range(4)]
        K = [A_KV + 16384 * i for i in range(3)]
        ex = o.get("aexp", 1); sHs = 36
        gx = 32 if ex else 4 * o.get("axb", 12) + 3; gk = gx + o.get("akv", 3 if ex else 4)
        GL = J + XS + [J[0]]
        bars = [int(x) for x in str(o.get("abar", "8.11.13.15" if ex else "8.9.10.11.12.13.15")).split(".")]
        fb = lambda n: 4 * min(k for k in bars if k >= n) + 3
        av = {}
        for m in range(8): av[GL[m]] = fb(8 + m)
        for i in range(3): av[K[i]] = fb(gk // 4)
        for i in range(8): av["G%d" % i] = [23, 23, 23, 31, 27, 31, 23, fb(8)][i]
        self.w2_init(K + J[1:] + XS + [J[0]] + K + J[1:3] if ex else J[1:] + XS[:1] + K + XS[1:] + J + XS[:1] + K[:1], [0, 65536, 131072], av)
        p("LpathA:")
        p("s_lshr_b32 s%d, s%d, 1\ns_lshl_b32 s3, s%d, 2" % (sTmp, sWave, sTmp))
        p("v_lshlrev_b32 v6, 1, v5\nv_xor_b32 v6, v3, v6\nv_xor_b32 v6, s3, v6\nv_lshlrev_b32 v6, 4, v6")
        p("v_mul_u32_u24 v7, 3072, v2\nv_add_u32 v%d, v6, v7" % vWo)
        for j in range(1, 4): p("v_add_u32 v%d, %d, v%d" % (vWo + j, j * (8 * 3072 - 1024), vWo))
        p("s_lshl_b32 s%d, s%d, 10\ns_lshl_b32 s3, s%d, 7\ns_add_u32 s%d, s%d, s3\ns_mul_i32 s3, s%d, %d\ns_add_u32 s%d, s%d, s3\ns_add_u32 s%d, s%d, 1024" % (sWa, sTmp, sU, sWa, sWa, sC, 32 * 3072, sWa, sWa, sWa, sWa))
        kvdma = lambda sg: self.group(4, sMx, A_KV + 16384 * (sg % 3), vWo, sQ, sWa, 64 * 3072, "slab%d" % sg)
        gudma = lambda m: self.group(4, sMx, GL[m], vWo2, sW, sWb, 64 * 2752, "slab%d" % (8 + m))
        self.other = gudma
        for c in kvdma(0): p.ext(c)
        if o.get("gate", o["aux"]) == "L":
            self.srd(p, sM2, 20, 1024)
            p("s_lshl_b32 s3, s%d, 8\ns_add_u32 m0, s3, %d\nv_lshlrev_b32 v7, 4, v1\ns_mov_b64 exec, 0xffff" % (sWave, MISC + 2048))
            p("buffer_load_dwordx4 v7, %s, s3 offen lds" % sr(sM2), tag="slab0")
            p("s_mov_b64 exec, -1")
        if self.sc:
            z = P(); self.srd(z, sH, 26, WS_SIZE)
            z("s_lshl_b32 s3, s%d, 2\ns_add_u32 s3, s3, s%d\ns_lshl_b32 s3, s3, 12\ns_add_u32 s3, s3, 0x%x\nv_lshlrev_b32 v7, 4, v1" % (sU, sWave, WS_KV))
            for k in range(4): z("v_mov_b32 v%d, 0" % (96 + k))
            for k in range(3): z("buffer_store_dwordx4 %s, v7, %s, s3 offen offset:%d sc1" % (vr(96), sr(sH), 1024 * k))
            z("s_lshl_b32 s3, s%d, 14\ns_add_u32 s3, s3, s%d\ns_lshl_b32 s3, s3, 10\ns_add_u32 s3, s3, 0x%x" % (sWave, sU, WS_FL))
            z("buffer_store_dwordx4 %s, v7, %s, s3 offen sc1" % (vr(96), sr(sH)))
            p("s_cmp_lg_u32 s%d, 0\ns_cbranch_scc1 Lnz" % sT)
            for i_ in z.l: p(i_.text, raw=True)
            p("Lnz:")
        for c in self.touches("s0"): p.ext(c)
        self.stamp(p, "issued0")
        dq = self.xdma(1) + kvdma(1)
        npre = o.get("apre", 8)
        for c in dq[:npre]: p.ext(c)
        dq = dq[npre:]
        p("v_mul_u32_u24 v7, 2752, v2\nv_add_u32 v%d, v6, v7" % vWo2)
        for j in range(1, 4): p("v_add_u32 v%d, %d, v%d" % (vWo2 + j, j * (8 * 2752 - 1024), vWo2))
        p("s_lshl_b32 s3, s%d, 2\ns_add_u32 s%d, s3, 54" % (sU, sFfn))
        p("s_lshl_b32 s%d, s%d, 5\ns_mul_i32 s3, s%d, %d\ns_add_u32 s%d, s%d, s3" % (sWb, sFfn, sC, 32 * 2752, sWb, sWb))
        self.common2(p, B)
        p("s_lshr_b32 s3, s%d, 1\ns_lshl_b32 s3, s3, 13\nv_add_u32 v%d, s3, v6" % (sWave, vXa))
        for s in range(1, 4): p("v_xor_b32 v%d, %d, v%d" % (vXa + s, s << 5, vXa))
        p("s_lshl_b32 s3, s%d, 1\nv_lshl_or_b32 v9, v5, 1, v9\nv_xor_b32 v9, s3, v9\nv_lshl_add_u32 v9, v9, 5, v7\nv_lshl_add_u32 v9, v8, 7, v9\nv_lshl_add_u32 v9, v5, 13, v9" % sC)
        p("v_add_u32 v%d, %d, v9\nv_xor_b32 v%d, 32, v%d\nv_add_u32 v%d, %d, v9\nv_xor_b32 v%d, 32, v%d" % (vWa1, A_KV, vWa1 + 1, vWa1, vWa2, A_J2, vWa2 + 1, vWa2))
        if not self.sc:
            p("s_cmp_eq_u32 s%d, 0\ns_cselect_b32 s%d, 0, 0x%x\ns_add_u32 s3, s%d, s%d" % (sT, sTmp, OOB, sKv, sTmp))
            for k in range(4): p("v_mov_b32 v%d, 0" % (96 + k))
            for k in range(3): p("buffer_store_dwordx4 %s, v%d, %s, s3 offen offset:%d sc1" % (vr(96), vL16, sr(sH), 1024 * k), tag="zst")
            p("s_lshl_b32 s3, s%d, 13\ns_add_u32 s3, s3, s%d\ns_add_u32 s3, s3, 0x%x\ns_lshl_b32 s%d, s%d, 26\ns_add_u32 s3, s3, s%d\nv_lshlrev_b32 v2, 7, v1" % (sU, sTmp, WS_FL, sTmp, sWave, sTmp))
            p("buffer_store_dword v96, v2, %s, s3 offen sc1" % sr(sH), tag="zst")
        lg = o.get("gate", o["aux"]) == "L"
        if lg:
            p("s_lshl_b32 s3, s%d, 2\ns_add_u32 s3, s3, s%d\ns_lshl_b32 s3, s3, 2\nv_bfe_u32 v2, v1, 3, 2\nv_add_u32 v2, s3, v2\nv_and_b32 v3, 7, v1" % (sU, sWave))
            p("v_bfe_u32 v4, v2, 1, 3\nv_xor_b32 v4, v3, v4\nv_lshlrev_b32 v4, 4, v4\nv_lshl_add_u32 v78, v2, 7, v4\nv_lshlrev_b32 v3, 4, v3\nv_add_u32 v79, %d, v3\nv_mov_b32 v74, 0" % (MISC + 2048))
            p("s_lshl_b32 s%d, s%d, 7\ns_add_u32 s%d, s%d, s3\ns_lshl_b32 s%d, s%d, 2\ns_add_u32 s%d, s%d, 0x%x" % (sMw, sT, sMw, sMw, sMw, sMw, sMw, sMw, WS_G))
        dq += self.touches("s1") + self.xdma(2) + kvdma(2) + self.touches("s2")
        p("@wait vm:slab0\ns_barrier")
        self.stamp(p, "slab0")
        fw = lambda g, b: vFr + 8 * (g & 1) + 4 * b
        acc = lambda job, b, tb: 128 + 64 * job + 32 * b + 16 * tb
        def rd(g):
            r = []
            if g >= 64: return r
            sg, s = g // 4, g % 4
            def w(b):
                for half in range(2):
                    if g < 32: va, off = vWa1 + b, 16384 * (sg % 3)
                    elif GL[sg - 8] >= A_J2: va, off = vWa2 + b, GL[sg - 8] - A_J2
                    else: va, off = vWa1 + b, GL[sg - 8]
                    r.append([Ins("ds_read_b64_tr_b16 %s, v%d offset:%d" % (vr(fw(g, b) + 2 * half, 2), va, off + s * 2048 + half * 512))])
            def x(tb):
                if g < 32: r.append([Ins("ds_read_b128 %s, v%d offset:%d" % (self.xf(g, tb), vXa + s, XS[sg % 3] + 4096 * tb))])
            x(0); w(0); x(1); w(1)
            return r
        for c in rd(0): p.ext(c)
        def mfmas(g):
            return ["%s %s, %s, %s, %s" % (MF, vr(acc(g // 32, b, tb), 16), vr(fw(g, b)), self.xf(g, tb), "0" if g % 32 == 0 else vr(acc(g // 32, b, tb), 16)) for b in range(2) for tb in range(2)]
        gl, gc, gst = self.gate_job()
        t2a, t2l = self.touch2()
        if o.get("gate", o["aux"]) == "B": gl, gc, gst = [], P(), P()
        if lg:
            gl = []; gc = P()
            for sg in range(8):
                self.addside(4 * sg, [[Ins("ds_read_b128 v[112:115], v78 offset:%d" % XS[sg % 3])], [Ins("ds_read_b128 v[116:119], v79 offset:%d" % (128 * sg))]])
                self.addside(4 * sg + 2, [[Ins("v_dot2c_f32_bf16 v74, v%d, v%d" % (112 + i, 116 + i))] for i in range(4)])
            gc("v_and_b32 v6, 0x27, v1\nv_lshrrev_b32 v7, 1, v1\nv_lshl_or_b32 v21, v6, 24, v7")
            for m in ("quad_perm:[1,0,3,2]", "quad_perm:[2,3,0,1]", "row_half_mirror"): gc("v_add_f32_dpp v74, v74, v74 %s row_mask:0xf bank_mask:0xf" % m)
            gc("v_mul_f32 v2, 0x%x, v74\nv_exp_f32 v2, v2\nv_add_f32 v2, 1.0, v2\nv_rcp_f32 v20, v2" % f2u(-L2E))
        if o.get("tw", o["aux"]) == "B": t2a, t2l = P(), []
        self.addside(8, gl[:1])
        z = P(); z("s_cmp_eq_u32 s%d, 0\ns_cselect_b32 s%d, 0, 0x%x\ns_lshl_b32 s3, s%d, 2\ns_add_u32 s3, s3, s%d" % (sT, sTmp, OOB, sU, sTmp))
        z("buffer_store_dword v%d, v%d, %s, s3 offen sc1" % (vOne, vFlag, sr(sG)))
        if self.sc:
            z = P(); z("s_lshl_b32 s3, s%d, 2\ns_or_b32 s%d, s%d, s%d\ns_cbranch_scc1 Lni" % (sU, sTmp, sT, sWave))
            z("s_atomic_add s%d, s[%d:%d], s3\nLni:" % (sExp, sG, sG + 1), raw=True); z("@async")
        self.addside(o.get("ainit", 3) if self.sc else 7, [z.l])
        e = P()
        e("v_and_b32 v2, 31, v1\nv_lshrrev_b32 v3, 5, v1\nv_bfe_u32 v4, v1, 1, 2\nv_lshlrev_b32 v5, 1, v3\nv_xor_b32 v4, v4, v5\nv_lshlrev_b32 v4, 4, v4\nv_lshl_add_u32 v4, v2, 6, v4")
        e("s_lshl_b32 s3, s%d, 2\ns_lshr_b32 s%d, s%d, 1\ns_add_u32 s%d, s%d, s3" % (sC, sTmp, sWave, sTmp, sTmp))
        e("s_lshl_b32 s3, s%d, 12\ns_add_u32 s3, s3, %d\nv_add_u32 v%d, s3, v4\nv_xor_b32 v%d, 16, v%d" % (sTmp, A_PHI, aPw, aPw2, aPw))
        e("v_bfe_u32 v4, v1, 2, 1\nv_xor_b32 v4, v4, v3\nv_lshlrev_b32 v4, 4, v4\nv_lshl_add_u32 v4, v2, 5, v4")
        e("s_lshl_b32 s3, s%d, 11\ns_add_u32 s3, s3, %d\nv_add_u32 v%d, s3, v4" % (sTmp, A_V, aVw))
        e("v_lshlrev_b32 v%d, 2, v2\nv_lshl_add_u32 v%d, v3, 9, v%d" % (aAt, aAt, aAt))
        e("v_bfe_u32 v4, v1, 2, 2\nv_lshl_add_u32 v5, v3, 2, v4")
        e("v_bfe_u32 v6, v1, 1, 1\nv_bfe_u32 v7, v1, 4, 1\nv_lshl_or_b32 v8, v7, 1, v6\nv_lshrrev_b32 v9, 1, v5\nv_xor_b32 v8, v8, v9\nv_lshlrev_b32 v8, 4, v8")
        e("v_and_b32 v9, 1, v1\nv_lshl_add_u32 v8, v9, 3, v8\nv_lshl_add_u32 v8, v5, 6, v8\ns_lshl_b32 s3, s%d, 13\ns_add_u32 s3, s3, %d\nv_add_u32 v%d, s3, v8" % (sWave, A_PHI, aPr))
        e("v_xor_b32 v9, v9, v3\nv_lshlrev_b32 v9, 4, v9\nv_lshl_add_u32 v9, v6, 3, v9\nv_lshl_add_u32 v9, v5, 5, v9\ns_add_u32 s3, s%d, %d\nv_add_u32 v%d, s3, v9" % (sMx, A_V, aVr))
        e("v_add_u32 v%d, -1, v7\nv_mul_u32_u24 v%d, 0x3f80, v7\nv_lshl_or_b32 v%d, v%d, 16, v%d" % (aKeep, aOnes, aOnes, aOnes, aOnes))
        w1, w2_ = self.wphi_read()
        e.ext(self.w2_addr()); e.ext(t2a); e.ext(w1)
        self.spread(e, 11, 23)
        e = P(); e.ext(w2_); self.scalars(e, B)
        e("s_lshl_b32 s3, s%d, 1\ns_lshr_b32 s%d, s%d, 1\ns_add_u32 s3, s3, s%d\ns_mul_i32 s%d, s3, %d" % (sT, sTmp, sWave, sTmp, sHo, 245760 * self.hs))
        e("s_lshl_b32 s%d, s%d, 1\ns_add_u32 s%d, s%d, s%d\ns_add_u32 s%d, s%d, 2" % (sTmp, sC, sTmp, sTmp, sFfn, sTmp, sTmp)); self.hpos(e, sHs, sTmp)
        e("s_add_u32 s%d, s%d, 1" % (sTmp, sTmp)); self.hpos(e, sHs + 1, sTmp)
        e("s_lshl_b32 s3, s%d, 2\ns_add_u32 s3, s3, s%d\ns_mul_i32 s%d, s3, %d" % (sTT, sWave, sHo, 61440 * self.hs))
        self.spread(e, 24, 32)
        items = [(b, tb) for b in range(2) for tb in range(2)]
        vKf, vV, vPh = 96, 104, 112
        e = P()
        def prep(k):
            b, tb = items[k]; a = acc(0, b, tb); kf = vKf + 4 * (k & 1); vv = vV + 4 * (k & 1)
            for i in range(4): e("v_cvt_pk_bf16_f32 v%d, v%d, v%d" % (kf + i, a + 2 * i, a + 2 * i + 1))
            for i in range(4): e("v_cvt_pk_bf16_f32 v%d, v%d, v%d" % (vv + i, a + 8 + 2 * i, a + 9 + 2 * i))
            e("ds_write_b128 v%d, %s offset:%d" % (aVw, vr(vv), b * 4096 + tb * 1024))
            e("%s %s, %s, %s, 0" % (MF, vr(a, 16), vr(vWp + 4 * b), vr(kf)))
        e("v_subrev_u32 v%d, %d, v%d\nv_subrev_u32 v%d, %d, v%d" % (vWa1, A_KV, vWa1, vWa1 + 1, A_KV, vWa1 + 1))
        prep(0); prep(1)
        for k, (b, tb) in enumerate(items):
            ph = vPh + 8 * (k & 1)
            sm = self.softmax(acc(0, b, tb), 2, ph, pk=bool(o.get("apk", 1))).l
            e.ext(sm[:17])
            if k < 2: prep(k + 2)
            k4 = -4 if o.get("apk", 1) else -8
            e.ext(sm[17:k4])
            e("ds_write_b128 v%d, %s offset:%d" % (aPw, vr(ph), b * 8192 + tb * 2048))
            e.ext(sm[k4:])
            e("ds_write_b128 v%d, %s offset:%d" % (aPw2, vr(ph + 4), b * 8192 + tb * 2048))
        e0 = e
        z = P(); self.poll_issue(z, "init"); self.addside(29, [z.l])
        kv = 96; fa = lambda s: 128 + 8 * s
        e = P()
        for s in range(11):
            if s < 8:
                for half in range(2): e("ds_read_b64_tr_b16 %s, v%d offset:%d" % (vr(fa(s) + 2 * half, 2), aVr, s * 512 + half * 256))
                for half in range(2): e("ds_read_b64_tr_b16 %s, v%d offset:%d" % (vr(fa(s) + 4 + 2 * half, 2), aPr, s * 1024 + half * 512))
            if 2 <= s < 10:
                for i in range(4): e("v_and_or_b32 v%d, v%d, v%d, v%d" % (fa(s - 2) + i, fa(s - 2) + i, aKeep, aOnes))
            if s >= 3: e("%s %s, %s, %s, %s" % (MF, vr(kv, 16), vr(fa(s - 3)), vr(fa(s - 3) + 4), "0" if s == 3 else vr(kv, 16)))
        self.spread(e, gx, gk)
        ch = [[Ins("buffer_atomic_add_f32 v%d, v%d, %s, s%d offen offset:%d" % (kv + i, aAt, sr(sH), sKv, (8 * (i >> 2) + (i & 3)) * 128), "kvat")] for i in range(8)]
        z = P(); z("s_mov_b32 exec_hi, 0\nbuffer_atomic_add_f32 v%d, v%d, %s, s%d offen offset:2048" % (kv + 8, aAt, sr(sH), sKv), tag="kvat"); z("s_mov_b32 exec_hi, -1")
        self.stamp(z, "atom")
        ga = o.get("aat", gk + 2 if ex else gk + 1)
        self.spread(ch + [z.l] + (t2l if o.get("atz") else []), ga, ga + o.get("aan", 3))
        gg = o.get("agl", gx + 1)
        self.spread(gl[1:], gg, gg + 2)
        if ex: self.spread(gc, 46, 62)
        gf = o.get("akf", 13 if ex else 99)
        dspec = o.get("ad", "G0,G1,,G7,,,,D0.D1,D2.D3,D4.D5,D6" if ex else "G0,G1,,G4,G5.G6,G7,D0,D1,,D2,D3").split(",")
        rspec = o.get("ar", ",,,,,,,R0.R1" if ex else ",,,,,,,").split(",")
        def pre(g, p):
            sg, s = g // 4, g % 4
            if g == 32:
                self.stamp(p, "job1")
                if ex:
                    if o.get("x_nowr"): e0.l = [i for i in e0.l if not i.op.startswith("ds_write")]
                    if o.get("x_nopk"): e0.l = [i for i in e0.l if not i.op.startswith("v_pk")]
                    if o.get("x_noexp"): e0.l = [i for i in e0.l if not i.op.startswith("v_exp")]
                    self.seg(p, e0, o.get("a0", "G2.G3.G4.G5"))
                    self.stamp(p, "ksm0")
                    self.poll_check(p, "init")
                    p("@wait lg:all vm:slab%d\ns_barrier" % bars[0]); self.stamp(p, "ksm")
                    for c in rd(32): p.ext(c)
                else: self.fq += self.zones(e0.l)
            if not ex and g == gx:
                self.flush(p); self.poll_check(p, "init")
            if not ex and g == ga + 2: self.fq += self.zones(gc.l)
            if g >= 32 and s == 0: self.spread(self.w2(rspec[sg - 8]), g, g + 3)
            if s == 3 and (sg < 8 or sg in bars):
                cov = sg + 1 if sg < 7 else min([k for k in bars if k > sg] + [15])
                p("@wait lg:all%s%s%s\ns_barrier" % (" vm:slab%d" % cov if sg != 15 and not (ex and sg == 7) else "", " vm:zst?" if sg == 1 else "", " vm:kvat" if sg == gf else ""))
                if sg == gf: self.flag(p, sF2); self.stamp(p, "kvflag")
                if g == gx: self.stamp(p, "ksm")
        rel = {}
        for sg in range(16):
            def f(sg=sg):
                r = []
                if sg < 5: r += self.xdma(sg + 3) + kvdma(sg + 3) + self.touches("s%d" % (sg + 3))
                if sg == 0: r += [self.wphi_load()]
                if sg >= 5: r += self.w2(dspec[sg - 5])
                return r
            rel[4 * sg + 3] = f
        self.extra = {"T": t2l}
        rel[32] = lambda: self.w2(o.get("a1", "G6" if ex else "G2.G3"))
        rel.setdefault(ga, lambda: [])
        self.engine(p, 64, mfmas, lambda g: [] if ex and g == 31 else rd(g + 1), pre, rel, dq, lambda g: o.get("afr", 0) if g < o.get("afrg", 31) else 0, lambda g: o.get("abud", 24))
        self.stamp(p, "gemm")
        e = P(); e.ext(gst)
        for k, (b, tb) in enumerate(items):
            e.ext(self.gelu(acc(1, b, tb), 2, sHs + b, 1024 * self.hs * tb))
            if gf == 99 and k == o.get("akf2", 1):
                assert not self.sc
                e("@wait vm:kvat\ns_barrier"); self.flag(e, sF2); self.stamp(e, "kvflag")
        self.cluster(e, o.get("ast", ""))
        self.p2pre(e)
        self.seg(p, e, o.get("a2", "D7.D8.Ph"))
        self.stamp(p, "gelu")
        self.seg(p, P(), o.get("a3", ""))
        if o.get("ahf", 0) < 0:
            p("@wait vm:hst\ns_barrier")
            if gf == 100: self.flag(p, sF2)
            self.flag(p, sF1); self.stamp(p, "hflag")
            self.seg(p, P(), o.get("a3b", ""))
        elif gf == 100:
            p("@wait vm:kvat\ns_barrier"); self.flag(p, sF2); self.stamp(p, "kvflag")
        self.poll_check(p, "h")
        p("s_barrier")
        self.stamp(p, "hseen")
        self.phase2(p, B, o.get("a4", "R2.D9,R3,R4.D10,R5,R6,,R7,Pa.D11,R8.D12,R9,,R10,,R11,R12,Po.D13,D14,,,,R13,R14"), o.get("ahf", 0))
        return p
    def pathB(self):
        o = self.o; p = P(); B = self.B = True; self.side = {}
        vXa = 29; vWa = 37; vQa = 41
        self.w2_init([XS[0], B_W, XS[1], B_W + 16384, B_W + 32768] * 3, [0, 65536], {XS[0]: 27, B_W: 27, XS[1]: 31, B_W + 16384: 31, B_W + 32768: 31})
        for i in range(8): self.avail["Q%d" % i] = 0 if i < 3 else 23
        ex = o.get("bexp", 1)
        p("s_mul_i32 s%d, s%d, 7" % (sFfn, sU))
        p("s_mul_i32 s%d, s%d, %d\ns_lshl_b32 s3, s%d, 5\ns_add_u32 s%d, s%d, s3" % (sWa, sC, 32 * 2752, sFfn, sWa, sWa))
        p("s_mul_i32 s%d, s%d, 7168\ns_lshr_b32 s3, s%d, 1\ns_mul_i32 s3, s3, 14464\ns_add_u32 s%d, s%d, s3" % (sMw, sC, sWave, sMw, sMw))
        gudma = lambda sg: self.group(7, sMw, B_W + B_SW * (sg % 3), vWo, sW, sWa, 64 * 2752, "slab%d" % sg)
        qdma = lambda c: self.group(2, sMq, B_Q[c], vWo + 7, sQ, sWb, 64 * 3072, "q%d" % c)
        self.other = qdma
        g0 = gudma(0)
        for j in range(7):
            r = vWo + j
            p("v_add_u32 v6, %d, v1\nv_mul_u32_u24 v8, 4682, v6\nv_lshrrev_b32 v8, 16, v8" % (64 * j))
            p("v_mul_u32_u24 v8, %d, v8\nv_lshl_add_u32 v%d, v6, 4, v8" % (2752 - 224, r))
            if j & 3: p("v_subrev_u32 v%d, %d, v%d" % (r, 1024 * (j & 3), r))
            p.ext(g0[j])
        for c in self.touches("s0"): p.ext(c)
        self.stamp(p, "issued0")
        p("s_branch LbodyB\n@cut\nLbodyB:")
        dq = self.xdma(1) + gudma(1)
        npre = o.get("bpre", 6)
        p("s_mul_i32 s%d, s%d, %d\ns_lshl_b32 s3, s%d, 7\ns_add_u32 s%d, s%d, s3\ns_lshl_b32 s%d, s%d, 11" % (sWb, sWave, 16 * 3072, sU, sWb, sWb, sMq, sWave))
        self.common2(p, B)
        p("v_add_u32 v%d, s%d, v6" % (vXa, sMx))
        for s in range(1, 4): p("v_xor_b32 v%d, %d, v%d" % (vXa + s, s << 5, vXa))
        for s in range(4): p("v_xor_b32 v%d, 0x1000, v%d" % (vXa + 4 + s, vXa + s))
        p("s_lshl_b32 s3, s%d, 1\nv_lshl_or_b32 v9, v9, 1, v5\nv_xor_b32 v9, s3, v9\nv_lshl_add_u32 v9, v9, 5, v7\nv_lshl_add_u32 v9, v8, 7, v9" % sC)
        p("v_add_u32 v%d, %d, v9\nv_add_u32 v%d, %d, v9" % (vQa, B_Q[3], vQa + 1, B_Q[6]))
        p("v_mul_u32_u24 v9, 224, v8\nv_add_u32 v9, v9, v7\nv_mul_u32_u24 v8, 14464, v5\nv_add_u32 v9, v9, v8\ns_mul_i32 s3, s%d, 96" % sC)
        for k in range(2): p("v_add_u32 v%d, %d, v9\nv_add_u32 v%d, s3, v%d\nv_add_u32 v%d, 192, v%d" % (vWa + 2 * k + 1, B_W + 2 * k * B_SW, vWa + 2 * k, vWa + 2 * k + 1, vWa + 2 * k + 1, vWa + 2 * k + 1))
        for c in dq[:npre]: p.ext(c)
        dq = dq[npre:] + self.touches("s1") + self.xdma(2) + gudma(2) + self.touches("s2")
        p("@wait vm:slab0\ns_barrier")
        self.stamp(p, "slab0")
        fw = lambda g, b: vFr + 16 * (g & 1) + 4 * b
        fq = lambda g: vFr + 4 * (g % 4)
        acc = lambda b, tb: 144 + 32 * b + 16 * tb
        aq = lambda tb: 112 + 16 * tb
        LA = 2
        def rd(g):
            r = []
            if g >= 64: return r
            sg, s = g // 4, g % 4
            if g < 32:
                sl = sg % 3
                def w(b):
                    for half in range(2):
                        va = vWa + 2 * (sl >> 1) + (1 if b == 3 else 0); off = (sl & 1) * B_SW + s * 3584 + half * 896 + (b * 32 if b < 3 else 0)
                        r.append([Ins("ds_read_b64_tr_b16 %s, v%d offset:%d" % (vr(fw(g, b) + 2 * half, 2), va, off), "fr%d" % g)])
                def x(tb): r.append([Ins("ds_read_b128 %s, v%d offset:%d" % (self.xf(g, tb), vXa + 4 * tb + s, XS[sl]), "fr%d" % g)])
                x(0); w(0); x(1); w(1); w(2); w(3)
            else:
                c = sg - 8; k = 1 if c >= 6 else 0
                for half in range(2): r.append([Ins("ds_read_b64_tr_b16 %s, v%d offset:%d" % (vr(fq(g) + 2 * half, 2), vQa + k, B_Q[c] - B_Q[6 if k else 3] + s * 2048 + half * 512))])
            return r
        for c in rd(0): p.ext(c)
        def reads(g):
            if g < 31: return rd(g + 1)
            if g == 31: return [] if ex else sum((rd(32 + k) for k in range(LA)), [])
            return rd(g + LA)
        def mfmas(g):
            if g < 32:
                return ["%s %s, %s, %s, %s" % (MF, vr(acc(b, tb), 16), vr(fw(g, b)), self.xf(g, tb), "0" if g == 0 else vr(acc(b, tb), 16)) for b, tb in [(0, 0), (0, 1), (1, 0), (1, 1), (2, 0), (2, 1), (3, 0)]]
            return ["%s %s, %s, %s, %s" % (MF, vr(aq(tb), 16), vr(fq(g)), self.xf(g, tb), "0" if g == 32 else vr(aq(tb), 16)) for tb in range(2)]
        w1, w2_ = self.wphi_read()
        gl, gc, gst = self.gate_job(96, 100, 101, "ost")
        t2a, t2l = self.touch2()
        if o.get("gate", o["aux"]) != "B": gl, gc, gst = [], P(), P()
        if o.get("tw", o["aux"]) == "A": t2a, t2l = P(), []
        self.extra = {"T": t2l, "X": gl[1:]}
        self.addside(11, gl[:1])
        sHs = [32, 33, 34, 35, sMw, sWa, sXo]
        e = P(); e.ext(t2a); e.ext(self.w2_addr()); e.ext(w1); self.spread(e, 12, 19)
        e = P(); e.ext(w2_); self.scalars(e, B); self.spread(e, 19, 23)
        z = P(); self.poll_issue(z, "init"); self.addside(24, [z.l])
        e = P()
        e("s_lshl_b32 s3, s%d, 1\ns_lshr_b32 s%d, s%d, 1\ns_add_u32 s3, s3, s%d\ns_mul_i32 s%d, s3, %d" % (sT, sTmp, sWave, sTmp, sHo, 245760 * self.hs))
        e("s_lshl_b32 s3, s%d, %d\ns_add_u32 s%d, s%d, s3" % (sC, 9 + self.hs, sHo, sHo))
        e("s_mul_i32 s%d, s%d, 3\ns_add_u32 s%d, s%d, s%d" % (sTmp, sC, sTmp, sTmp, sFfn))
        for b in range(4):
            if b == 3: e("s_add_u32 s%d, s%d, 6" % (sTmp, sFfn))
            self.hpos(e, sHs[2 * b], sTmp)
            if b < 3: e("s_xor_b32 s%d, s%d, %d\ns_add_u32 s%d, s%d, 1" % (sHs[2 * b + 1], sHs[2 * b], 1024 * self.hs, sTmp, sTmp))
        e("s_mul_i32 s3, s%d, 60\ns_add_u32 s3, s3, s%d\ns_add_u32 s3, s3, 22\ns_lshl_b32 s3, s3, %d\ns_add_u32 s%d, s3, s%d" % (sC, sU, 10 + self.hs, sOs, sHo))
        e("s_xor_b32 s%d, s%d, %d\ns_add_u32 s%d, s%d, %d\ns_add_u32 s%d, s%d, %d" % (sOs + 1, sOs, 1024 * self.hs, sOs + 2, sOs, 61440 * self.hs, sOs + 3, sOs + 1, 61440 * self.hs))
        bD = [23, 24, 25]; bR = [16, 17, 18, 19]
        e("v_lshrrev_b32 v2, 3, v1\nv_and_b32 v3, 7, v1\nv_lshrrev_b32 v4, 4, v1\nv_xor_b32 v3, v3, v4\nv_lshlrev_b32 v3, 4, v3\nv_lshl_add_u32 v23, v2, 7, v3\nv_xor_b32 v24, 64, v23")
        e("v_lshl_or_b32 v25, v2, 24, v23")
        e("v_and_b32 v2, 31, v1\nv_min_u32 v2, 16, v2\nv_lshrrev_b32 v3, 5, v1\nv_lshlrev_b32 v3, 2, v3\nv_bfe_u32 v4, v2, 1, 3\nv_xor_b32 v3, v3, v4\nv_lshlrev_b32 v3, 4, v3\nv_lshl_add_u32 v3, v2, 7, v3")
        e("s_lshl_b32 s3, s%d, 13\ns_add_u32 s3, s3, %d\nv_add_u32 v16, s3, v3\nv_xor_b32 v17, 16, v16\nv_xor_b32 v18, 32, v16\nv_xor_b32 v19, 48, v16" % (sC, B_KZ))
        e("s_lshl_b32 s3, s%d, 2\ns_add_u32 s3, s3, s%d\ns_mul_i32 s%d, s3, %d" % (sTT, sWave, sHo, 61440 * self.hs))
        self.spread(e, 23, 31)
        e = P()
        npk = o.get("bpk", 7 if ex else 0)
        e0 = P()
        for k in range(7): (e0 if k < npk else e).ext(self.gelu(acc(k >> 1, k & 1), 2, sHs[k], 0, pk=k < npk + o.get("bhy", 7)))
        self.cluster(e0, o.get("bst", ""))
        self.stamp(e0 if npk == 7 else e, "gelu")
        e1 = e
        gh = o.get("bhf", 46 if ex else 99)
        dspec = o.get("bd", "T,Q0.Q1.Q2.Q3,,D2,D3,D4,D5,D6,D7,Pkv.D8,D9" if ex else "Q0.Q1.Q2.Q3.Q4.Q5.Q6.Q7,D0.D1,D2,D3.D4,,D5,D6,D7,D8,D9,D10").split(",")
        rspec = o.get("br", ",,R0,R1,R2,R3,R4,R5").split(",")
        def pre(g, p):
            sg, s = g // 4, g % 4
            if g == 32:
                self.stamp(p, "job1"); self.seg(p, e0, o.get("b0", "Q4.Q5.Q6.Q7.X.D0.D1" if ex else ""))
                if ex:
                    p("@wait vm:q7\ns_barrier")
                    for k in range(LA):
                        for c in rd(32 + k): p.ext(c)
                self.fq += self.zones(e1.l)
            if g >= 32 and s == 0: self.spread(self.w2(rspec[sg - 8]), g, g + 4)
            if g < 32:
                if s == 3:
                    if sg == 7: self.poll_check(p, "init")
                    p("@wait lg:all%s\ns_barrier" % (" vm:slab%d" % (sg + 1) if sg < 7 else ("" if ex else " vm:q7")))
                else: p("@wait lg:fr%d" % g)
            if g == o.get("bgc", 42): self.fq += self.zones(gc.l)
            if g == gh:
                self.flush(p)
                p("@wait vm:hst\ns_barrier"); self.flag(p, sF1); self.stamp(p, "hflag")
        rel = {}
        for sg in range(8):
            def f(sg=sg):
                r = []
                if sg < 5: r += self.xdma(sg + 3) + gudma(sg + 3) + self.touches("s%d" % (sg + 3))
                if sg == 0: r += [self.wphi_load()]
                if sg >= 5: r += self.w2(dspec[sg - 5])
                return r
            rel[4 * sg + 3] = f
        for k in range(8): rel[32 + 4 * k] = (lambda k=k: self.w2(dspec[3 + k]))
        self.engine(p, 64, mfmas, reads, pre, rel, dq, lambda g: o.get("bfr", 0) if g < o.get("bfrg", 31) else 0, lambda g: o.get("bbud", 24))
        self.stamp(p, "gemm")
        items = [(b, tb) for b in range(2) for tb in range(2)]
        vKf = 96; vKz = 208; vPh = 224
        pa = lambda k: 144 + 16 * k
        e = P(); self.p2pre(e)
        for k in (0, 2, 1, 3):
            b, tb = items[k]; a = aq(tb) + 8 * b
            for i in range(4): e("v_cvt_pk_bf16_f32 v%d, v%d, v%d" % (vKf + 4 * k + i, a + 2 * i, a + 2 * i + 1))
            e("%s %s, %s, %s, 0" % (MF, vr(pa(k), 16), vr(vWp + 4 * b), vr(vKf + 4 * k)))
        h0 = o.get("bh0", 0)
        sm = [self.softmax(pa(k), 2, vPh + 8 * k).l for k in range(4)]
        for k in range(h0): e.ext(sm[k])
        self.seg(p, e, o.get("b2", ""))
        self.poll_check(p, "kv")
        p("%ss_add_u32 m0, s%d, %d\ns_barrier" % ("@wait vm:hst\n" if gh == 99 else "", sMx, B_KZ))
        if gh == 99: self.flag(p, sF1); self.stamp(p, "hflag")
        self.stamp(p, "kvseen")
        for j in range(3): p("buffer_load_dwordx4 v%d, %s, s%d offen offset:%d sc1 lds" % (bD[j], sr(sH), sKv, 1024 * j), tag="kvz")
        e = P()
        for k in range(h0, 2): e.ext(sm[k])
        self.seg(p, e, o.get("b3", "Ph.D10.R6"))
        self.poll_check(p, "h")
        p("@wait vm:kvz\ns_barrier"); self.stamp(p, "hseen")
        kz = 112; PF = o["pf"]
        def omm(e, k):
            b = k >> 1
            e("%s %s, %s, %s, 0" % (MF, vr(pa(k), 16), vr(vKz + 8 * b), vr(vPh + 8 * k)))
            e("%s %s, %s, %s, %s" % (MF, vr(pa(k), 16), vr(vKz + 8 * b + 4), vr(vPh + 8 * k + 4), vr(pa(k), 16)))
        def ofin(e, k):
            a = pa(k)
            e("v_add_f32 v%d, 0x%x, v%d\nv_rcp_f32 v%d, v%d" % (a + 8, f2u(1e-6), a + 8, a + 8, a + 8))
            for i in range(4): e("v_pk_mul_f32 %s, %s, %s op_sel_hi:[1,0]" % (vr(a + 2 * i, 2), vr(a + 2 * i, 2), vr(a + 8, 2)))
            for i in range(4): e("v_cvt_pk_bf16_f32 v%d, v%d, v%d" % (a + 12 + i, a + 2 * i, a + 2 * i + 1))
        def ost(e, k): e("buffer_store_dwordx4 %s, v%d, %s, s%d offen sc1" % (vr(pa(k) + 12), vL16, sr(sH), sOs + k), tag="ost")
        e = P()
        for b in range(2):
            for q4 in range(4): e("ds_read_b128 %s, v%d offset:%d" % (vr(kz + 16 * b + 4 * q4), bR[q4], 4096 * b))
        e.ext(sm[2][:17])
        for b in range(2):
            for i in range(8): e("v_cvt_pk_bf16_f32 v%d, v%d, v%d" % (vKz + 8 * b + i, kz + 16 * b + 2 * i, kz + 16 * b + 2 * i + 1))
        z = P(); omm(z, 0); omm(z, 1)
        e.ext(merge(sm[2][17:33], [[i] for i in z.l], 3)); e.ext(sm[2][33:])
        e.ext(sm[3][:17])
        z = P(); omm(z, 2)
        e.ext(merge(sm[3][17:33], [[i] for i in z.l], 3)); e.ext(sm[3][33:])
        omm(e, 3)
        self.seg(p, e, o.get("b4", "H0.H1.H2.H3.H4"))
        self.stamp(p, "qsm")
        e = P()
        for k in range(4):
            ofin(e, k)
            if o.get('x_nogate', 0) < 3: ost(e, k)
        self.cluster(e, o.get("ost", ""))
        if o.get('x_nogate', 0) < 3: e.ext(gst)
        self.seg(p, e, o.get("b5", ""))
        self.phase2(p, B, o.get("b6", ",R7,,R8,,R9,,Pa.D11,D12,R10,,,,R11,R12,Po.D13,D14,,,,R13,R14"), o.get("bof", 4))
        return p
    def pathB3(self):
        o = self.o; p = P(); B = self.B = True; self.side = {}
        vXa = 29; vWa = 37; vQa = 41
        SW = 37120; W0, W1, W2 = B_W, B_W + SW, B_W + 2 * SW; B_KZ = W1 + 16384
        self.w2_init(([XS[2], W2, W2 + 16384, XS[0], W0, W0 + 16384, XS[1], W1] * 2)[:15], [0, 65536, W2],
                     {XS[2]: 23, W2: 23, W2 + 16384: 23, XS[0]: 27, W0: 27, W0 + 16384: 27, XS[1]: 31, W1: 31})
        self.rmin = lambda i: 32 if i == 14 else 0
        self.used += ["Q%d" % i for i in range(8)]
        xf = lambda g, tb: ar(240 + 8 * (g & 1) + 4 * tb)
        p("s_mul_i32 s%d, s%d, 7" % (sFfn, sU))
        p("s_mul_i32 s%d, s%d, %d\ns_lshl_b32 s3, s%d, 5\ns_add_u32 s%d, s%d, s3" % (sWa, sC, 32 * 2752, sFfn, sWa, sWa))
        p("s_mul_i32 s%d, s%d, 7168\ns_lshr_b32 s3, s%d, 1\ns_mul_i32 s3, s3, 14464\ns_add_u32 s%d, s%d, s3" % (sMw, sC, sWave, sMw, sMw))
        gudma = lambda sg: self.group(7, sMw, B_W + 8192 + SW * (sg % 3), vWo, sW, sWa, 64 * 2752, "slab%d" % sg)
        qdma = lambda sg: self.group(2, sMq, B_W + SW * (sg % 3), vWo + 7, sQ, sWb, 64 * 3072, "slab%d" % sg)
        p("s_mul_i32 s%d, s%d, %d\ns_lshl_b32 s3, s%d, 7\ns_add_u32 s%d, s%d, s3\ns_lshl_b32 s%d, s%d, 11" % (sWb, sWave, 16 * 3072, sU, sWb, sWb, sMq, sWave))
        p("v_lshlrev_b32 v6, 2, v5\nv_xor_b32 v6, v3, v6\nv_lshlrev_b32 v7, 4, v6\nv_mul_u32_u24 v6, 3072, v2\nv_add_u32 v%d, v6, v7\nv_add_u32 v%d, %d, v%d" % (vWo + 7, vWo + 8, 8 * 3072 - 1024, vWo + 7))
        for c in qdma(0): p.ext(c)
        g0 = gudma(0)
        for j in range(7):
            r = vWo + j
            p("v_add_u32 v6, %d, v1\nv_mul_u32_u24 v8, 4682, v6\nv_lshrrev_b32 v8, 16, v8" % (64 * j))
            p("v_mul_u32_u24 v8, %d, v8\nv_lshl_add_u32 v%d, v6, 4, v8" % (2752 - 224, r))
            if j & 3: p("v_subrev_u32 v%d, %d, v%d" % (r, 1024 * (j & 3), r))
            p.ext(g0[j])
        for c in self.touches("s0"): p.ext(c)
        self.stamp(p, "issued0")
        p("s_branch LbodyB\n@cut\nLbodyB:")
        dq = self.xdma(1) + qdma(1) + gudma(1)
        npre = o.get("bpre", 6)
        self.common2(p, 2)
        p("v_add_u32 v%d, s%d, v6" % (vXa, sMx))
        for s in range(1, 4): p("v_xor_b32 v%d, %d, v%d" % (vXa + s, s << 5, vXa))
        for s in range(4): p("v_xor_b32 v%d, 0x1000, v%d" % (vXa + 4 + s, vXa + s))
        p("s_lshl_b32 s3, s%d, 1\nv_lshl_or_b32 v9, v9, 1, v5\nv_xor_b32 v9, s3, v9\nv_lshl_add_u32 v9, v9, 5, v7\nv_lshl_add_u32 v9, v8, 7, v9" % sC)
        p("v_add_u32 v%d, %d, v9\nv_add_u32 v%d, %d, v9" % (vQa, W0, vQa + 1, W2))
        p("v_mul_u32_u24 v9, 224, v8\nv_add_u32 v9, v9, v7\nv_mul_u32_u24 v8, 14464, v5\nv_add_u32 v9, v9, v8\ns_mul_i32 s3, s%d, 96" % sC)
        for k in range(2): p("v_add_u32 v%d, %d, v9\nv_add_u32 v%d, s3, v%d\nv_add_u32 v%d, 192, v%d" % (vWa + 2 * k + 1, B_W + 8192 + 2 * k * SW, vWa + 2 * k, vWa + 2 * k + 1, vWa + 2 * k + 1, vWa + 2 * k + 1))
        for c in dq[:npre]: p.ext(c)
        dq = dq[npre:] + self.touches("s1") + self.xdma(2) + qdma(2) + gudma(2) + self.touches("s2")
        p("@wait vm:slab0\ns_barrier")
        self.stamp(p, "slab0")
        fw = lambda g, b: vFr + 16 * (g & 1) + 4 * b
        fq = lambda g: 232 + 4 * (g & 1)
        acc = lambda b, tb: 144 + 32 * b + 16 * tb
        aq = lambda tb: 112 + 16 * tb
        def rd(g):
            r = []
            if g >= 32: return r
            sg, s = g // 4, g % 4; sl = sg % 3
            def w(b):
                for half in range(2):
                    va = vWa + 2 * (sl >> 1) + (1 if b == 3 else 0); off = (sl & 1) * SW + s * 3584 + half * 896 + (b * 32 if b < 3 else 0)
                    r.append([Ins("ds_read_b64_tr_b16 %s, v%d offset:%d" % (vr(fw(g, b) + 2 * half, 2), va, off), "fr%d" % g)])
            def x(tb): r.append([Ins("ds_read_b128 %s, v%d offset:%d" % (xf(g, tb), vXa + 4 * tb + s, XS[sl]), "fr%d" % g)])
            x(0); w(0); x(1); w(1); w(2); w(3)
            for half in range(2): r.append([Ins("ds_read_b64_tr_b16 %s, v%d offset:%d" % (ar(fq(g) + 2 * half, 2), vQa + (sl >> 1), (sl & 1) * SW + s * 2048 + half * 512), "fr%d" % g)])
            return r
        for c in rd(0): p.ext(c)
        reads = lambda g: rd(g + 1)
        def mfmas(g):
            return (["%s %s, %s, %s, %s" % (MF, vr(acc(b, tb), 16), vr(fw(g, b)), xf(g, tb), "0" if g == 0 else vr(acc(b, tb), 16)) for b, tb in [(0, 0), (0, 1), (1, 0), (1, 1), (2, 0), (2, 1), (3, 0)]]
                  + ["%s %s, %s, %s, %s" % (MF, vr(aq(tb), 16), ar(fq(g)), xf(g, tb), "0" if g == 0 else vr(aq(tb), 16)) for tb in range(2)])
        w1, w2_ = self.wphi_read()
        gl, gc, gst = self.gate_job(80, 100, 101, "ost")
        t2a, t2l = self.touch2()
        if o.get("gate", o["aux"]) != "B": gl, gc, gst = [], P(), P()
        if o.get("tw", o["aux"]) == "A": t2a, t2l = P(), []
        self.extra = {"T": t2l, "X": gl[1:]}
        self.addside(11, gl[:1])
        sHs = [32, 33, 34, 35, sMw, sWa, sXo]
        e = P(); e.ext(t2a); e.ext(self.w2_addr()); e.ext(w1); self.spread(e, 12, 19)
        e = P(); e.ext(w2_); self.scalars(e, B); self.spread(e, 19, 23)
        z = P(); self.poll_issue(z, "init"); self.addside(24, [z.l])
        e = P()
        e("s_lshl_b32 s3, s%d, 1\ns_lshr_b32 s%d, s%d, 1\ns_add_u32 s3, s3, s%d\ns_mul_i32 s%d, s3, %d" % (sT, sTmp, sWave, sTmp, sHo, 245760 * self.hs))
        e("s_lshl_b32 s3, s%d, %d\ns_add_u32 s%d, s%d, s3" % (sC, 9 + self.hs, sHo, sHo))
        e("s_mul_i32 s%d, s%d, 3\ns_add_u32 s%d, s%d, s%d" % (sTmp, sC, sTmp, sTmp, sFfn))
        for b in range(4):
            if b == 3: e("s_add_u32 s%d, s%d, 6" % (sTmp, sFfn))
            self.hpos(e, sHs[2 * b], sTmp)
            if b < 3: e("s_xor_b32 s%d, s%d, %d\ns_add_u32 s%d, s%d, 1" % (sHs[2 * b + 1], sHs[2 * b], 1024 * self.hs, sTmp, sTmp))
        e("s_mul_i32 s3, s%d, 60\ns_add_u32 s3, s3, s%d\ns_add_u32 s3, s3, 22\ns_lshl_b32 s3, s3, %d\ns_add_u32 s%d, s3, s%d" % (sC, sU, 10 + self.hs, sOs, sHo))
        e("s_xor_b32 s%d, s%d, %d\ns_add_u32 s%d, s%d, %d\ns_add_u32 s%d, s%d, %d" % (sOs + 1, sOs, 1024 * self.hs, sOs + 2, sOs, 61440 * self.hs, sOs + 3, sOs + 1, 61440 * self.hs))
        bD = [23, 24, 25]; bR = [16, 17, 18, 19]
        e("v_lshrrev_b32 v2, 3, v1\nv_and_b32 v3, 7, v1\nv_lshrrev_b32 v4, 4, v1\nv_xor_b32 v3, v3, v4\nv_lshlrev_b32 v3, 4, v3\nv_lshl_add_u32 v23, v2, 7, v3\nv_xor_b32 v24, 64, v23")
        e("v_lshl_or_b32 v25, v2, 24, v23")
        e("v_and_b32 v2, 31, v1\nv_min_u32 v2, 16, v2\nv_lshrrev_b32 v3, 5, v1\nv_lshlrev_b32 v3, 2, v3\nv_bfe_u32 v4, v2, 1, 3\nv_xor_b32 v3, v3, v4\nv_lshlrev_b32 v3, 4, v3\nv_lshl_add_u32 v3, v2, 7, v3")
        e("s_lshl_b32 s3, s%d, 13\ns_add_u32 s3, s3, %d\nv_add_u32 v16, s3, v3\nv_xor_b32 v17, 16, v16\nv_xor_b32 v18, 32, v16\nv_xor_b32 v19, 48, v16" % (sC, B_KZ))
        e("s_lshl_b32 s3, s%d, 2\ns_add_u32 s3, s3, s%d\ns_mul_i32 s%d, s3, %d" % (sTT, sWave, sHo, 61440 * self.hs))
        self.spread(e, 23, 31)
        dspec = o.get("bd", "T.D0,D1.D2.D3,D4").split(",")
        rspec = o.get("br", ",R0").split(",")
        def pre(g, p):
            sg, s = g // 4, g % 4
            if g >= 24 and s == 0: self.spread(self.w2(rspec[sg - 6]), g, g + 3)
            if s == 3:
                if sg == 7: self.poll_check(p, "init")
                p("@wait lg:all%s\ns_barrier" % (" vm:slab%d" % (sg + 1) if sg < 7 else ""))
            else: p("@wait lg:fr%d" % g)
        rel = {}
        for sg in range(8):
            def f(sg=sg):
                r = []
                if sg < 5: r += self.xdma(sg + 3) + qdma(sg + 3) + gudma(sg + 3) + self.touches("s%d" % (sg + 3))
                if sg == 0: r += [self.wphi_load()]
                if sg >= 5: r += self.w2(dspec[sg - 5])
                return r
            rel[4 * sg + 3] = f
        self.engine(p, 32, mfmas, reads, pre, rel, dq, lambda g: 0)
        self.stamp(p, "gemm")
        items = [(b, tb) for b in range(2) for tb in range(2)]
        vKf = 96; vKz = 208; vPh = 224
        pa = lambda k: 144 + 16 * k
        e = P()
        for k in range(7): e.ext(self.gelu(acc(k >> 1, k & 1), 2, sHs[k], 0))
        self.seg(p, e, o.get("b0", "D5.X.D6.D7"))
        self.stamp(p, "gelu")
        e = P(); self.p2pre(e)
        for k in (0, 2, 1, 3):
            b, tb = items[k]; a = aq(tb) + 8 * b
            for i in range(4): e("v_cvt_pk_bf16_f32 v%d, v%d, v%d" % (vKf + 4 * k + i, a + 2 * i, a + 2 * i + 1))
            e("%s %s, %s, %s, 0" % (MF, vr(pa(k), 16), vr(vWp + 4 * b), vr(vKf + 4 * k)))
        sm = [self.softmax(pa(k), 2, vPh + 8 * k).l for k in range(4)]
        work = [gc.l] + sm
        n1, n2 = o.get("bn1", 2), o.get("bn2", 4)
        for w in work[:n1]: e.ext(w)
        self.seg(p, e, o.get("b1", "D8.R1.D9"))
        p("@wait vm:hst\ns_barrier"); self.flag(p, sF1); self.stamp(p, "hflag")
        e = P()
        for w in work[n1:n2]: e.ext(w)
        self.seg(p, e, o.get("b2", "R2.D10.R3.Pkv.R4"))
        self.poll_check(p, "kv")
        p("s_add_u32 m0, s%d, %d\ns_barrier" % (sMx, B_KZ))
        self.stamp(p, "kvseen")
        for j in range(3): p("buffer_load_dwordx4 v%d, %s, s%d offen offset:%d sc1 lds" % (bD[j], sr(sH), sKv, 1024 * j), tag="kvz")
        e = P()
        for w in work[n2:]: e.ext(w)
        self.seg(p, e, o.get("b3", "Ph.R5.R6.R7"))
        self.poll_check(p, "h")
        p("@wait vm:kvz\ns_barrier"); self.stamp(p, "hseen")
        kz = 112; PF = o["pf"]
        def omm(e, k):
            b = k >> 1
            e("%s %s, %s, %s, 0" % (MF, vr(pa(k), 16), vr(vKz + 8 * b), vr(vPh + 8 * k)))
            e("%s %s, %s, %s, %s" % (MF, vr(pa(k), 16), vr(vKz + 8 * b + 4), vr(vPh + 8 * k + 4), vr(pa(k), 16)))
        def ofin(e, k):
            a = pa(k)
            e("v_add_f32 v%d, 0x%x, v%d\nv_rcp_f32 v%d, v%d" % (a + 8, f2u(1e-6), a + 8, a + 8, a + 8))
            for i in range(4): e("v_pk_mul_f32 %s, %s, %s op_sel_hi:[1,0]" % (vr(a + 2 * i, 2), vr(a + 2 * i, 2), vr(a + 8, 2)))
            for i in range(4): e("v_cvt_pk_bf16_f32 v%d, v%d, v%d" % (a + 12 + i, a + 2 * i, a + 2 * i + 1))
        def ost(e, k): e("buffer_store_dwordx4 %s, v%d, %s, s%d offen sc1" % (vr(pa(k) + 12), vL16, sr(sH), sOs + k), tag="ost")
        e = P()
        for b in range(2):
            for q4 in range(4): e("ds_read_b128 %s, v%d offset:%d" % (vr(kz + 16 * b + 4 * q4), bR[q4], 4096 * b))
        for b in range(2):
            for i in range(8): e("v_cvt_pk_bf16_f32 v%d, v%d, v%d" % (vKz + 8 * b + i, kz + 16 * b + 2 * i, kz + 16 * b + 2 * i + 1))
            omm(e, 2 * b); omm(e, 2 * b + 1)
        self.seg(p, e, o.get("b4", "H0.H1.H2.H3.H4"))
        self.stamp(p, "qsm")
        e = P()
        for k in range(4):
            ofin(e, k)
            if o.get('x_nogate', 0) < 3: ost(e, k)
        self.cluster(e, o.get("ost", ""))
        if o.get('x_nogate', 0) < 3: e.ext(gst)
        self.seg(p, e, o.get("b5", ""))
        self.phase2(p, B, o.get("b6", ",R8,,R9,,R10,,Pa.D11,D12,,,,,R11,R12,Po.D13,D14,,,,R13,R14"), o.get("bof", 4))
        return p
    def pathB2(self):
        o = self.o; p = P(); B = self.B = True; self.side = {}
        vXa = 28; vWa = 36; vQa = 41; vQo = 42
        QS = 49152; GS = 73728; KZ = 147968
        er = o.get("ber", 0)
        av = {XS[2]: 23, XS[0]: 27, XS[1]: 31, QS: 31, 131584: 55, GS: 59, 90112: 63, 106496: 63}
        self.w2_init(([XS[2], XS[0], XS[1], QS, 131584, GS, 90112, 106496] * 2)[:15], [0, GS], av)
        for i in range(8): av["G%d" % i] = 0 if i < 3 else 4 * i + 23
        p("s_mul_i32 s%d, s%d, %d\ns_lshl_b32 s3, s%d, 7\ns_add_u32 s%d, s%d, s3\ns_lshl_b32 s%d, s%d, 11" % (sWb, sWave, 16 * 3072, sU, sWb, sWb, sMq, sWave))
        p("v_lshlrev_b32 v6, 2, v5\nv_xor_b32 v6, v3, v6\nv_lshlrev_b32 v7, 4, v6\nv_mul_u32_u24 v6, 3072, v2\nv_add_u32 v%d, v6, v7\nv_add_u32 v%d, %d, v%d" % (vQo, vQo + 1, 8 * 3072 - 1024, vQo))
        gudma = lambda m: self.group(7, sMw, GS + B_SW * (m % 3), vWo, sW, sWa, 64 * 2752, "slab%d" % (8 + m))
        qdma = lambda sg: self.group(2, sMq, QS + 8192 * (sg % 3), vQo, sQ, sWb, 64 * 3072, "slab%d" % sg)
        self.other = gudma
        for c in qdma(0) + self.touches("s0"): p.ext(c)
        self.stamp(p, "issued0")
        dq = self.xdma(1) + qdma(1) + self.touches("s1") + self.xdma(2) + qdma(2) + self.touches("s2")
        npre = o.get("bpre", 6)
        for c in dq[:npre]: p.ext(c)
        dq = dq[npre:]
        p("s_branch LbodyB\n@cut\nLbodyB:")
        self.common2(p, 2)
        p("v_add_u32 v%d, s%d, v6" % (vXa, sMx))
        for s in range(1, 4): p("v_xor_b32 v%d, %d, v%d" % (vXa + s, s << 5, vXa))
        for s in range(4): p("v_xor_b32 v%d, 0x1000, v%d" % (vXa + 4 + s, vXa + s))
        p("s_lshl_b32 s3, s%d, 1\nv_lshl_or_b32 v9, v9, 1, v5\nv_xor_b32 v9, s3, v9\nv_lshl_add_u32 v9, v9, 5, v7\nv_lshl_add_u32 v9, v8, 7, v9" % sC)
        p("v_add_u32 v%d, %d, v9" % (vQa, QS))
        p("v_mul_u32_u24 v9, 224, v8\nv_add_u32 v9, v9, v7\nv_mul_u32_u24 v8, 14464, v5\nv_add_u32 v9, v9, v8\ns_mul_i32 s3, s%d, 96" % sC)
        for k in range(2): p("v_add_u32 v%d, %d, v9\nv_add_u32 v%d, s3, v%d\nv_add_u32 v%d, 192, v%d" % (vWa + 2 * k + 1, GS + 2 * k * B_SW, vWa + 2 * k, vWa + 2 * k + 1, vWa + 2 * k + 1, vWa + 2 * k + 1))
        p("s_mul_i32 s%d, s%d, 7" % (sFfn, sU))
        p("s_mul_i32 s%d, s%d, %d\ns_lshl_b32 s3, s%d, 5\ns_add_u32 s%d, s%d, s3" % (sWa, sC, 32 * 2752, sFfn, sWa, sWa))
        p("s_mul_i32 s%d, s%d, 7168\ns_lshr_b32 s3, s%d, 1\ns_mul_i32 s3, s3, 14464\ns_add_u32 s%d, s%d, s3" % (sMw, sC, sWave, sMw, sMw))
        for j in range(7):
            r = vWo + j
            p("v_add_u32 v6, %d, v1\nv_mul_u32_u24 v8, 4682, v6\nv_lshrrev_b32 v8, 16, v8" % (64 * j))
            p("v_mul_u32_u24 v8, %d, v8\nv_lshl_add_u32 v%d, v6, 4, v8" % (2752 - 224, r))
            if j & 3: p("v_subrev_u32 v%d, %d, v%d" % (r, 1024 * (j & 3), r))
        if er:
            for c in dq: p.ext(c)
            dq = []
        p("@wait vm:slab0\ns_barrier")
        self.stamp(p, "slab0")
        fw = lambda g, b: vFr + 16 * (g & 1) + 4 * b
        fq = lambda g: vFr + 4 * (g % 8)
        acc = lambda b, tb: 144 + 32 * b + 16 * tb
        aq = lambda tb: 112 + 16 * tb
        def rd(g):
            r = []
            if g >= 64: return r
            sg, s = g // 4, g % 4
            if g < 32:
                x = lambda tb: r.append([Ins("ds_read_b128 %s, v%d offset:%d" % (self.xf(g, tb), vXa + 4 * tb + s, XS[sg % 3]))])
                x(0)
                for half in range(2): r.append([Ins("ds_read_b64_tr_b16 %s, v%d offset:%d" % (vr(fq(g) + 2 * half, 2), vQa, 8192 * (sg % 3) + s * 2048 + half * 512))])
                x(1)
            else:
                sl = (sg - 8) % 3
                for b in range(4):
                    for half in range(2):
                        va = vWa + 2 * (sl >> 1) + (1 if b == 3 else 0); off = (sl & 1) * B_SW + s * 3584 + half * 896 + (b * 32 if b < 3 else 0)
                        r.append([Ins("ds_read_b64_tr_b16 %s, v%d offset:%d" % (vr(fw(g, b) + 2 * half, 2), va, off), "fr%d" % g)])
            return r
        for g in range(4):
            for c in rd(g): p.ext(c)
        def reads(g):
            if g < 31: return sum((rd(g + k) for k in range(1, 5)), []) if g % 4 == 3 else []
            return rd(g + 1)
        def mfmas(g):
            if g >= 32:
                return ["%s %s, %s, %s, %s" % (MF, vr(acc(b, tb), 16), vr(fw(g, b)), self.xf(g, tb), "0" if g == 32 else vr(acc(b, tb), 16)) for b, tb in [(0, 0), (0, 1), (1, 0), (1, 1), (2, 0), (2, 1), (3, 0)]]
            return ["%s %s, %s, %s, %s" % (MF, vr(aq(tb), 16), vr(fq(g)), self.xf(g, tb), "0" if g == 0 else vr(aq(tb), 16)) for tb in range(2)]
        w1, w2_ = self.wphi_read()
        gl, gc, gst = self.gate_job(112, 100, 101, "ost", 27, 55)
        t2a, t2l = self.touch2()
        if o.get("gate", o["aux"]) != "B": gl, gc, gst = [], P(), P()
        if o.get("tw", o["aux"]) == "A": t2a, t2l = P(), []
        self.extra = {"T": t2l, "X": gl[1:]}
        self.addside(11, gl[:1])
        e = P(); e.ext(t2a); e.ext(self.w2_addr()); e.ext(w1); self.spread(e, 12, 24)
        e = P(); e.ext(w2_); self.scalars(e, B); self.spread(e, 24, 31)
        sHs = [36, 37, 38, 39, sWb, sMq, sXo]
        z = P()
        z("s_lshl_b32 s3, s%d, 1\ns_lshr_b32 s%d, s%d, 1\ns_add_u32 s3, s3, s%d\ns_mul_i32 s%d, s3, %d" % (sT, sTmp, sWave, sTmp, sHo, 245760 * self.hs))
        z("s_lshl_b32 s3, s%d, %d\ns_add_u32 s%d, s%d, s3" % (sC, 9 + self.hs, sHo, sHo))
        z("s_mul_i32 s%d, s%d, 3\ns_add_u32 s%d, s%d, s%d" % (sTmp, sC, sTmp, sTmp, sFfn))
        for b in range(4):
            if b == 3: z("s_add_u32 s%d, s%d, 6" % (sTmp, sFfn))
            self.hpos(z, sHs[2 * b], sTmp)
            if b < 3: z("s_xor_b32 s%d, s%d, %d\ns_add_u32 s%d, s%d, 1" % (sHs[2 * b + 1], sHs[2 * b], 1024 * self.hs, sTmp, sTmp))
        z("s_mul_i32 s3, s%d, 60\ns_add_u32 s3, s3, s%d\ns_add_u32 s3, s3, 22\ns_lshl_b32 s3, s3, %d\ns_add_u32 s%d, s3, s%d" % (sC, sU, 10 + self.hs, sOs, sHo))
        z("s_xor_b32 s%d, s%d, %d\ns_add_u32 s%d, s%d, %d\ns_add_u32 s%d, s%d, %d" % (sOs + 1, sOs, 1024 * self.hs, sOs + 2, sOs, 61440 * self.hs, sOs + 3, sOs + 1, 61440 * self.hs))
        z("s_lshl_b32 s3, s%d, 2\ns_add_u32 s3, s3, s%d\ns_mul_i32 s%d, s3, %d" % (sTT, sWave, sHo, 61440 * self.hs))
        items = [(b, tb) for b in range(2) for tb in range(2)]
        phi = [(128, 132), (136, 140), (28, 32), (16, 40)]; kf = [32, 40, 28, 16]
        e1 = P(); n = len(z.l)
        e1.ext(z.l[:n // 5])
        for k in (0, 2, 1, 3):
            b, tb = items[k]; a = aq(tb) + 8 * b
            for i in range(4): e1("v_cvt_pk_bf16_f32 v%d, v%d, v%d" % (kf[k] + i, a + 2 * i, a + 2 * i + 1))
        for k, (b, tb) in enumerate(items):
            e1("%s %s, %s, %s, 0" % (MF, vr(112, 16), vr(vWp + 4 * b), vr(kf[k])))
            e1.ext(z.l[(k + 1) * n // 5:(k + 2) * n // 5])
            e1.ext(self.softmax(112, 2, phi[k], pk=bool(o.get("bqpk", 0))))
        self.stamp(e1, "qsm")
        bD = [20, 21, 22]; bR = [23, 24, 25, 26]
        e2 = P()
        e2("v_lshrrev_b32 v2, 3, v1\nv_and_b32 v3, 7, v1\nv_lshrrev_b32 v4, 4, v1\nv_xor_b32 v3, v3, v4\nv_lshlrev_b32 v3, 4, v3\nv_lshl_add_u32 v20, v2, 7, v3\nv_xor_b32 v21, 64, v20")
        e2("v_lshl_or_b32 v22, v2, 24, v20")
        e2("v_and_b32 v2, 31, v1\nv_min_u32 v2, 16, v2\nv_lshrrev_b32 v3, 5, v1\nv_lshlrev_b32 v3, 2, v3\nv_bfe_u32 v4, v2, 1, 3\nv_xor_b32 v3, v3, v4\nv_lshlrev_b32 v3, 4, v3\nv_lshl_add_u32 v3, v2, 7, v3")
        e2("s_lshl_b32 s3, s%d, 13\ns_add_u32 s3, s3, %d\nv_add_u32 v23, s3, v3\nv_xor_b32 v24, 16, v23\nv_xor_b32 v25, 32, v23\nv_xor_b32 v26, 48, v23" % (sC, KZ))
        z = P(); self.poll_issue(z, "init"); self.addside(44, [z.l])
        dspec = o.get("bd", "G0,G1,G2,G3,G4,G5,G6,G7,T.X.D0,D1.D2.D3,D4").split(",")
        rspec = o.get("br", ",,,,,,,R0").split(",")
        def pre(g, p):
            sg, s = g // 4, g % 4
            if g == 32: self.stamp(p, "job1"); self.fq += self.zones(e1.l)
            if g >= 32 and s == 0: self.spread(self.w2(rspec[sg - 8]), g, g + 3)
            if g == 55:
                assert "G7" in self.used
                self.flush(p); self.nfl = self.nflush
                self.fq += self.zones(e2.l)
            if g == 60: self.fq += self.zones(gc.l)
            if s == 3:
                if sg == 12: self.poll_check(p, "init")
                p("@wait lg:all%s\ns_barrier" % (" vm:slab%d" % (sg + 1) if sg < 15 else ""))
            elif g >= 32: p("@wait lg:fr%d" % g)
            elif er and s == 0 and sg < 5: p("@wait lg:all\ns_barrier")
        rel = {}
        for sg in range(16):
            def f(sg=sg):
                r = []
                if sg < 5: r += self.xdma(sg + 3) + qdma(sg + 3) + self.touches("s%d" % (sg + 3))
                if sg == 0: r += [self.wphi_load()]
                if sg >= 5: r += self.w2(dspec[sg - 5])
                return r
            rel[4 * sg + (0 if er and sg < 8 else 3)] = f
        self.engine(p, 64, mfmas, reads, pre, rel, dq, lambda g: o.get("bfr", 2) if g < o.get("bfrg", 31) else 0, lambda g: o.get("bbud", 24))
        self.stamp(p, "gemm")
        e = P()
        for k in range(7): e.ext(self.gelu(acc(k >> 1, k & 1), 2, sHs[k], 0))
        self.seg(p, e, o.get("b0", "D5.D6.D7.D8"))
        self.stamp(p, "gelu")
        self.seg(p, P(), o.get("b1", "R1.R2.Pkv.D9.R3.R4.R5"))
        p("@wait vm:hst\ns_barrier"); self.flag(p, sF1); self.stamp(p, "hflag")
        self.seg(p, P(), o.get("b2", ""))
        self.poll_check(p, "kv")
        p("s_add_u32 m0, s%d, %d\ns_barrier" % (sMx, KZ))
        self.stamp(p, "kvseen")
        for j in range(3): p("buffer_load_dwordx4 v%d, %s, s%d offen offset:%d sc1 lds" % (bD[j], sr(sH), sKv, 1024 * j), tag="kvz")
        self.seg(p, P(), o.get("b3", "D10.R6.R7.R8.Ph"))
        p("@wait vm:kvz\ns_barrier")
        vKz = 208; kz = 224; pa = lambda k: 144 + 16 * k
        e = P()
        for b in range(2):
            for q4 in range(4): e("ds_read_b128 %s, v%d offset:%d" % (vr(kz + 16 * b + 4 * q4), bR[q4], 4096 * b))
        for b in range(2):
            for i in range(8): e("v_cvt_pk_bf16_f32 v%d, v%d, v%d" % (vKz + 8 * b + i, kz + 16 * b + 2 * i, kz + 16 * b + 2 * i + 1))
            for k in (2 * b, 2 * b + 1):
                e("%s %s, %s, %s, 0" % (MF, vr(pa(k), 16), vr(vKz + 8 * b), vr(phi[k][0])))
                e("%s %s, %s, %s, %s" % (MF, vr(pa(k), 16), vr(vKz + 8 * b + 4), vr(phi[k][1]), vr(pa(k), 16)))
        self.seg(p, e, o.get("b4", ""))
        early = o.get("bearly", 0)
        if early: self.poll_check(p, "h"); p("s_barrier"); self.stamp(p, "hseen")
        e = P()
        for k in range(4):
            a = pa(k)
            e("v_add_f32 v%d, 0x%x, v%d\nv_rcp_f32 v%d, v%d" % (a + 8, f2u(1e-6), a + 8, a + 8, a + 8))
            for i in range(4): e("v_pk_mul_f32 %s, %s, %s op_sel_hi:[1,0]" % (vr(a + 2 * i, 2), vr(a + 2 * i, 2), vr(a + 8, 2)))
            for i in range(4): e("v_cvt_pk_bf16_f32 v%d, v%d, v%d" % (a + 12 + i, a + 2 * i, a + 2 * i + 1))
            e("buffer_store_dwordx4 %s, v%d, %s, s%d offen sc1" % (vr(a + 12), vL16, sr(sH), sOs + k), tag="ost")
        e.ext(gst); self.p2pre(e)
        self.seg(p, e, o.get("b5", ""))
        if not early: self.poll_check(p, "h"); p("s_barrier"); self.stamp(p, "hseen")
        self.phase2(p, B, o.get("b6", ",R9,,R10,,,,Pa.D11,D12,,,,,R11,R12,Po.D13,D14,,,,R13,R14"), o.get("bof", 0))
        return p
    vDm, vGo, vG, vG1 = 29, 30, 4, 32
    hf = staticmethod(lambda st, tb: 56 + 8 * (st % 9) + 4 * tb)
    def p2pre(self, e):
        e("s_lshr_b32 s3, s%d, 1\ns_lshl_b32 s3, s3, 30\nv_add_u32 v%d, s3, v%d\nv_and_b32 v%d, 31, v1\nv_lshlrev_b32 v%d, 2, v%d" % (sWave, self.vDm, vL16, self.vGo, self.vGo, self.vGo))
        if self.hs == 2: e("v_add_u32 v31, 4096, v%d" % vL16)
    def hload(self, st):
        q = P()
        if self.hs == 2:
            for tb in range(2):
                q("buffer_load_dwordx4 %s, v%d, %s, s%d offen offset:%d sc1" % (vr(self.hf(st, tb)), self.vDm if st == 13 else vL16, sr(sH), sHo, tb * 2048))
            q("s_add_u32 s%d, s%d, 4096" % (sHo, sHo))
            return q
        for tb in range(2):
            q("buffer_load_dwordx4 %s, v%d, %s, s%d offen offset:%d sc1" % (vr(self.hf(st, tb)), self.vDm if st == 13 else vL16, sr(sH), sHo, (st & 1) * 2048 + tb * 1024))
        if st & 1: q("s_add_u32 s%d, s%d, 4096" % (sHo, sHo))
        return q
    def phase2(self, p, B, spec, fat):
        o = self.o; PF = o["pf"]; hf = self.hf; vG, vG1, vGo = self.vG, self.vG1, self.vGo
        auto = "Pa" not in spec; spec = spec.split(","); wp = o.get("wpoll", 0)
        if wp: p("v_lshrrev_b32 v2, 3, v1\nv_lshlrev_b32 v3, 7, v1\nv_lshl_or_b32 v%d, v2, 24, v3\ns_movk_i32 s%d, 0xff" % (vPoll8, sE8))
        assert self.nh <= 7
        for st in range(self.nh, PF): p.ext(self.hload(st))
        a2 = lambda part, cb, tb: 128 + 64 * part + 32 * cb + 16 * tb
        wa = [16, 17, 18, 19]; ra = [20, 21]; oa = 22
        ad = P()
        ad("v_and_b32 v2, 15, v1\nv_lshrrev_b32 v3, 5, v1\nv_and_b32 v8, 7, v1\nv_xor_b32 v3, v3, v8\nv_lshlrev_b32 v3, 4, v3\nv_lshl_add_u32 v3, v2, 8, v3\nv_bfe_u32 v2, v1, 4, 1\nv_lshl_add_u32 v3, v2, 14, v3")
        ad("v_add_u32 v16, s%d, v3\nv_xor_b32 v17, 32, v16\nv_xor_b32 v18, 64, v16\nv_xor_b32 v19, 0x60, v16" % sMx)
        ad("v_lshrrev_b32 v2, 3, v0\nv_and_b32 v3, 7, v2\nv_lshlrev_b32 v9, 1, v8\nv_xor_b32 v3, v3, v9\nv_lshlrev_b32 v3, 4, v3\nv_and_b32 v9, 15, v2\nv_lshl_add_u32 v3, v9, 8, v3\nv_lshrrev_b32 v9, 7, v0\nv_lshl_add_u32 v20, v9, 14, v3\nv_xor_b32 v21, 16, v20")
        ad("v_lshlrev_b32 v8, 4, v8\nv_lshl_add_u32 v22, v2, 10, v8")
        oreg = lambda j, tb: hf(22 + (tb * 8 + j) // 2, (tb * 8 + j) & 1)
        def oload(n):
            q = P()
            for k in (2 * n, 2 * n + 1):
                tb, j = k // 8, k % 8
                if self.hs == 2: q("buffer_load_dwordx4 %s, v%d, %s, s%d offen offset:%d sc1" % (vr(oreg(j, tb)), 31 if j & 1 else vL16, sr(sH), sHo, tb * 2048))
                else: q("buffer_load_dwordx4 %s, v%d, %s, s%d offen offset:%d sc1" % (vr(oreg(j, tb)), vL16, sr(sH), sHo, (j & 1) * 2048 + tb * 1024))
            if n == 3: q("s_sub_u32 s%d, s%d, %d" % (sHo, sHo, 3 * 4096 * self.hs))
            elif n < 7: q("s_add_u32 s%d, s%d, %d" % (sHo, sHo, 4096 * self.hs))
            return q
        def scale(tb):
            q = P()
            q("v_sub_f32 v%d, 1.0, v%d" % (vG1 + 2 * tb, vG + 2 * tb))
            for cb in range(2):
                for i in range(16): q("v_mul_f32 v%d, v%d, v%d" % (a2(0, cb, tb) + i, a2(0, cb, tb) + i, vG1 + 2 * tb))
            return q
        def comb(tb):
            q = P()
            for cb in range(2):
                a = a2(0, cb, tb); b_ = a2(1, cb, tb)
                for j in range(4):
                    if tb == 0:
                        for i in range(4 * j, 4 * j + 4): q("v_fmac_f32 v%d, v%d, v%d" % (a + i, b_ + i, vG))
                    else:
                      for i in (2 * j, 2 * j + 1): q("v_pk_fma_f32 %s, %s, %s, %s op_sel_hi:[1,0,1]" % (vr(a + 2 * i, 2), vr(b_ + 2 * i, 2), vr(vG + 2 * tb, 2), vr(a + 2 * i, 2)))
                    q("ds_write_b128 v%d, %s offset:%d" % (wa[j], vr(a + 4 * j), tb * 32768 + cb * 128))
            return q
        def trd(hh):
            q = P()
            for w in range(4):
                for i in range(2): q("ds_read_b128 %s, v%d offset:%d" % (vr(tr0(hh) + 8 * w + 4 * i), ra[i], w * 4096 + hh * 32768))
            return q
        def fin(hh):
            q = P(); b0 = tr0(hh)
            for i in range(4): q("v_pk_add_f32 %s, %s, %s" % (vr(b0 + 2 * i, 2), vr(b0 + 2 * i, 2), vr(b0 + 8 + 2 * i, 2)))
            for i in range(4): q("v_pk_add_f32 %s, %s, %s" % (vr(b0 + 16 + 2 * i, 2), vr(b0 + 16 + 2 * i, 2), vr(b0 + 24 + 2 * i, 2)))
            for i in range(4): q("v_pk_add_f32 %s, %s, %s" % (vr(b0 + 2 * i, 2), vr(b0 + 2 * i, 2), vr(b0 + 16 + 2 * i, 2)))
            for i in range(4): q("v_cvt_pk_bf16_f32 v%d, v%d, v%d" % (b0 + 8 + i, b0 + 2 * i, b0 + 2 * i + 1))
            q("buffer_store_dwordx4 %s, v%d, %s, s%d offen %s" % (vr(b0 + 8), oa, sr(sOut), sOb if hh else sOa, o["outfl"].replace("_", " ")))
            return q
        tr0 = lambda hh: 88 if hh == 0 else 56
        fill = []
        for st in range(30):
            nx = st + PF
            if o.get("tsplit", 1) and st == 29:
                p.ext(fill); p("@wait lg:all\ns_barrier"); fill = trd(0).l
            if st == fat and o.get("x_nogate", 0) < 2:
                p("@wait vm:%s\ns_barrier" % ("ost" if B else "hst")); self.flag(p, sF2 if B else sF1); self.stamp(p, "oflag" if B else "hflag")
            assert "R%d" % (st // 2 if st < 22 else min(14, st - 11)) in self.used
            ng = o.get("x_nogate", 0)
            if auto and nx == 14 - o.get("opoll", 2) and not ng: self.poll_issue(p, "a")
            if nx == 14:
                if not ng: self.poll_check(p, "a"); p("" if wp else "s_barrier")
                self.stamp(p, "aseen")
            if auto and nx == 22 - o.get("opoll", 2) and not ng: self.poll_issue(p, "o")
            if nx == 22:
                if not ng: self.poll_check(p, "o"); p("" if wp else "s_barrier")
                self.stamp(p, "oseen")
                p("buffer_load_dword v%d, v%d, %s, s%d offen sc1\nbuffer_load_dword v%d, v%d, %s, s%d offen offset:128 sc1" % (vG, vGo, sr(sH), sGo, vG + 2, vGo, sr(sH), sGo))
            ld = [] if nx < self.nh else self.hload(nx).l if nx < 22 else (oload(nx - 22).l if nx < 30 else [])
            wq = self.w2(spec[st]) if st < len(spec) else []
            if st == 18: fill = ad.l
            if st == 22: fill = [Ins("s_nop 0")] * 0 + scale(0).l + scale(1).l
            if st == 26: fill += comb(0).l
            for g_ in range(4):
                if st < 22:
                    cb, tb = g_ >> 1, g_ & 1; a = a2(0, cb, tb)
                    p("%s %s, %s, %s, %s" % (MF, vr(a, 16), ar(8 * st + 4 * cb), vr(hf(st, tb)), "0" if st == 0 else vr(a, 16)))
                else:
                    k = 2 * (st - 22) + (g_ >> 1); tb, j = k // 8, k % 8; cb = g_ & 1; a = a2(1, cb, tb)
                    p("%s %s, %s, %s, %s" % (MF, vr(a, 16), ar(8 * (22 + j) + 4 * cb), vr(oreg(j, tb)), "0" if j == 0 else vr(a, 16)))
                if ld: p.ext([ld.pop(0)])
                for _ in range(-(-len(wq) // (4 - g_))): p.ext(wq.pop(0))
                p.ext(fill[:4]); fill = fill[4:]
            assert not ld
        p.ext(fill)
        self.stamp(p, "p2mfma")
        assert len(self.used) == 38, sorted(set("%s%d" % (k, i) for k in "RD" for i in range(15)) - set(self.used))
        if o.get("tsplit", 1):
            f = fin(0).l
            p.ext(comb(1)); p.ext(f[:8])
            p("@wait lg:all\ns_barrier"); p.ext(trd(1)); p.ext(f[8:]); p.ext(fin(1))
        else:
            p.ext(comb(1))
            p("@wait lg:all\ns_barrier")
            p.ext(trd(0)); p.ext(trd(1)); p.ext(fin(0)); p.ext(fin(1))
        nm = "B" if B else "A"
        if o["stamps"]:
            p("s_waitcnt vmcnt(0)", raw=True); self.stamp(p, "end")
            p("s_waitcnt lgkmcnt(0)", raw=True)
            p("s_lshl_b32 s3, s2, 2\ns_add_u32 s3, s3, s%d\ns_lshl_b32 s3, s3, 6\ns_add_u32 s3, s3, 0x%x" % (sWave, WS_ST))
            p("v_mov_b32 v16, s94")
            for k in range(self.nst): p("v_mov_b32 v%d, s%d" % (17 + k, sStamp + 2 * k))
            if o.get("spins"):
                assert self.nst <= 11
                p("v_mov_b32 v31, s26")
            p("v_lshlrev_b32 v2, 24, v1")
            for k in range(4): p("buffer_store_dwordx4 %s, v2, %s, s3 offen offset:%d" % (vr(16 + 4 * k), sr(sH), 16 * k))
        if o.get("calib"):
            if "calx" in o: p("s_and_b32 s3, s2, 7\ns_cmp_lg_u32 s3, %d\ns_cbranch_scc1 Lend" % o["calx"], raw=True)
            if "calh" in o: p("s_getreg_b32 s3, hwreg(HW_REG_XCC_ID, 0, 3)\ns_cmp_lg_u32 s3, %d\ns_cbranch_scc1 Lend" % o["calh"], raw=True)
            p("Lcal%s:\ns_memrealtime s[96:97]\ns_waitcnt lgkmcnt(0)\ns_sub_u32 s3, s96, s94\ns_cmp_lt_u32 s3, %d\ns_cbranch_scc1 Lcal%s" % (nm, o["calib"], nm), raw=True)
        p("s_endpgm")
    def build(self):
        st = State(); stats = {}
        out = process(self.prologue().l, st, stats)
        stB = st.copy(); n0 = self.ntouch; s0 = set(self.started)
        def flt(l):
            dr = [d for d in self.o.get("x_drop", "").split(".") if d]
            if not dr: return l
            r = []
            for i in l:
                if i.op == "@wait": i = Ins(" ".join(t + ("?" if ":" in t and not t.endswith(("?", "all")) else "") for t in i.text.split()))
                t = i.text
                kill = (("w2d" in dr and (i.tag or "").startswith("w2d")) or ("w2r" in dr and (i.tag or "").startswith("w2r"))
                    or ("hld" in dr and i.op == "buffer_load_dwordx4" and "sc1" in t and " lds" not in t)
                    or ("at" in dr and i.op == "buffer_atomic_add_f32") or ("st" in dr and i.op == "buffer_store_dwordx4" and i.tag in ("hst", "ost"))
                    or ("trans" in dr and i.op in ("v_exp_f32", "v_rcp_f32")) or ("pk" in dr and i.op.startswith("v_pk"))
                    or ("m2" in dr and i.cls == "mfma" and i.ops[1].startswith("a[")) or ("m1" in dr and i.cls == "mfma" and i.ops[2].startswith("a["))
                    or ("skel" in dr and (i.cls in ("mfma", "ds") or i.op in ("s_barrier", "v_exp_f32", "v_rcp_f32", "v_max3_f32", "v_cvt_pk_bf16_f32", "v_mul_f32", "v_fmac_f32", "v_add_f32", "v_max_f32", "v_and_or_b32", "v_sub_f32")
                                          or i.op.startswith("v_pk") or (i.op == "@wait" and "all" not in t.replace("lg:all", "")) or (i.op == "v_cmp_ne_u32" and "v13" in t)))
                    or ("fl" in dr and i.op == "buffer_store_dword")
                    or ("dw" in dr and i.op == "ds_write_b128") or ("p1d" in dr and (i.tag or "").startswith(("slab", "q")))
                    or ("out" in dr and i.op == "buffer_store_dwordx4" and not i.tag and "s[56:59]" in t))
                if "skel" in dr and i.op == "s_cbranch_scc1" and "Lok" in t and not i.raw: i = Ins(t.replace("s_cbranch_scc1", "s_branch"))
                if "skel" in dr and i.op == "buffer_load_dwordx4" and " lds" not in t: i = Ins(t, raw=True)
                if not kill: r.append(i)
            return r
        oa = process(flt(self.pathA().l), st, stats); self.namesA = list(self.stnames)
        self.started = s0; self.ntouch = n0; self.nst = 0; self.stnames = []
        ob = process(flt([self.pathB, self.pathB2, self.pathB3][self.o.get("bq", 0)]().l), stB, stats); self.namesB = list(self.stnames)
        k = ob.index("@cut")
        out += ob[:k] + oa + ob[k + 1:]
        out.append("Lend:\ns_endpgm")
        self.stats = stats
        hdr = "; @launch grid=(256,1,1) block=(256,1,1) lds=163840\n"
        hdr += '.amdgcn_target "amdgcn-amd-amdhsa--gfx950"\n.text\n.globl %s\n.p2align 8\n.type %s,@function\n%s:\n' % (KNAME, KNAME, KNAME)
        tail = """
.section .rodata,"a"
.p2align 6
.amdhsa_kernel %s
  .amdhsa_next_free_vgpr 512
  .amdhsa_next_free_sgpr 102
  .amdhsa_accum_offset 256
  .amdhsa_group_segment_fixed_size 0
  .amdhsa_kernarg_size 96
  .amdhsa_user_sgpr_count 2
  .amdhsa_user_sgpr_kernarg_segment_ptr 1
  .amdhsa_system_sgpr_workgroup_id_x 1
  .amdhsa_float_denorm_mode_32 3
.end_amdhsa_kernel
""" % KNAME
        return hdr + "\n".join(out) + tail
if __name__ == "__main__":
    opts = {}
    for a in sys.argv[2:]:
        k, v = a.split("="); opts[k] = int(v) if v.lstrip("-").isdigit() else v
    g = Gen(**opts)
    open(sys.argv[1], "w").write(g.build())
    print("nops", g.stats)
```
